```python
import torch

def _softmax(x, axis=-1):
    return torch.softmax(x, dim=axis)
def _gelu(x):
    return torch.nn.functional.gelu(x, approximate="tanh")
def _silu(x):
    return torch.nn.functional.silu(x)
def _sigmoid(x):
    return torch.sigmoid(x)
def _layernorm(x, axis=-1, eps=1e-5):
    m = x.mean(dim=axis, keepdim=True)
    v = x.var(dim=axis, keepdim=True, unbiased=False)
    return (x - m) / torch.sqrt(v + eps)
def _scatter_add(tgt, idx, src, axis=0):
    return tgt.clone().index_add_(axis, idx, src)
def _segment_sum(src, seg, n):
    out = torch.zeros((n,) + src.shape[1:], dtype=src.dtype)
    return out.index_add_(0, seg, src)
def _pad(x, pw):
    flat = tuple(v for pair in reversed(pw) for v in pair)
    return torch.nn.functional.pad(x, flat)

kernel_name = 'sequential_preLN__ssm_conv_h3__glu_gated_geglu__prompt'

def setup_inputs():

    _w = (lambda a: (lambda t: t.to(torch.bfloat16) if t.is_floating_point() else t)(torch.as_tensor(a)))
    def _A_setup():
        B, S, D = 1, 2048, 1024
        ks = 4
        return {
            "q": _w((lambda *s: torch.randn(*s, dtype=torch.bfloat16) * 0.05)(B, S, D)),
            "k": _w((lambda *s: torch.randn(*s, dtype=torch.bfloat16) * 0.2)(B, S, D)),
            "v": _w((lambda *s: torch.randn(*s, dtype=torch.bfloat16) * 0.2)(B, S, D)),
            "shift_k": _w((lambda *s: torch.randn(*s, dtype=torch.bfloat16) * 0.2)(D, ks) * 0.5),
            "ssm_k": _w((lambda *s: torch.randn(*s, dtype=torch.bfloat16) * 0.4)(D, S) * (1.0 / S ** 0.5)),
            "ssm_D": _w((lambda *s: torch.randn(*s, dtype=torch.bfloat16) * 0.2)(D)),
        }
    _A_in = _A_setup()

    def _B_setup():
        B, S, Dm, Df = 1, 2048, 1024, 3584
        return {
            "x": _w((lambda *s: torch.randn(*s, dtype=torch.bfloat16) * 0.05)(B, S, Dm)),
            "w_gate": _w((lambda *s: torch.randn(*s, dtype=torch.bfloat16) * 0.4)(Dm, Df) * (Dm ** -0.5)),
            "w_up": _w((lambda *s: torch.randn(*s, dtype=torch.bfloat16) * 0.4)(Dm, Df) * (Dm ** -0.5)),
            "w_down": _w((lambda *s: torch.randn(*s, dtype=torch.bfloat16) * 0.4)(Df, Dm) * (Df ** -0.5)),
        }
    _B_in = _B_setup()

    return {
        "A_q": _A_in["q"],
        "A_k": _A_in["k"],
        "A_v": _A_in["v"],
        "A_shift_k": _A_in["shift_k"],
        "A_ssm_k": _A_in["ssm_k"],
        "A_ssm_D": _A_in["ssm_D"],
        "B_x": _B_in["x"],
        "B_w_gate": _B_in["w_gate"],
        "B_w_up": _B_in["w_up"],
        "B_w_down": _B_in["w_down"],
    }

def reference(A_q, A_k, A_v, A_shift_k, A_ssm_k, A_ssm_D, B_x, B_w_gate, B_w_up, B_w_down):
    def _A_ref(q, k, v, shift_k, ssm_k, ssm_D):
        B, S, D = q.shape
        ks = shift_k.shape[-1]
        k_pad = _pad(k, ((0, 0), (ks - 1, 0), (0, 0)))
        k_shift = torch.zeros_like(k)
        for t in range(ks):
            k_shift = k_shift + k_pad[:, t:t + S, :] * shift_k[:, ks - 1 - t][None, None, :]
        kv = k_shift * v
        L = 2 * S
        kv_pad = _pad(kv, ((0, 0), (0, S), (0, 0)))
        kf_pad = _pad(ssm_k, ((0, 0), (0, S)))
        kv_f = (lambda x, axes=(-2,-1): torch.fft.rfft2(x.float(), dim=axes))(kv_pad[:, None, :, :], axes=(1, 2))
        kf_f = (lambda x, axes=(-2,-1): torch.fft.rfft2(x.float(), dim=axes))(kf_pad[:, None, :], axes=(1, 2))
        kf_f = (lambda x, *d: x.permute(*d))(kf_f, 1, 2, 0)
        y_f = kv_f * kf_f[None, :, :, :]
        y = (lambda x, s, axes=(-2,-1): torch.fft.irfft2(x, s=s, dim=axes).to(torch.bfloat16))(y_f, (1, L), axes=(1, 2))[:, 0, :S, :]
        y = y + kv * ssm_D[None, None, :]
        return q * y

    def _B_ref(x, w_gate, w_up, w_down):
        g = torch.einsum("bsd,df->bsf", x, w_gate)
        u = torch.einsum("bsd,df->bsf", x, w_up)
        h = _gelu(g) * u
        return torch.einsum("bsf,fd->bsd", h, w_down)

    x = A_q
    h = x + _A_ref(_layernorm(x, axis=-1), A_k, A_v, A_shift_k, A_ssm_k, A_ssm_D)
    h2 = h + _B_ref(_layernorm(h, axis=-1), B_w_gate, B_w_up, B_w_down)
    return h2
```

```python
import struct
import sys

NAME = "sequential_preLN__ssm_conv_h3__glu_gated_geglu__prompt"

KA_Q, KA_K, KA_V, KA_SK, KA_HK, KA_D, KA_X, KA_WG, KA_WU, KA_WD, KA_OUT, KA_DBG, KA_WS = [8 * i for i in range(13)]

MB = 1 << 20
WS_Z = 0
WS_H = 4 * MB
WS_LN = 8 * MB
WS_HH = 12 * MB


def f32bits(x):
    return struct.unpack("<I", struct.pack("<f", x))[0]


class Asm:
    def __init__(self):
        self.lines = []

    def __call__(self, s):
        for ln in s.strip("\n").split("\n"):
            self.lines.append("  " + ln.strip())

    def label(self, l):
        self.lines.append(l + ":")

    def raw(self, s):
        self.lines.append(s)

    def text(self):
        return "\n".join(self.lines) + "\n"


def vr(b, n=1, p="v"):
    return f"{p}{b}" if n == 1 else f"{p}[{b}:{b + n - 1}]"


def ar(b, n=1):
    return vr(b, n, "a")


def sr(b, n=1):
    return vr(b, n, "s")


def srd(a, d, base, nbytes, off=None):
    if off is None:
        a(f"s_mov_b32 s{d}, s{base}")
        a(f"s_mov_b32 s{d + 1}, s{base + 1}")
    else:
        a(f"s_add_u32 s{d}, s{base}, {off}")
        a(f"s_addc_u32 s{d + 1}, s{base + 1}, 0")
    a(f"s_mov_b32 s{d + 2}, {nbytes}")
    a(f"s_mov_b32 s{d + 3}, 0x20000")


def kernel_begin(a, name, nwg):
    a.raw(f".globl {name}")
    a.raw(".p2align 8")
    a.raw(f".type {name},@function")
    a.label(name)
    a(f"s_cmp_ge_u32 s2, {nwg}")
    a(f"s_cbranch_scc1 L_{name}_end")


def kernel_end(a, name):
    a.label(f"L_{name}_end")
    a("s_endpgm")


def descriptor(name, vgprs, agprs, sgprs):
    acc = (vgprs + 3) // 4 * 4
    nfv = acc + agprs if agprs else vgprs
    return f""".amdhsa_kernel {name}
  .amdhsa_next_free_vgpr {nfv}
  .amdhsa_next_free_sgpr {sgprs}
  .amdhsa_accum_offset {acc}
  .amdhsa_group_segment_fixed_size 0
  .amdhsa_kernarg_size 104
  .amdhsa_user_sgpr_count 2
  .amdhsa_user_sgpr_kernarg_segment_ptr 1
  .amdhsa_system_sgpr_workgroup_id_x 1
  .amdhsa_float_denorm_mode_32 3
.end_amdhsa_kernel
"""


U_STRIDE = 4608
H_COPY = 4160
H_BASE = 4 * U_STRIDE
CONV_LDS = H_BASE + 4 * 2 * H_COPY


def gen_conv(a):
    name = "conv_kernel"
    kernel_begin(a, name, 256)
    a(f"""
    s_load_dwordx4 s[4:7], s[0:1], {KA_K}
    s_load_dwordx4 s[8:11], s[0:1], {KA_SK}
    s_load_dwordx2 s[12:13], s[0:1], {KA_D}
    s_load_dwordx2 s[14:15], s[0:1], {KA_WS}
    s_and_b32 s16, s2, 7
    s_lshl_b32 s16, s16, 7
    s_lshr_b32 s17, s2, 3
    s_lshl_b32 s17, s17, 2
    s_add_u32 s16, s16, s17                 ; s16 = d0
    v_lshrrev_b32 v1, 6, v0
    v_and_b32 v2, 63, v0                    ; v2 = lane
    v_readfirstlane_b32 s17, v1             ; s17 = wave
    s_lshl_b32 s18, s16, 3                  ; d0*8
    s_lshl_b32 s19, s16, 1                  ; d0*2
    s_waitcnt lgkmcnt(0)
    s_load_dwordx8 s[36:43], s[8:9], s18    ; shift_k[d0..d0+3][0..3]
    s_load_dwordx2 s[60:61], s[12:13], s19  ; ssm_D[d0..d0+3]
    """)
    srd(a, 20, 4, 4 * MB)
    srd(a, 24, 6, 4 * MB)
    srd(a, 28, 10, 4 * MB)
    srd(a, 32, 14, 4 * MB, off=WS_Z if WS_Z else None)
    a(f"""
    s_add_u32 s62, s16, s17
    s_lshl_b32 s62, s62, 12
    v_lshlrev_b32 v3, 4, v2
    """)
    HR = 100
    for i in range(4):
        a(f"buffer_load_dwordx4 {vr(HR + 8 * i, 4)}, v3, s[28:31], s62 offen offset:{1024 * i}")
        a(f"buffer_load_dword {vr(HR + 8 * i + 4)}, v3, s[28:31], s62 offen offset:{1024 * i + 16}")
    a(f"""
    v_lshlrev_b32 v4, 12, v0
    v_add_u32 v4, s19, v4
    v_subrev_u32 v7, {3 * 2048}, v4
    v_mov_b32 v6, 0x40000000
    v_cmp_eq_u32 vcc, 0, v2
    s_nop 1
    v_cndmask_b32 v5, v6, v4, vcc
    v_cndmask_b32 v7, v6, v7, vcc
    v_cmp_eq_u32 vcc, 0, v0
    s_nop 1
    v_cndmask_b32 v7, v7, v6, vcc
    s_mov_b32 s64, 0
    s_mov_b32 s65, {1 * MB}
    s_mov_b32 s66, {2 * MB}
    s_mov_b32 s67, {3 * MB}
    s_mov_b32 s68, 0
    s_mov_b32 s69, {1 * MB - 6144}
    s_mov_b32 s70, {2 * MB - 6144}
    s_mov_b32 s71, {3 * MB - 6144}
    s_mov_b32 s76, 4096
    s_mov_b32 s77, {1 * MB - 2048}
    s_mov_b32 s78, {2 * MB - 2048}
    s_mov_b32 s79, {3 * MB - 2048}
    """)
    RAW = [140, 156]

    def issue_q(q):
        b = RAW[q & 1]
        hv = "v7" if q == 0 else "v5"
        a(f"buffer_load_dwordx2 {vr(b + 0, 2)}, v4, s[20:23], s{64 + q} offen")
        a(f"buffer_load_dwordx2 {vr(b + 2, 2)}, v4, s[20:23], s{64 + q} offen offset:2048")
        a(f"buffer_load_dwordx2 {vr(b + 4, 2)}, v4, s[24:27], s{64 + q} offen")
        a(f"buffer_load_dwordx2 {vr(b + 6, 2)}, v4, s[24:27], s{64 + q} offen offset:2048")
        a(f"buffer_load_dwordx2 {vr(b + 8, 2)}, {hv}, s[20:23], s{68 + q} offen")
        a(f"buffer_load_dwordx2 {vr(b + 10, 2)}, {hv}, s[20:23], s{68 + q} offen offset:2048")
        a(f"buffer_load_dwordx2 {vr(b + 12, 2)}, {hv}, s[20:23], s{76 + q} offen")

    issue_q(0)
    a("s_barrier")
    issue_q(1)
    a("s_waitcnt lgkmcnt(0)")
    for j in range(4):
        for c in range(4):
            src = 36 + 2 * c + (j >> 1)
            dst = 44 + 4 * j + c
            if j & 1:
                a(f"s_and_b32 s{dst}, s{src}, 0xffff0000")
            else:
                a(f"s_lshl_b32 s{dst}, s{src}, 16")
    a(f"""
    s_cmp_ge_u32 s17, 2
    s_cselect_b32 s63, s61, s60
    s_lshl_b32 s72, s63, 16
    s_and_b32 s63, s63, 0xffff0000
    s_bitcmp1_b32 s17, 0
    s_cselect_b32 s63, s63, s72
    """)
    a(f"""
    s_mul_i32 s72, s17, {U_STRIDE}
    s_mul_i32 s73, s17, {2 * H_COPY}
    s_add_u32 s73, s73, {H_BASE}
    v_mov_b32 v8, 0
    v_mov_b32 v9, 0
    v_mov_b32 v10, 0
    v_mov_b32 v11, 0
    v_lshlrev_b32 v12, 3, v2
    v_add_u32 v12, s72, v12
    ds_write_b64 v12, v[8:9] offset:4096
    v_add_u32 v13, s73, v3
    s_waitcnt vmcnt(14)
    """)
    a(f"""
    v_readfirstlane_b32 s74, v{HR}
    v_and_b32 v14, 1, v2
    v_lshlrev_b32 v15, 4, v14
    v_add_u32 v15, s73, v15
    s_lshl_b32 s74, s74, 16
    v_mul_u32_u24 v16, 1, v14
    ds_write_b128 v15, v[8:11]
    v_mov_b32 v17, s74
    v_cmp_eq_u32 vcc, 1, v14
    v_mov_b32 v20, 0
    v_mov_b32 v21, 0
    v_mov_b32 v22, 0
    v_cndmask_b32 v23, 0, v17, vcc
    ds_write_b128 v15, v[20:23] offset:{H_COPY}
    """)
    for i in range(4):
        b = HR + 8 * i
        a(f"ds_write_b128 v13, {vr(b, 4)} offset:{32 + 1024 * i}")
        t = 24 + 4 * (i & 1)
        for d in range(4):
            a(f"v_alignbit_b32 v{t + d}, v{b + d + 1}, v{b + d}, 16")
        a(f"ds_write_b128 v13, {vr(t, 4)} offset:{H_COPY + 32 + 1024 * i}")
    a(f"""
    v_and_b32 v14, 15, v2                   ; a / i
    v_lshrrev_b32 v15, 4, v2                ; kq / q
    v_lshlrev_b32 v16, 4, v15
    v_lshl_add_u32 v16, v14, 1, v16         ; + 2a
    v_and_b32 v17, 1, v14
    v_cmp_eq_u32 vcc, 1, v17
    v_add_u32 v18, 2, v16
    v_add_u32 v19, {H_COPY}, v16
    v_cndmask_b32 v16, v19, v18, vcc
    v_add_u32 v16, s73, v16
    s_waitcnt lgkmcnt(0)
    """)
    for j in range(64):
        if j and j % 16 == 0:
            a("v_add_u32 v16, 1024, v16")
        o = (j % 16) * 16
        a(f"ds_read2_b32 {ar(4 * j, 2)}, v16 offset0:{o} offset1:{o + 1}")
        a(f"ds_read2_b32 {ar(4 * j + 2, 2)}, v16 offset0:{o + 2} offset1:{o + 3}")
    a(f"""
    v_lshlrev_b32 v17, 4, v15
    v_lshlrev_b32 v18, 5, v14
    v_sub_u32 v17, v17, v18
    v_add_u32 v17, 480, v17
    v_add_u32 v17, s72, v17
    """)
    a(f"""
    v_lshlrev_b32 v19, 3, v15
    v_add_u32 v19, v19, v18
    v_sub_u32 v18, {4088 - 3584}, v19
    v_add_u32 v18, s72, v18
    """)
    a(f"""
    v_lshlrev_b32 v19, 2, v0
    v_sub_u32 v19, {4092 - 3072}, v19
    """)
    a(f"""
    v_lshlrev_b32 v20, 15, v14              ; 2i*16384
    v_lshrrev_b32 v21, 1, v15
    v_lshlrev_b32 v21, 14, v21
    v_add_u32 v20, v20, v21
    v_and_b32 v21, 1, v15
    v_lshl_add_u32 v20, v21, 3, v20
    s_add_u32 s74, s16, s17
    s_lshl_b32 s74, s74, 4
    v_add_u32 v20, s74, v20
    """)
    ACC = 32
    for r in range(32):
        a(f"v_mov_b32 v{ACC + r}, 0")
    BF = [64, 68, 72, 76]
    KF = 176
    VF = 196
    KS = 204
    PK = 212

    def compute_q(q):
        b = RAW[q & 1]
        for d in range(2):
            a(f"v_mov_b32_dpp v{b + 12 + d}, v{b + 2 + d} wave_shr:1 row_mask:0xf bank_mask:0xf")
        for d in range(2):
            a(f"v_mov_b32_dpp v{b + 10 + d}, v{b + 0 + d} wave_shr:1 row_mask:0xf bank_mask:0xf")
        a("s_nop 0")
        for d in range(2):
            a(f"v_mov_b32_dpp v{b + 8 + d}, v{b + 12 + d} wave_shr:1 row_mask:0xf bank_mask:0xf")
        src = [b + 8, b + 10, b + 12, b + 0, b + 2]
        for r in [3, 4, 2, 1, 0]:
            for p in range(2):
                a(f"v_lshlrev_b32 v{KF + 4 * r + 2 * p}, 16, v{src[r] + p}")
                a(f"v_and_b32 v{KF + 4 * r + 2 * p + 1}, 0xffff0000, v{src[r] + p}")
        for r in range(2):
            for p in range(2):
                a(f"v_lshlrev_b32 v{VF + 4 * r + 2 * p}, 16, v{b + 4 + 2 * r + p}")
                a(f"v_and_b32 v{VF + 4 * r + 2 * p + 1}, 0xffff0000, v{b + 4 + 2 * r + p}")
        for j in range(4):
            for r in range(2):
                for p in range(2):
                    kreg = vr(KF + 4 * (3 + r - j) + 2 * p, 2)
                    w = sr(44 + 4 * j + 2 * p, 2)
                    d = vr(KS + 4 * r + 2 * p, 2)
                    if j == 0:
                        a(f"v_pk_mul_f32 {d}, {kreg}, {w}")
                    else:
                        a(f"v_pk_fma_f32 {d}, {kreg}, {w}, {d}")
        for r in range(2):
            for p in range(2):
                d = vr(KS + 4 * r + 2 * p, 2)
                a(f"v_pk_mul_f32 {d}, {d}, {vr(VF + 4 * r + 2 * p, 2)}")
        for c in range(4):
            a(f"v_cvt_pk_bf16_f32 v{PK + c}, v{KS + 4 + c}, v{KS + c}")
        for c in range(4):
            a(f"ds_write_b32 v19, v{PK + c} offset:{3072 - 1024 * q + c * U_STRIDE}")

    def mfma_e(e):
        seq = [(jp) for jp in range(8)]
        def rd(jp):
            a(f"ds_read_b128 {vr(BF[jp & 3], 4)}, v17 offset:{3584 - 512 * e + 64 * jp}")
        for jp in range(3):
            rd(jp)
        for jp in seq:
            if jp + 3 < 8:
                rd(jp + 3)
                a("s_waitcnt lgkmcnt(3)")
            else:
                a(f"s_waitcnt lgkmcnt({7 - jp})")
            for m in range(8 - e):
                acc = vr(ACC + 4 * (e + m), 4)
                a(f"v_mfma_f32_16x16x32_bf16 {acc}, {ar(4 * (jp + 8 * m), 4)}, {vr(BF[jp & 3], 4)}, {acc}")

    def epilogue_c(c):
        t = 80 + 8 * (c & 1)
        a(f"ds_read_b64 {vr(t, 2)}, v18 offset:{3584 - 512 * c}")
        a("s_waitcnt lgkmcnt(0)")
        a(f"v_and_b32 v{t + 2}, 0xffff0000, v{t + 1}")
        a(f"v_lshlrev_b32 v{t + 3}, 16, v{t + 1}")
        a(f"v_and_b32 v{t + 4}, 0xffff0000, v{t}")
        a(f"v_lshlrev_b32 v{t + 5}, 16, v{t}")
        for r in range(4):
            a(f"v_fma_f32 v{t + 2 + r}, v{t + 2 + r}, s63, v{ACC + 4 * c + r}")
        a(f"v_cvt_pk_bf16_f32 v{t}, v{t + 2}, v{t + 3}")
        a(f"v_cvt_pk_bf16_f32 v{t + 1}, v{t + 4}, v{t + 5}")
        a(f"s_mov_b32 s75, {c * 32 * 16384}")
        a(f"buffer_store_dwordx2 {vr(t, 2)}, v20, s[32:35], s75 offen")

    stores = 0
    for q in range(4):
        if q == 0:
            a("s_waitcnt vmcnt(7)")
        elif q == 1:
            a("s_waitcnt vmcnt(7)")
        elif q == 2:
            a("s_waitcnt vmcnt(9)")
        else:
            a("s_waitcnt vmcnt(4)")
        compute_q(q)
        if q + 2 < 4:
            issue_q(q + 2)
        a("s_waitcnt lgkmcnt(0)")
        a("s_barrier")
        mfma_e(2 * q)
        if q > 0:
            epilogue_c(2 * q - 2)
            epilogue_c(2 * q - 1)
        mfma_e(2 * q + 1)
    a("s_nop 7")
    epilogue_c(6)
    epilogue_c(7)
    kernel_end(a, name)
    return name, descriptor(name, 256, 256, 96), (256, 256, CONV_LDS)


LN_LDS = 16384 + 512


def bf16_round(a, v, tmp=None):
    a(f"v_cvt_pk_bf16_f32 {v}, {v}, {v}")
    a(f"v_and_b32 {v}, 0xffff0000, {v}")


def gen_ln(a):
    name = "ln_kernel"
    kernel_begin(a, name, 256)
    a(f"""
    s_load_dwordx2 s[4:5], s[0:1], {KA_Q}
    s_load_dwordx2 s[6:7], s[0:1], {KA_WS}
    v_lshrrev_b32 v1, 6, v0
    v_and_b32 v2, 63, v0                    ; lane
    v_readfirstlane_b32 s17, v1             ; wave
    v_and_b32 v3, 7, v2                     ; r
    v_lshrrev_b32 v4, 3, v2                 ; o
    s_waitcnt lgkmcnt(0)
    """)
    srd(a, 8, 4, 4 * MB)
    srd(a, 12, 6, 4 * MB)
    srd(a, 20, 6, 4 * MB, off=WS_H)
    srd(a, 24, 6, 4 * MB, off=WS_LN)
    a(f"""
    s_lshl_b32 s18, s2, 14
    s_lshl_b32 s19, s17, 12
    s_add_u32 s18, s18, s19
    v_lshlrev_b32 v5, 4, v2
    s_mov_b32 m0, s19
    s_nop 0
    buffer_load_dwordx4 v5, s[12:15], s18 offen lds
    buffer_load_dwordx4 v5, s[12:15], s18 offen offset:1024 lds
    buffer_load_dwordx4 v5, s[12:15], s18 offen offset:2048 lds
    buffer_load_dwordx4 v5, s[12:15], s18 offen offset:3072 lds
    """)
    a(f"""
    v_lshlrev_b32 v6, 11, v3
    v_lshl_add_u32 v6, v4, 4, v6
    s_lshl_b32 s18, s2, 14
    s_lshl_b32 s19, s17, 9
    s_add_u32 s18, s18, s19
    """)
    QR = 16
    for it in range(4):
        a(f"buffer_load_dwordx4 {vr(QR + 4 * it, 4)}, v6, s[8:11], s18 offen offset:{128 * it}")
    a(f"""
    v_lshrrev_b32 v7, 4, v2
    v_lshlrev_b32 v7, 8, v7                 ; (l>>4)*256
    v_bfe_u32 v8, v2, 1, 1
    v_lshl_add_u32 v7, v8, 7, v7
    v_bfe_u32 v8, v2, 2, 2
    v_lshl_add_u32 v7, v8, 4, v7
    v_and_b32 v8, 1, v2
    v_lshl_add_u32 v7, v8, 3, v7
    s_lshl_b32 s19, s17, 12
    v_add_u32 v7, s19, v7
    """)
    a(f"""
    v_lshlrev_b32 v9, 5, v3
    v_add_u32 v9, 16384, v9
    s_lshl_b32 s19, s17, 3
    v_add_u32 v10, s19, v9
    """)
    XF = 32
    ZR = 64
    ZF = 80
    a("s_waitcnt vmcnt(0)")
    for it in range(4):
        for half in range(2):
            a(f"ds_read_b64_tr_b16 {vr(ZR + 4 * it + 2 * half, 2)}, v7 offset:{it * 1024 + half * 64}")
    for i in range(16):
        a(f"v_lshlrev_b32 v{XF + 2 * i}, 16, v{QR + i}")
        a(f"v_and_b32 v{XF + 2 * i + 1}, 0xffff0000, v{QR + i}")

    def stats(src, rnd):
        a(f"v_pk_add_f32 v[112:113], {vr(src, 2)}, {vr(src + 2, 2)}")
        a(f"v_pk_mul_f32 v[114:115], {vr(src, 2)}, {vr(src, 2)}")
        a(f"v_pk_fma_f32 v[114:115], {vr(src + 2, 2)}, {vr(src + 2, 2)}, v[114:115]")
        for i in range(2, 16):
            a(f"v_pk_add_f32 v[112:113], v[112:113], {vr(src + 2 * i, 2)}")
            a(f"v_pk_fma_f32 v[114:115], {vr(src + 2 * i, 2)}, {vr(src + 2 * i, 2)}, v[114:115]")
        a(f"""
        v_add_f32 v12, v112, v113
        v_add_f32 v13, v114, v115
        s_nop 1
        v_add_f32_dpp v12, v12, v12 row_ror:8 row_mask:0xf bank_mask:0xf
        v_add_f32_dpp v13, v13, v13 row_ror:8 row_mask:0xf bank_mask:0xf
        v_mov_b32 v14, v12
        v_mov_b32 v15, v13
        s_nop 1
        v_permlane16_swap_b32 v12, v14
        v_permlane16_swap_b32 v13, v15
        s_nop 1
        v_add_f32 v12, v12, v14
        v_add_f32 v13, v13, v15
        v_mov_b32 v14, v12
        v_mov_b32 v15, v13
        s_nop 1
        v_permlane32_swap_b32 v12, v14
        v_permlane32_swap_b32 v13, v15
        s_nop 1
        v_add_f32 v12, v12, v14
        v_add_f32 v13, v13, v15
        ds_write_b64 v10, v[12:13] offset:{256 * rnd}
        s_waitcnt lgkmcnt(0)
        s_barrier
        ds_read_b128 v[112:115], v9 offset:{256 * rnd}
        ds_read_b128 v[116:119], v9 offset:{256 * rnd + 16}
        s_waitcnt lgkmcnt(0)
        v_pk_add_f32 v[112:113], v[112:113], v[114:115]
        v_pk_add_f32 v[116:117], v[116:117], v[118:119]
        v_pk_add_f32 v[112:113], v[112:113], v[116:117]
        v_mul_f32 v12, {hex(f32bits(1.0 / 1024))}, v112      ; mean
        v_mul_f32 v13, {hex(f32bits(1.0 / 1024))}, v113      ; E[x^2]
        v_fma_f32 v13, -v12, v12, v13                        ; var
        v_max_f32 v13, 0, v13
        """)
        bf16_round(a, "v12")
        bf16_round(a, "v13")
        a(f"v_add_f32 v13, {hex(f32bits(1e-5))}, v13")
        bf16_round(a, "v13")
        a("v_sqrt_f32 v13, v13")
        a("s_nop 0")
        bf16_round(a, "v13")
        a("v_rcp_f32 v13, v13")
        a("s_nop 0")

    stats(XF, 0)
    for i in range(16):
        a(f"v_lshlrev_b32 v{ZF + 2 * i}, 16, v{ZR + i}")
        a(f"v_and_b32 v{ZF + 2 * i + 1}, 0xffff0000, v{ZR + i}")
    a("v_mul_f32 v14, v12, v13")
    a("v_sub_f32 v14, 0, v14")
    a("v_mov_b32 v15, v14")
    a("v_mov_b32 v12, v13")
    for i in range(16):
        x = vr(XF + 2 * i, 2)
        z = vr(ZF + 2 * i, 2)
        a(f"v_pk_fma_f32 v[112:113], {x}, v[12:13], v[14:15]")
        a(f"v_pk_fma_f32 {z}, v[112:113], {z}, {x}")
        a(f"v_cvt_pk_bf16_f32 v{QR + i}, v{ZF + 2 * i}, v{ZF + 2 * i + 1}")
    a(f"""
    v_lshlrev_b32 v6, 9, v4
    v_lshl_add_u32 v6, v3, 4, v6
    s_lshr_b32 s18, s2, 2
    s_lshl_b32 s18, s18, 16
    s_and_b32 s19, s2, 3
    s_lshl_b32 s19, s19, 7
    s_add_u32 s18, s18, s19
    s_lshl_b32 s19, s17, 14
    s_add_u32 s18, s18, s19
    """)
    for it in range(4):
        a(f"buffer_store_dwordx4 {vr(QR + 4 * it, 4)}, v6, s[20:23], s18 offen")
        if it < 3:
            a("s_add_u32 s18, s18, 4096")
    for i in range(16):
        a(f"v_lshlrev_b32 v{XF + 2 * i}, 16, v{QR + i}")
        a(f"v_and_b32 v{XF + 2 * i + 1}, 0xffff0000, v{QR + i}")
    stats(XF, 1)
    a("v_mul_f32 v14, v12, v13")
    a("v_sub_f32 v14, 0, v14")
    a("v_mov_b32 v15, v14")
    a("v_mov_b32 v12, v13")
    for i in range(16):
        x = vr(XF + 2 * i, 2)
        a(f"v_pk_fma_f32 {x}, {x}, v[12:13], v[14:15]")
        a(f"v_cvt_pk_bf16_f32 v{ZR + i}, v{XF + 2 * i}, v{XF + 2 * i + 1}")
    a(f"""
    v_lshrrev_b32 v6, 1, v4
    v_lshlrev_b32 v6, 11, v6
    v_and_b32 v7, 1, v4
    v_lshl_add_u32 v6, v7, 9, v6
    v_lshl_add_u32 v6, v3, 4, v6
    s_lshr_b32 s18, s2, 3
    s_lshl_b32 s18, s18, 17
    s_bfe_u32 s19, s2, 0x10002
    s_lshl_b32 s19, s19, 10
    s_add_u32 s18, s18, s19
    s_and_b32 s19, s2, 3
    s_lshl_b32 s19, s19, 7
    s_add_u32 s18, s18, s19
    s_lshl_b32 s19, s17, 15
    s_add_u32 s18, s18, s19
    """)
    for it in range(4):
        a(f"buffer_store_dwordx4 {vr(ZR + 4 * it, 4)}, v6, s[24:27], s18 offen")
        if it < 3:
            a("s_add_u32 s18, s18, 8192")
    kernel_end(a, name)
    return name, descriptor(name, 120, 0, 40), (256, 256, LN_LDS)


def gemm_loop(a, tag, NST, DEPTH, RING, STAGE, KADV, dma_loads, wread_ops, mfmas, addr_update, AF, init_acc):
    UN = DEPTH // 4
    assert NST % UN == 0
    LDS = STAGE * RING
    nd = sum(1 for x in dma_loads if x.startswith("buffer"))

    def dma_ops():
        ops = [[x] for x in dma_loads]
        ops.append([f"s_add_u32 s34, s34, {KADV}", f"s_add_u32 s35, s35, {STAGE}"])
        ops.append([f"s_cmp_ge_u32 s35, {LDS}", "s_cselect_b32 s35, s33, s35"])
        return ops

    def act_ops(slot):
        b = AF + 8 * slot
        return [[f"buffer_load_dwordx4 {ar(b, 4)}, v15, s[28:31], s36 offen"],
                [f"buffer_load_dwordx4 {ar(b + 4, 4)}, v15, s[28:31], s36 offen offset:1024",
                 "s_add_u32 s36, s36, 2048"]]

    order = []

    def cnt_after(t):
        idx = max(i for i, x in enumerate(order) if x == t)
        return len(order) - 1 - idx

    def emit_flat(ops):
        for op in ops:
            for x in op:
                a(x)
                if " m0," in x:
                    a("s_nop 0")

    a("s_mov_b32 s34, 0")
    a("s_mov_b32 s35, s33")
    a("s_mov_b32 s36, 0")
    na = 0
    for st in range(RING):
        lim = min(4 * (st - RING) + 2 + DEPTH, DEPTH - 2)
        while na <= lim:
            emit_flat(act_ops(na))
            order += [("A", na)] * 2
            na += 1
        emit_flat(dma_ops())
        order += [("W", st)] * nd
    while na <= DEPTH - 2:
        emit_flat(act_ops(na))
        order += [("A", na)] * 2
        na += 1
    init_acc()
    a(f"s_waitcnt vmcnt({cnt_after(('W', 0))})")
    a("s_barrier")
    a("s_mov_b32 s37, 0")
    emit_flat(addr_update())
    a(f"s_mov_b32 s37, {STAGE}")
    emit_flat(wread_ops(0, 0))
    a(f"s_mov_b32 s38, {NST // UN}")

    def body(it, waits, emit):
        for us in range(UN):
            st = it * UN + us
            for j in range(4):
                g = 4 * st + j
                buf = g & 1
                wv = cnt_after(("A", g))
                if j == 3:
                    wv = min(wv, cnt_after(("W", st + 1)))
                k = 4 * us + j
                waits[k] = min(waits.get(k, 63), wv)
                fill = []
                if j == 3:
                    fill += addr_update()
                    fill += wread_ops(buf ^ 1, 0)
                    fill.append([f"s_add_u32 s37, s37, {STAGE}", f"s_cmp_ge_u32 s37, {LDS}", "s_cselect_b32 s37, 0, s37"])
                else:
                    fill += wread_ops(buf ^ 1, j + 1)
                fill += act_ops((g - 1) % DEPTH)
                order.extend([("A", g - 1 + DEPTH)] * 2)
                if j == 3:
                    fill += dma_ops()
                    order.extend([("W", st + RING)] * nd)
                if emit:
                    a(f"s_waitcnt vmcnt({waits[k]}) lgkmcnt(0)")
                    if j == 3:
                        a("s_barrier")
                    mf = mfmas(buf, AF + 8 * (g % DEPTH))
                    n = len(mf)
                    per = -(-len(fill) // n)
                    per = max(per, 2)
                    fi = 0
                    for i, m in enumerate(mf):
                        a(m)
                        take = per if i < n - 1 else len(fill) - fi
                        for op in fill[fi:fi + take]:
                            for x in op:
                                a(x)
                                if " m0," in x:
                                    a("s_nop 0")
                        fi += take

    waits = {}
    saved = list(order)
    for it in range(NST // UN):
        body(it, waits, False)
    assert max(waits.values()) <= 63
    order[:] = saved
    a.raw(".p2align 6")
    a.label(f"L_{tag}_loop")
    body(0, waits, True)
    a("s_sub_u32 s38, s38, 1")
    a("s_cmp_lg_u32 s38, 0")
    a(f"s_cbranch_scc1 L_{tag}_loop")


G1_UPOFF = 14336 + 128
G1_STAGE = G1_UPOFF + 14336
G1_RING = 5


def gen_gemm1(a, DEPTH=16):
    name = "gemm1_kernel"
    kernel_begin(a, name, 256)
    a(f"""
    s_load_dwordx4 s[4:7], s[0:1], {KA_WG}
    s_load_dwordx2 s[8:9], s[0:1], {KA_WS}
    v_lshrrev_b32 v1, 6, v0
    v_and_b32 v2, 63, v0
    v_readfirstlane_b32 s17, v1             ; wave
    s_lshr_b32 s18, s2, 5                   ; mt
    s_and_b32 s19, s2, 7
    s_lshl_b32 s19, s19, 2
    s_bfe_u32 s20, s2, 0x20003
    s_add_u32 s19, s19, s20                 ; nt
    s_waitcnt lgkmcnt(0)
    s_cmp_ge_u32 s17, 2
    s_cselect_b32 s24, s6, s4
    s_cselect_b32 s25, s7, s5
    s_mov_b32 s26, {1024 * 3584 * 2}
    s_mov_b32 s27, 0x20000
    s_lshl_b32 s20, s18, 2
    s_add_u32 s20, s20, s17                 ; m64 block
    s_lshl_b32 s21, s20, 17
    s_add_u32 s21, s21, {WS_LN}
    s_add_u32 s28, s8, s21
    s_addc_u32 s29, s9, 0
    s_mov_b32 s30, 131072
    s_mov_b32 s31, 0x20000
    """)
    srd(a, 40, 8, 2048 * 3584 * 2, off=WS_HH)
    ACC = 32
    a(f"""
    s_mul_i32 s21, s19, 224
    s_and_b32 s22, s17, 1
    s_mul_i32 s23, s22, {32 * 7168}
    s_add_u32 s21, s21, s23
    s_mov_b32 s23, {(1 << 20) // 14 + 1}
    s_movk_i32 s32, 7168
    """)
    for i in range(7):
        a(f"""
        v_add_u32 v3, {64 * i}, v2
        v_mul_lo_u32 v4, v3, s23
        v_lshrrev_b32 v4, 20, v4
        v_mul_u32_u24 v5, 14, v4
        v_sub_u32 v5, v3, v5
        v_mul_lo_u32 v4, v4, s32
        v_lshl_add_u32 v4, v5, 4, v4
        v_add_u32 v4, s21, v4
        v_subrev_u32 v{8 + i}, {1024 * (i % 4)}, v4
        """)
    a(f"""
    s_lshr_b32 s33, s17, 1
    s_mul_i32 s33, s33, {G1_UPOFF}
    s_mul_i32 s22, s22, 7168
    s_add_u32 s33, s33, s22
    v_lshlrev_b32 v15, 4, v2
    v_bfe_u32 v3, v2, 4, 1
    v_mul_u32_u24 v16, {G1_UPOFF}, v3
    v_lshrrev_b32 v3, 5, v2
    v_lshlrev_b32 v3, 3, v3
    v_bfe_u32 v4, v2, 2, 2
    v_add_u32 v3, v3, v4
    v_mul_u32_u24 v3, 224, v3
    v_add_u32 v16, v16, v3
    v_and_b32 v3, 1, v2
    v_lshl_add_u32 v16, v3, 4, v16
    v_bfe_u32 v3, v2, 1, 1
    v_lshl_add_u32 v16, v3, 3, v16
    """)
    WF = [0, 28]
    AF = 56
    dma = ["s_mov_b32 m0, s35"]
    dma += [f"buffer_load_dwordx4 v{8 + i}, s[24:27], s34 offen offset:{1024 * i} lds" for i in range(4)]
    dma += ["s_add_u32 m0, s35, 4096"]
    dma += [f"buffer_load_dwordx4 v{8 + i}, s[24:27], s34 offen offset:{1024 * (i - 4)} lds" for i in range(4, 7)]

    def wread_ops(buf, sub):
        return [[f"ds_read_b64_tr_b16 {ar(WF[buf] + 4 * t + 2 * rd, 2)}, v17 offset:{(16 * sub + 4 * rd) * 224 + 32 * t}"]
                for t in range(7) for rd in range(2)]

    def mfmas(buf, af):
        out = []
        for t in range(7):
            for mb in range(2):
                acc = vr(ACC + 16 * (2 * t + mb), 16)
                out.append(f"v_mfma_f32_32x32x16_bf16 {acc}, {ar(WF[buf] + 4 * t, 4)}, {ar(af + 4 * mb, 4)}, {acc}")
        return out

    def addr_update():
        return [["v_add_u32 v17, s37, v16"]]

    def init_acc():
        for r in range(224):
            a(f"v_mov_b32 v{ACC + r}, 0")

    gemm_loop(a, "g1", 16, DEPTH, G1_RING, G1_STAGE, 64 * 7168, dma, wread_ops, mfmas, addr_update, AF, init_acc)
    c = 0.7978845608028654
    k0 = -2.0 * c * 1.4426950408889634
    k1 = k0 * 0.044715
    a(f"""
    s_mov_b32 s44, {hex(f32bits(k1))}
    s_mov_b32 s45, {hex(f32bits(k1))}
    v_mov_b32 v4, {hex(f32bits(k0))}
    v_mov_b32 v5, {hex(f32bits(k0))}
    s_lshl_b32 s21, s20, 1
    s_mul_i32 s21, s21, {224 * 1024}
    s_mul_i32 s22, s19, {7 * 1024}
    s_add_u32 s21, s21, s22
    s_add_u32 s22, s21, {224 * 1024}
    s_nop 7
    """)
    T = 16
    for t in range(7):
        for mb in range(2):
            C = ACC + 16 * (2 * t + mb)
            g = [vr(C + 2 * p, 2) for p in range(4)]
            u = [vr(C + 8 + 2 * p, 2) for p in range(4)]
            tt = [vr(T + 2 * p, 2) for p in range(4)]
            for p in range(4):
                a(f"v_pk_mul_f32 {tt[p]}, {g[p]}, {g[p]}")
            for p in range(4):
                a(f"v_pk_fma_f32 {tt[p]}, {tt[p]}, s[44:45], v[4:5]")
            for p in range(4):
                a(f"v_pk_mul_f32 {tt[p]}, {tt[p]}, {g[p]}")
            for i in range(8):
                a(f"v_exp_f32 v{T + i}, v{T + i}")
            for p in range(4):
                a(f"v_pk_mul_f32 {u[p]}, {u[p]}, {g[p]}")
            for p in range(4):
                a(f"v_pk_add_f32 {tt[p]}, {tt[p]}, 1.0 op_sel_hi:[1,0]")
            for i in range(8):
                a(f"v_rcp_f32 v{T + i}, v{T + i}")
            a("s_nop 0")
            for p in range(4):
                a(f"v_pk_mul_f32 {u[p]}, {u[p]}, {tt[p]}")
            for p in range(4):
                a(f"v_cvt_pk_bf16_f32 v{C + p}, v{C + 8 + 2 * p}, v{C + 9 + 2 * p}")
            so = "s21" if mb == 0 else "s22"
            if t < 4:
                a(f"buffer_store_dwordx4 {vr(C, 4)}, v15, s[40:43], {so} offen offset:{1024 * t}")
            else:
                if t == 4:
                    a(f"s_add_u32 {so}, {so}, 4096")
                a(f"buffer_store_dwordx4 {vr(C, 4)}, v15, s[40:43], {so} offen offset:{1024 * (t - 4)}")
    kernel_end(a, name)
    return name, descriptor(name, 256, AF + 8 * DEPTH, 64), (256, 256, G1_STAGE * G1_RING)


G2_STAGE = 16384
G2_RING = 5


def gen_gemm2(a, DEPTH=16):
    name = "gemm2_kernel"
    kernel_begin(a, name, 256)
    a(f"""
    s_load_dwordx4 s[4:7], s[0:1], {KA_WD}
    s_load_dwordx2 s[8:9], s[0:1], {KA_WS}
    v_lshrrev_b32 v1, 6, v0
    v_and_b32 v2, 63, v0
    v_readfirstlane_b32 s17, v1             ; wave
    s_bfe_u32 s18, s2, 0x20001
    s_lshl_b32 s18, s18, 2
    s_lshr_b32 s20, s2, 6
    s_add_u32 s18, s18, s20                 ; mt
    s_and_b32 s19, s2, 1
    s_lshl_b32 s19, s19, 3
    s_bfe_u32 s20, s2, 0x30003
    s_add_u32 s19, s19, s20                 ; nt
    s_lshl_b32 s20, s18, 2
    s_add_u32 s20, s20, s17
    s_mul_i32 s21, s20, {224 * 1024}
    s_add_u32 s21, s21, {WS_HH}
    s_waitcnt lgkmcnt(0)
    s_add_u32 s28, s8, s21
    s_addc_u32 s29, s9, 0
    s_mov_b32 s30, {224 * 1024}
    s_mov_b32 s31, 0x20000
    """)
    srd(a, 24, 4, 3584 * 1024 * 2)
    srd(a, 40, 6, 4 * MB)
    srd(a, 44, 8, 4 * MB, off=WS_H)
    ACC = 32
    HR = 64
    a(f"""
    v_lshrrev_b32 v3, 3, v2
    v_lshlrev_b32 v3, 11, v3
    v_bfe_u32 v4, v2, 4, 1
    v_lshlrev_b32 v4, 2, v4
    v_and_b32 v5, 7, v2
    v_xor_b32 v4, v4, v5
    v_lshl_add_u32 v3, v4, 4, v3
    s_lshl_b32 s21, s19, 7
    s_lshl_b32 s22, s17, 16
    s_add_u32 s21, s21, s22
    v_add_u32 v8, s21, v3
    v_add_u32 v9, {16384 - 1024}, v8
    v_add_u32 v10, {16384 - 1024}, v9
    v_add_u32 v11, {16384 - 1024}, v10
    s_lshl_b32 s33, s17, 12
    v_lshlrev_b32 v15, 4, v2
    """)
    a(f"""
    s_lshl_b32 s21, s20, 16
    s_lshl_b32 s22, s19, 12
    s_add_u32 s21, s21, s22
    """)
    for i in range(4):
        a(f"buffer_load_dwordx4 {vr(HR + 4 * i, 4)}, v15, s[44:47], s21 offen offset:{1024 * i}")
    a(f"""
    v_lshrrev_b32 v3, 5, v2
    v_lshlrev_b32 v3, 3, v3
    v_bfe_u32 v4, v2, 2, 2
    v_add_u32 v3, v3, v4
    v_lshlrev_b32 v16, 7, v3
    v_bfe_u32 v3, v2, 4, 1
    v_lshl_add_u32 v16, v3, 5, v16
    v_and_b32 v3, 1, v2
    v_lshl_add_u32 v16, v3, 4, v16
    v_bfe_u32 v3, v2, 1, 1
    v_lshl_add_u32 v16, v3, 3, v16
    v_bfe_u32 v3, v2, 3, 1
    v_lshl_add_u32 v16, v3, 6, v16
    v_xor_b32 v17, 64, v16
    """)
    WF = [0, 16]
    AF = 32
    dma = ["s_mov_b32 m0, s35"]
    dma += [f"buffer_load_dwordx4 v{8 + i}, s[24:27], s34 offen offset:{1024 * i} lds" for i in range(4)]

    def wread_ops(buf, sub):
        return [[f"ds_read_b64_tr_b16 {ar(WF[buf] + 8 * kk + 4 * t + 2 * rd, 2)}, v{18 + t} offset:{(32 * sub + 16 * kk + 4 * rd) * 128}"]
                for kk in range(2) for t in range(2) for rd in range(2)]

    def mfmas(buf, af):
        out = []
        for kk in range(2):
            for t in range(2):
                acc = vr(ACC + 16 * t, 16)
                out.append(f"v_mfma_f32_32x32x16_bf16 {acc}, {ar(WF[buf] + 8 * kk + 4 * t, 4)}, {ar(af + 4 * kk, 4)}, {acc}")
        return out

    def addr_update():
        return [["v_add_u32 v18, s37, v16", "v_add_u32 v19, s37, v17"]]

    def init_acc():
        for r in range(32):
            a(f"v_mov_b32 v{ACC + r}, 0")

    gemm_loop(a, "g2", 28, DEPTH, G2_RING, G2_STAGE, 128 * 2048, dma, wread_ops, mfmas, addr_update, AF, init_acc)
    a(f"""
    v_and_b32 v3, 31, v2
    v_lshlrev_b32 v3, 11, v3
    v_lshrrev_b32 v4, 5, v2
    v_lshl_add_u32 v3, v4, 4, v3
    s_lshl_b32 s21, s20, 16
    s_lshl_b32 s22, s19, 7
    s_add_u32 s21, s21, s22
    s_nop 7
    s_nop 7
    """)
    for g in range(4):
        C = ACC + 8 * g
        for p in range(4):
            a(f"v_cvt_pk_bf16_f32 v20, v{C + 2 * p}, v{C + 2 * p + 1}")
            a(f"v_lshlrev_b32 v22, 16, v{HR + 4 * g + p}")
            a(f"v_and_b32 v23, 0xffff0000, v{HR + 4 * g + p}")
            a(f"v_and_b32 v21, 0xffff0000, v20")
            a(f"v_lshlrev_b32 v20, 16, v20")
            a(f"v_pk_add_f32 v[20:21], v[20:21], v[22:23]")
            a(f"v_cvt_pk_bf16_f32 v{HR + 4 * g + p}, v20, v21")
        a(f"buffer_store_dwordx4 {vr(HR + 4 * g, 4)}, v3, s[40:43], s21 offen offset:{32 * g}")
    kernel_end(a, name)
    return name, descriptor(name, 80, AF + 8 * DEPTH, 64), (256, 256, G2_STAGE * G2_RING)


HEADER = open("cdna_kernels/" + NAME + ".s.ref").read().split("; Override launch")[0]


def main():
    out = sys.argv[1] if len(sys.argv) > 1 else f"cdna_kernels/{NAME}.s"
    a = Asm()
    ks = [gen_conv(a), gen_ln(a), gen_gemm1(a), gen_gemm2(a)]
    s = HEADER
    for name, _, (g, b, lds) in ks:
        s += f"; @launch kernel={name} grid=({g},1,1) block=({b},1,1) lds={lds}\n"
    s += '.amdgcn_target "amdgcn-amd-amdhsa--gfx950"\n.text\n'
    s += a.text()
    s += '.section .rodata,"a"\n'
    for name, d, _ in ks:
        s += ".p2align 6\n" + d
    open(out, "w").write(s)


if __name__ == "__main__":
    main()
```

```python
import struct
import sys

NAME = "sequential_preLN__ssm_conv_h3__glu_gated_geglu__prompt"

KA_Q, KA_K, KA_V, KA_SK, KA_HK, KA_D, KA_X, KA_WG, KA_WU, KA_WD, KA_OUT, KA_DBG, KA_WS = [8 * i for i in range(13)]

MB = 1 << 20
WS_Z = 0
WS_H = 4 * MB
WS_LN = 8 * MB
WS_HH = 12 * MB


def f32bits(x):
    return struct.unpack("<I", struct.pack("<f", x))[0]


class Asm:
    def __init__(self):
        self.lines = []

    def __call__(self, s):
        for ln in s.strip("\n").split("\n"):
            self.lines.append("  " + ln.strip())

    def label(self, l):
        self.lines.append(l + ":")

    def raw(self, s):
        self.lines.append(s)

    def text(self):
        return "\n".join(self.lines) + "\n"


def vr(b, n=1, p="v"):
    return f"{p}{b}" if n == 1 else f"{p}[{b}:{b + n - 1}]"


def ar(b, n=1):
    return vr(b, n, "a")


def sr(b, n=1):
    return vr(b, n, "s")


def srd(a, d, base, nbytes, off=None):
    if off is None:
        a(f"s_mov_b32 s{d}, s{base}")
        a(f"s_mov_b32 s{d + 1}, s{base + 1}")
    else:
        a(f"s_add_u32 s{d}, s{base}, {off}")
        a(f"s_addc_u32 s{d + 1}, s{base + 1}, 0")
    a(f"s_mov_b32 s{d + 2}, {nbytes}")
    a(f"s_mov_b32 s{d + 3}, 0x20000")


PROF = False
import os
OPT = dict(x.split("=") for x in os.environ.get("GOPT", "").split(",") if x)


def opt(k, d):
    v = OPT.get(k)
    if v is None:
        return d
    return type(d)(v) if d is not None and not isinstance(d, str) else v


NTW1 = opt("ntw1", "nt").replace("-", "")
NTW2 = opt("ntw2", "nt").replace("-", "")
STH = opt("sth", "").replace("-", "").replace("+", " ")
STL = opt("stl", "").replace("-", "").replace("+", " ")
STZ = opt("stz", "").replace("-", "").replace("+", " ")
NTA = opt("nta", "").replace("-", "")
NTI = 'nt'
PROF_BASE = 48 * MB
ST0 = 80


def stamp(a, i, real=False):
    if not PROF:
        return
    a(f"{'s_memrealtime' if real else 's_memtime'} s[{ST0 + 2 * i}:{ST0 + 2 * i + 1}]")
    a("s_waitcnt lgkmcnt(0)")


def stamp_flush(a, kidx, n):
    if not PROF:
        return
    a("s_waitcnt vmcnt(0) lgkmcnt(0)")
    stamp(a, n - 2)
    stamp(a, n - 1, real=True)
    a(f"s_load_dwordx2 s[4:5], s[0:1], {KA_WS}")
    a("s_waitcnt lgkmcnt(0)")
    srd(a, 8, 4, 1 * MB, off=PROF_BASE + kidx * MB)
    a("s_lshl_b32 s6, s2, 2")
    a("s_add_u32 s6, s6, s17")
    a("s_lshl_b32 s6, s6, 6")
    a("v_mov_b32 v1, 0")
    for i in range(n):
        a(f"v_mov_b32 v2, s{ST0 + 2 * i}")
        a(f"buffer_store_dword v2, v1, s[8:11], s6 offen offset:{4 * i}")
    a("s_waitcnt vmcnt(0)")


def kernel_begin(a, name, nwg):
    a.raw(f".globl {name}")
    a.raw(".p2align 8")
    a.raw(f".type {name},@function")
    a.label(name)
    a(f"s_cmp_ge_u32 s2, {nwg}")
    a(f"s_cbranch_scc1 L_{name}_end")
    stamp(a, 0, real=True)
    stamp(a, 1)


def kernel_end(a, name):
    a.label(f"L_{name}_end")
    a("s_endpgm")


def descriptor(name, vgprs, agprs, sgprs):
    acc = (vgprs + 3) // 4 * 4
    nfv = acc + agprs if agprs else vgprs
    return f""".amdhsa_kernel {name}
  .amdhsa_next_free_vgpr {nfv}
  .amdhsa_next_free_sgpr {100 if PROF else sgprs}
  .amdhsa_accum_offset {acc}
  .amdhsa_group_segment_fixed_size 0
  .amdhsa_kernarg_size 104
  .amdhsa_user_sgpr_count 2
  .amdhsa_user_sgpr_kernarg_segment_ptr 1
  .amdhsa_system_sgpr_workgroup_id_x 1
  .amdhsa_float_denorm_mode_32 3
.end_amdhsa_kernel
"""


U_STRIDE = 4608
H_COPY = 4160
H_BASE = 4 * U_STRIDE
CONV_LDS = H_BASE + 4 * 2 * H_COPY


def gen_conv(a):
    name = "conv_kernel"
    kernel_begin(a, name, 256)
    a(f"""
    s_load_dwordx4 s[4:7], s[0:1], {KA_K}
    s_load_dwordx4 s[8:11], s[0:1], {KA_SK}
    s_load_dwordx2 s[12:13], s[0:1], {KA_D}
    s_load_dwordx2 s[14:15], s[0:1], {KA_WS}
    s_and_b32 s16, s2, 7
    s_lshl_b32 s16, s16, 7
    s_lshr_b32 s17, s2, 3
    s_lshl_b32 s17, s17, 2
    s_add_u32 s16, s16, s17                 ; s16 = d0
    v_lshrrev_b32 v1, 6, v0
    v_and_b32 v2, 63, v0                    ; v2 = lane
    v_readfirstlane_b32 s17, v1             ; s17 = wave
    s_lshl_b32 s18, s16, 3                  ; d0*8
    s_lshl_b32 s19, s16, 1                  ; d0*2
    s_waitcnt lgkmcnt(0)
    s_load_dwordx8 s[36:43], s[8:9], s18    ; shift_k[d0..d0+3][0..3]
    s_load_dwordx2 s[60:61], s[12:13], s19  ; ssm_D[d0..d0+3]
    """)
    srd(a, 20, 4, 4 * MB)
    srd(a, 24, 6, 4 * MB)
    srd(a, 28, 10, 4 * MB)
    srd(a, 32, 14, 4 * MB, off=WS_Z if WS_Z else None)
    a(f"""
    s_add_u32 s62, s16, s17
    s_lshl_b32 s62, s62, 12
    v_lshlrev_b32 v3, 4, v2
    """)
    HR = 100
    for i in range(4):
        a(f"buffer_load_dwordx4 {vr(HR + 8 * i, 4)}, v3, s[28:31], s62 offen offset:{1024 * i} {NTI}")
        a(f"buffer_load_dword {vr(HR + 8 * i + 4)}, v3, s[28:31], s62 offen offset:{1024 * i + 16} {NTI}")
    a(f"""
    v_lshlrev_b32 v4, 12, v0
    v_add_u32 v4, s19, v4
    v_subrev_u32 v7, {3 * 2048}, v4
    v_mov_b32 v6, 0x40000000
    v_cmp_eq_u32 vcc, 0, v2
    s_nop 1
    v_cndmask_b32 v5, v6, v4, vcc
    v_cndmask_b32 v7, v6, v7, vcc
    v_cmp_eq_u32 vcc, 0, v0
    s_nop 1
    v_cndmask_b32 v7, v7, v6, vcc
    s_mov_b32 s64, 0
    s_mov_b32 s65, {1 * MB}
    s_mov_b32 s66, {2 * MB}
    s_mov_b32 s67, {3 * MB}
    s_mov_b32 s68, 0
    s_mov_b32 s69, {1 * MB - 6144}
    s_mov_b32 s70, {2 * MB - 6144}
    s_mov_b32 s71, {3 * MB - 6144}
    s_mov_b32 s76, 4096
    s_mov_b32 s77, {1 * MB - 2048}
    s_mov_b32 s78, {2 * MB - 2048}
    s_mov_b32 s79, {3 * MB - 2048}
    """)
    RAW = [140, 156]

    def issue_q(q):
        b = RAW[q & 1]
        hv = "v7" if q == 0 else "v5"
        a(f"buffer_load_dwordx2 {vr(b + 0, 2)}, v4, s[20:23], s{64 + q} offen {NTI}")
        a(f"buffer_load_dwordx2 {vr(b + 2, 2)}, v4, s[20:23], s{64 + q} offen offset:2048 {NTI}")
        a(f"buffer_load_dwordx2 {vr(b + 4, 2)}, v4, s[24:27], s{64 + q} offen {NTI}")
        a(f"buffer_load_dwordx2 {vr(b + 6, 2)}, v4, s[24:27], s{64 + q} offen offset:2048 {NTI}")
        a(f"buffer_load_dwordx2 {vr(b + 8, 2)}, {hv}, s[20:23], s{68 + q} offen")
        a(f"buffer_load_dwordx2 {vr(b + 10, 2)}, {hv}, s[20:23], s{68 + q} offen offset:2048")
        a(f"buffer_load_dwordx2 {vr(b + 12, 2)}, {hv}, s[20:23], s{76 + q} offen")

    issue_q(0)
    a("s_barrier")
    issue_q(1)
    a("s_waitcnt lgkmcnt(0)")
    for j in range(4):
        for c in range(4):
            src = 36 + 2 * c + (j >> 1)
            dst = 44 + 4 * j + c
            if j & 1:
                a(f"s_and_b32 s{dst}, s{src}, 0xffff0000")
            else:
                a(f"s_lshl_b32 s{dst}, s{src}, 16")
    a(f"""
    s_cmp_ge_u32 s17, 2
    s_cselect_b32 s63, s61, s60
    s_lshl_b32 s72, s63, 16
    s_and_b32 s63, s63, 0xffff0000
    s_bitcmp1_b32 s17, 0
    s_cselect_b32 s63, s63, s72
    """)
    a(f"""
    s_mul_i32 s72, s17, {U_STRIDE}
    s_mul_i32 s73, s17, {2 * H_COPY}
    s_add_u32 s73, s73, {H_BASE}
    v_mov_b32 v8, 0
    v_mov_b32 v9, 0
    v_mov_b32 v10, 0
    v_mov_b32 v11, 0
    v_lshlrev_b32 v12, 3, v2
    v_add_u32 v12, s72, v12
    ds_write_b64 v12, v[8:9] offset:4096
    v_add_u32 v13, s73, v3
    s_waitcnt vmcnt(14)
    """)
    a(f"""
    v_readfirstlane_b32 s74, v{HR}
    v_and_b32 v14, 1, v2
    v_lshlrev_b32 v15, 4, v14
    v_add_u32 v15, s73, v15
    s_lshl_b32 s74, s74, 16
    v_mul_u32_u24 v16, 1, v14
    ds_write_b128 v15, v[8:11]
    v_mov_b32 v17, s74
    v_cmp_eq_u32 vcc, 1, v14
    v_mov_b32 v20, 0
    v_mov_b32 v21, 0
    v_mov_b32 v22, 0
    v_cndmask_b32 v23, 0, v17, vcc
    ds_write_b128 v15, v[20:23] offset:{H_COPY}
    """)
    for i in range(4):
        b = HR + 8 * i
        a(f"ds_write_b128 v13, {vr(b, 4)} offset:{32 + 1024 * i}")
        t = 24 + 4 * (i & 1)
        for d in range(4):
            a(f"v_alignbit_b32 v{t + d}, v{b + d + 1}, v{b + d}, 16")
        a(f"ds_write_b128 v13, {vr(t, 4)} offset:{H_COPY + 32 + 1024 * i}")
    a(f"""
    v_and_b32 v14, 15, v2                   ; a / i
    v_lshrrev_b32 v15, 4, v2                ; kq / q
    v_lshlrev_b32 v16, 4, v15
    v_lshl_add_u32 v16, v14, 1, v16         ; + 2a
    v_and_b32 v17, 1, v14
    v_cmp_eq_u32 vcc, 1, v17
    v_add_u32 v18, 2, v16
    v_add_u32 v19, {H_COPY}, v16
    v_cndmask_b32 v16, v19, v18, vcc
    v_add_u32 v16, s73, v16
    s_waitcnt lgkmcnt(0)
    """)
    for j in range(64):
        if j and j % 16 == 0:
            a("v_add_u32 v16, 1024, v16")
        o = (j % 16) * 16
        a(f"ds_read2_b32 {ar(4 * j, 2)}, v16 offset0:{o} offset1:{o + 1}")
        a(f"ds_read2_b32 {ar(4 * j + 2, 2)}, v16 offset0:{o + 2} offset1:{o + 3}")
    a(f"""
    v_lshlrev_b32 v17, 4, v15
    v_lshlrev_b32 v18, 5, v14
    v_sub_u32 v17, v17, v18
    v_add_u32 v17, 480, v17
    v_add_u32 v17, s72, v17
    """)
    a(f"""
    v_lshlrev_b32 v19, 3, v15
    v_add_u32 v19, v19, v18
    v_sub_u32 v18, {4088 - 3584}, v19
    v_add_u32 v18, s72, v18
    """)
    a(f"""
    v_lshlrev_b32 v19, 2, v0
    v_sub_u32 v19, {4092 - 3072}, v19
    """)
    a(f"""
    v_lshlrev_b32 v20, 15, v14              ; 2i*16384
    v_lshrrev_b32 v21, 1, v15
    v_lshlrev_b32 v21, 14, v21
    v_add_u32 v20, v20, v21
    v_and_b32 v21, 1, v15
    v_lshl_add_u32 v20, v21, 3, v20
    s_add_u32 s74, s16, s17
    s_lshl_b32 s74, s74, 4
    v_add_u32 v20, s74, v20
    """)
    ACC = 32
    for r in range(32):
        a(f"v_mov_b32 v{ACC + r}, 0")
    BF = [64, 68, 72, 76]
    KF = 176
    VF = 196
    KS = 204
    PK = 212

    def compute_q(q):
        b = RAW[q & 1]
        for d in range(2):
            a(f"v_mov_b32_dpp v{b + 12 + d}, v{b + 2 + d} wave_shr:1 row_mask:0xf bank_mask:0xf")
        for d in range(2):
            a(f"v_mov_b32_dpp v{b + 10 + d}, v{b + 0 + d} wave_shr:1 row_mask:0xf bank_mask:0xf")
        a("s_nop 0")
        for d in range(2):
            a(f"v_mov_b32_dpp v{b + 8 + d}, v{b + 12 + d} wave_shr:1 row_mask:0xf bank_mask:0xf")
        src = [b + 8, b + 10, b + 12, b + 0, b + 2]
        for r in [3, 4, 2, 1, 0]:
            for p in range(2):
                a(f"v_lshlrev_b32 v{KF + 4 * r + 2 * p}, 16, v{src[r] + p}")
                a(f"v_and_b32 v{KF + 4 * r + 2 * p + 1}, 0xffff0000, v{src[r] + p}")
        for r in range(2):
            for p in range(2):
                a(f"v_lshlrev_b32 v{VF + 4 * r + 2 * p}, 16, v{b + 4 + 2 * r + p}")
                a(f"v_and_b32 v{VF + 4 * r + 2 * p + 1}, 0xffff0000, v{b + 4 + 2 * r + p}")
        for j in range(4):
            for r in range(2):
                for p in range(2):
                    kreg = vr(KF + 4 * (3 + r - j) + 2 * p, 2)
                    w = sr(44 + 4 * j + 2 * p, 2)
                    d = vr(KS + 4 * r + 2 * p, 2)
                    if j == 0:
                        a(f"v_pk_mul_f32 {d}, {kreg}, {w}")
                    else:
                        a(f"v_pk_fma_f32 {d}, {kreg}, {w}, {d}")
        for r in range(2):
            for p in range(2):
                d = vr(KS + 4 * r + 2 * p, 2)
                a(f"v_pk_mul_f32 {d}, {d}, {vr(VF + 4 * r + 2 * p, 2)}")
        for c in range(4):
            a(f"v_cvt_pk_bf16_f32 v{PK + c}, v{KS + 4 + c}, v{KS + c}")
        for c in range(4):
            a(f"ds_write_b32 v19, v{PK + c} offset:{3072 - 1024 * q + c * U_STRIDE}")

    def mfma_e(e):
        seq = [(jp) for jp in range(8)]
        def rd(jp):
            a(f"ds_read_b128 {vr(BF[jp & 3], 4)}, v17 offset:{3584 - 512 * e + 64 * jp}")
        for jp in range(3):
            rd(jp)
        for jp in seq:
            if jp + 3 < 8:
                rd(jp + 3)
                a("s_waitcnt lgkmcnt(3)")
            else:
                a(f"s_waitcnt lgkmcnt({7 - jp})")
            for m in range(8 - e):
                acc = vr(ACC + 4 * (e + m), 4)
                a(f"v_mfma_f32_16x16x32_bf16 {acc}, {ar(4 * (jp + 8 * m), 4)}, {vr(BF[jp & 3], 4)}, {acc}")

    def epilogue_c(c):
        t = 80 + 8 * (c & 1)
        a(f"ds_read_b64 {vr(t, 2)}, v18 offset:{3584 - 512 * c}")
        a("s_waitcnt lgkmcnt(0)")
        a(f"v_and_b32 v{t + 2}, 0xffff0000, v{t + 1}")
        a(f"v_lshlrev_b32 v{t + 3}, 16, v{t + 1}")
        a(f"v_and_b32 v{t + 4}, 0xffff0000, v{t}")
        a(f"v_lshlrev_b32 v{t + 5}, 16, v{t}")
        for r in range(4):
            a(f"v_fma_f32 v{t + 2 + r}, v{t + 2 + r}, s63, v{ACC + 4 * c + r}")
        a(f"v_cvt_pk_bf16_f32 v{t}, v{t + 2}, v{t + 3}")
        a(f"v_cvt_pk_bf16_f32 v{t + 1}, v{t + 4}, v{t + 5}")
        a(f"s_mov_b32 s75, {c * 32 * 16384}")
        a(f"buffer_store_dwordx2 {vr(t, 2)}, v20, s[32:35], s75 offen {STZ}")

    stamp(a, 2)
    stores = 0
    for q in range(4):
        if q == 0:
            a("s_waitcnt vmcnt(7)")
        elif q == 1:
            a("s_waitcnt vmcnt(7)")
        elif q == 2:
            a("s_waitcnt vmcnt(9)")
        else:
            a("s_waitcnt vmcnt(4)")
        stamp(a, 3 + q)
        compute_q(q)
        if q + 2 < 4:
            issue_q(q + 2)
        a("s_waitcnt lgkmcnt(0)")
        a("s_barrier")
        mfma_e(2 * q)
        if q > 0:
            epilogue_c(2 * q - 2)
            epilogue_c(2 * q - 1)
        mfma_e(2 * q + 1)
    a("s_nop 7")
    epilogue_c(6)
    epilogue_c(7)
    stamp(a, 7)
    stamp_flush(a, 0, 10)
    kernel_end(a, name)
    return name, descriptor(name, 256, 256, 96), (256, 256, CONV_LDS)


LN_LDS = 16384 + 512


def bf16_round(a, v, tmp=None):
    a(f"v_cvt_pk_bf16_f32 {v}, {v}, {v}")
    a(f"v_and_b32 {v}, 0xffff0000, {v}")


def pf1(a):
    pf = opt("pf1nt", "").replace("-", "")
    a(f"""
    s_load_dwordx4 s[28:31], s[0:1], {KA_WG}
    v_and_b32 v122, 7, v2
    v_min_u32 v122, 6, v122
    v_lshlrev_b32 v122, 7, v122
    v_mul_u32_u24 v123, 7168, v4
    v_add_u32 v122, v122, v123
    s_lshr_b32 s36, s2, 3
    s_lshl_b32 s36, s36, 5
    s_and_b32 s37, s17, 1
    s_lshl_b32 s37, s37, 4
    s_add_u32 s36, s36, s37
    s_mul_i32 s36, s36, 7168
    s_and_b32 s37, s2, 7
    s_mul_i32 s37, s37, 896
    s_add_u32 s36, s36, s37
    s_add_u32 s37, s36, {8 * 7168}
    s_waitcnt lgkmcnt(0)
    s_cmp_ge_u32 s17, 2
    s_cselect_b32 s32, s30, s28
    s_cselect_b32 s33, s31, s29
    s_mov_b32 s34, {1024 * 3584 * 2}
    s_mov_b32 s35, 0x20000
    """)
    b2b = opt("b2b", "").replace("-", " ").replace("+", " ")
    a(f"buffer_load_dword v120, v122, s[32:35], s36 offen {pf}")
    if opt("b2bm", 0) == 1:
        a(f"buffer_load_dword v124, v122, s[32:35], s36 offen {b2b}")
    a(f"buffer_load_dword v121, v122, s[32:35], s37 offen {pf}")
    if opt("b2bm", 0) == 2:
        a(f"buffer_load_dword v124, v122, s[32:35], s36 offen {b2b}")
    if opt("b2bm", 0):
        a(f"buffer_load_dword v125, v122, s[32:35], s37 offen {b2b}")


def gen_ln(a):
    name = "ln_kernel"
    kernel_begin(a, name, 256)
    a(f"""
    s_load_dwordx2 s[4:5], s[0:1], {KA_Q}
    s_load_dwordx2 s[6:7], s[0:1], {KA_WS}
    v_lshrrev_b32 v1, 6, v0
    v_and_b32 v2, 63, v0                    ; lane
    v_readfirstlane_b32 s17, v1             ; wave
    v_and_b32 v3, 7, v2                     ; r
    v_lshrrev_b32 v4, 3, v2                 ; o
    s_waitcnt lgkmcnt(0)
    """)
    srd(a, 8, 4, 4 * MB)
    srd(a, 12, 6, 4 * MB)
    srd(a, 20, 6, 4 * MB, off=WS_H)
    srd(a, 24, 6, 4 * MB, off=WS_LN)
    a(f"""
    s_lshl_b32 s18, s2, 14
    s_lshl_b32 s19, s17, 12
    s_add_u32 s18, s18, s19
    v_lshlrev_b32 v5, 4, v2
    s_mov_b32 m0, s19
    s_nop 0
    buffer_load_dwordx4 v5, s[12:15], s18 offen lds
    buffer_load_dwordx4 v5, s[12:15], s18 offen offset:1024 lds
    buffer_load_dwordx4 v5, s[12:15], s18 offen offset:2048 lds
    buffer_load_dwordx4 v5, s[12:15], s18 offen offset:3072 lds
    """)
    a(f"""
    v_lshlrev_b32 v6, 11, v3
    v_lshl_add_u32 v6, v4, 4, v6
    s_lshl_b32 s18, s2, 14
    s_lshl_b32 s19, s17, 9
    s_add_u32 s18, s18, s19
    """)
    QR = 16
    for it in range(4):
        a(f"buffer_load_dwordx4 {vr(QR + 4 * it, 4)}, v6, s[8:11], s18 offen offset:{128 * it} {NTI}")
    if opt('pf1', 1) == 1:
        pf1(a)
    a(f"""
    v_lshrrev_b32 v7, 4, v2
    v_lshlrev_b32 v7, 8, v7                 ; (l>>4)*256
    v_bfe_u32 v8, v2, 1, 1
    v_lshl_add_u32 v7, v8, 7, v7
    v_bfe_u32 v8, v2, 2, 2
    v_lshl_add_u32 v7, v8, 4, v7
    v_and_b32 v8, 1, v2
    v_lshl_add_u32 v7, v8, 3, v7
    s_lshl_b32 s19, s17, 12
    v_add_u32 v7, s19, v7
    """)
    a(f"""
    v_lshlrev_b32 v9, 5, v3
    v_add_u32 v9, 16384, v9
    s_lshl_b32 s19, s17, 3
    v_add_u32 v10, s19, v9
    """)
    XF = 32
    ZR = 64
    ZF = 80
    a(f"s_waitcnt vmcnt({(4 if opt('b2bm', 0) else 2) if opt('pf1', 1) == 1 else 0})")
    stamp(a, 2)
    for it in range(4):
        for half in range(2):
            a(f"ds_read_b64_tr_b16 {vr(ZR + 4 * it + 2 * half, 2)}, v7 offset:{it * 1024 + half * 64}")
    for i in range(16):
        a(f"v_lshlrev_b32 v{XF + 2 * i}, 16, v{QR + i}")
        a(f"v_and_b32 v{XF + 2 * i + 1}, 0xffff0000, v{QR + i}")

    def stats(src, rnd):
        a(f"v_pk_add_f32 v[112:113], {vr(src, 2)}, {vr(src + 2, 2)}")
        a(f"v_pk_mul_f32 v[114:115], {vr(src, 2)}, {vr(src, 2)}")
        a(f"v_pk_fma_f32 v[114:115], {vr(src + 2, 2)}, {vr(src + 2, 2)}, v[114:115]")
        for i in range(2, 16):
            a(f"v_pk_add_f32 v[112:113], v[112:113], {vr(src + 2 * i, 2)}")
            a(f"v_pk_fma_f32 v[114:115], {vr(src + 2 * i, 2)}, {vr(src + 2 * i, 2)}, v[114:115]")
        a(f"""
        v_add_f32 v12, v112, v113
        v_add_f32 v13, v114, v115
        s_nop 1
        v_add_f32_dpp v12, v12, v12 row_ror:8 row_mask:0xf bank_mask:0xf
        v_add_f32_dpp v13, v13, v13 row_ror:8 row_mask:0xf bank_mask:0xf
        v_mov_b32 v14, v12
        v_mov_b32 v15, v13
        s_nop 1
        v_permlane16_swap_b32 v12, v14
        v_permlane16_swap_b32 v13, v15
        s_nop 1
        v_add_f32 v12, v12, v14
        v_add_f32 v13, v13, v15
        v_mov_b32 v14, v12
        v_mov_b32 v15, v13
        s_nop 1
        v_permlane32_swap_b32 v12, v14
        v_permlane32_swap_b32 v13, v15
        s_nop 1
        v_add_f32 v12, v12, v14
        v_add_f32 v13, v13, v15
        ds_write_b64 v10, v[12:13] offset:{256 * rnd}
        s_waitcnt lgkmcnt(0)
        s_barrier
        ds_read_b128 v[112:115], v9 offset:{256 * rnd}
        ds_read_b128 v[116:119], v9 offset:{256 * rnd + 16}
        s_waitcnt lgkmcnt(0)
        v_pk_add_f32 v[112:113], v[112:113], v[114:115]
        v_pk_add_f32 v[116:117], v[116:117], v[118:119]
        v_pk_add_f32 v[112:113], v[112:113], v[116:117]
        v_mul_f32 v12, {hex(f32bits(1.0 / 1024))}, v112      ; mean
        v_mul_f32 v13, {hex(f32bits(1.0 / 1024))}, v113      ; E[x^2]
        v_fma_f32 v13, -v12, v12, v13                        ; var
        v_max_f32 v13, 0, v13
        """)
        bf16_round(a, "v12")
        bf16_round(a, "v13")
        a(f"v_add_f32 v13, {hex(f32bits(1e-5))}, v13")
        bf16_round(a, "v13")
        a("v_sqrt_f32 v13, v13")
        a("s_nop 0")
        bf16_round(a, "v13")
        a("v_rcp_f32 v13, v13")
        a("s_nop 0")

    stats(XF, 0)
    stamp(a, 3)
    for i in range(16):
        a(f"v_lshlrev_b32 v{ZF + 2 * i}, 16, v{ZR + i}")
        a(f"v_and_b32 v{ZF + 2 * i + 1}, 0xffff0000, v{ZR + i}")
    a("v_mul_f32 v14, v12, v13")
    a("v_sub_f32 v14, 0, v14")
    a("v_mov_b32 v15, v14")
    a("v_mov_b32 v12, v13")
    for i in range(16):
        x = vr(XF + 2 * i, 2)
        z = vr(ZF + 2 * i, 2)
        a(f"v_pk_fma_f32 v[112:113], {x}, v[12:13], v[14:15]")
        a(f"v_pk_fma_f32 {z}, v[112:113], {z}, {x}")
        a(f"v_cvt_pk_bf16_f32 v{QR + i}, v{ZF + 2 * i}, v{ZF + 2 * i + 1}")
    a(f"""
    v_lshlrev_b32 v6, 9, v4
    v_lshl_add_u32 v6, v3, 4, v6
    s_lshr_b32 s18, s2, 2
    s_lshl_b32 s18, s18, 16
    s_and_b32 s19, s2, 3
    s_lshl_b32 s19, s19, 7
    s_add_u32 s18, s18, s19
    s_lshl_b32 s19, s17, 14
    s_add_u32 s18, s18, s19
    """)
    for it in range(4):
        a(f"buffer_store_dwordx4 {vr(QR + 4 * it, 4)}, v6, s[20:23], s18 offen {STL}")
        if it < 3:
            a("s_add_u32 s18, s18, 4096")
    for i in range(16):
        a(f"v_lshlrev_b32 v{XF + 2 * i}, 16, v{QR + i}")
        a(f"v_and_b32 v{XF + 2 * i + 1}, 0xffff0000, v{QR + i}")
    stats(XF, 1)
    stamp(a, 4)
    a("v_mul_f32 v14, v12, v13")
    a("v_sub_f32 v14, 0, v14")
    a("v_mov_b32 v15, v14")
    a("v_mov_b32 v12, v13")
    for i in range(16):
        x = vr(XF + 2 * i, 2)
        a(f"v_pk_fma_f32 {x}, {x}, v[12:13], v[14:15]")
        a(f"v_cvt_pk_bf16_f32 v{ZR + i}, v{XF + 2 * i}, v{XF + 2 * i + 1}")
    a(f"""
    v_lshrrev_b32 v6, 1, v4
    v_lshlrev_b32 v6, 11, v6
    v_and_b32 v7, 1, v4
    v_lshl_add_u32 v6, v7, 9, v6
    v_lshl_add_u32 v6, v3, 4, v6
    s_lshr_b32 s18, s2, 3
    s_lshl_b32 s18, s18, 17
    s_bfe_u32 s19, s2, 0x10002
    s_lshl_b32 s19, s19, 10
    s_add_u32 s18, s18, s19
    s_and_b32 s19, s2, 3
    s_lshl_b32 s19, s19, 7
    s_add_u32 s18, s18, s19
    s_lshl_b32 s19, s17, 15
    s_add_u32 s18, s18, s19
    """)
    for it in range(4):
        a(f"buffer_store_dwordx4 {vr(ZR + 4 * it, 4)}, v6, s[24:27], s18 offen {STL}")
        if it < 3:
            a("s_add_u32 s18, s18, 8192")
    if opt('pf1', 1) == 2:
        pf1(a)
    if opt('rt1', ''):
        f = opt('rt1', '').replace("-", "").replace("+", " ")
        a(f"buffer_load_dword v120, v122, s[32:35], s36 offen {f}")
        a(f"buffer_load_dword v121, v122, s[32:35], s37 offen {f}")
    stamp(a, 5)
    stamp_flush(a, 1, 8)
    kernel_end(a, name)
    return name, descriptor(name, 128, 0, 40), (256, 256, LN_LDS)


def gemm_loop(a, tag, NST, DEPTH, RING, STAGE, KADV, dma_items, wread_ops, mfmas, addr_update, AF, init_acc,
              pro_limit=None):
    UN = DEPTH // 4
    assert NST % UN == 0
    LDS = STAGE * RING
    nd = len(dma_items)
    base, rem = divmod(nd, 4)
    split = [base + (1 if i < rem else 0) for i in range(4)]

    def w_item(st, i):
        ins = list(dma_items[i])
        if i == nd - 1:
            ins += [f"s_add_u32 s34, s34, {KADV}", f"s_add_u32 s35, s35, {STAGE}",
                    f"s_cmp_ge_u32 s35, {LDS}", "s_cselect_b32 s35, s33, s35"]
        return (("W", st), ins)

    def a_items(idx):
        b = AF + 8 * (idx % DEPTH)
        return [(("A", idx), [f"buffer_load_dwordx4 {ar(b, 4)}, v15, s[28:31], s36 offen {NTA}"]),
                (("A", idx), [f"buffer_load_dwordx4 {ar(b + 4, 4)}, v15, s[28:31], s36 offen offset:1024 {NTA}",
                              "s_add_u32 s36, s36, 2048"])]

    def items_at(g):
        out = []
        ai = g - 1 + DEPTH
        A = a_items(ai) if ai >= 0 else []
        ph = (g + 1) % 4
        st = (g + 1) // 4 - 1 + RING
        lo = sum(split[:ph])
        W = [w_item(st, i) for i in range(lo, lo + split[ph])] if st >= 0 else []
        while A or W:
            if A:
                out.append(A.pop(0))
            if W:
                out.append(W.pop(0))
        return out

    order = []

    def cnt_after(t):
        idx = max(i for i, x in enumerate(order) if x == t)
        return len(order) - 1 - idx

    def emit_ins(ins):
        for x in ins:
            a(x)
            if " m0," in x:
                a("s_nop 0")

    a("s_mov_b32 s34, 0")
    a("s_mov_b32 s35, s33")
    a("s_mov_b32 s36, 0")
    backlog = []
    for g in range(-4 * RING - DEPTH, 0):
        backlog += items_at(g)
    npro = len(backlog) if pro_limit is None else pro_limit
    for t, ins in backlog[:npro]:
        emit_ins(ins)
        order.append(t)
    backlog = backlog[npro:]
    init_acc()
    stamp(a, 2)
    a(f"s_waitcnt vmcnt({cnt_after(('W', 0))})")
    a("s_barrier")
    stamp(a, 3)
    a("s_mov_b32 s37, 0")
    for op in addr_update():
        emit_ins(op)
    a(f"s_mov_b32 s37, {STAGE}")
    for op in wread_ops(0, 0):
        emit_ins(op)

    def body(it, waits, emit, backlog):
        for us in range(UN):
            st = it * UN + us
            for j in range(4):
                g = 4 * st + j
                buf = g & 1
                wv = cnt_after(("A", g))
                if j == 3:
                    assert order.count(("W", st + 1)) == nd
                    wv = min(wv, cnt_after(("W", st + 1)))
                k = 4 * us + j
                waits[k] = min(waits.get(k, 63), wv)
                fill = []
                if j == 3:
                    fill += addr_update()
                    fill += wread_ops(buf ^ 1, 0)
                    fill.append([f"s_add_u32 s37, s37, {STAGE}", f"s_cmp_ge_u32 s37, {LDS}", "s_cselect_b32 s37, 0, s37"])
                else:
                    fill += wread_ops(buf ^ 1, j + 1)
                mine = items_at(g)
                if backlog is not None:
                    n = len(mine)
                    backlog += mine
                    left = 4 * UN - k
                    take = n + -(-(len(backlog) - n) // left)
                    mine = backlog[:take]
                    del backlog[:take]
                vm = [ins for _, ins in mine]
                order.extend(t for t, _ in mine)
                if emit:
                    a(f"s_waitcnt vmcnt({waits[k]}) lgkmcnt(0)")
                    if j == 3:
                        a("s_barrier")
                    mf = mfmas(buf, AF + 8 * (g % DEPTH))
                    n = len(mf)
                    slots = [[] for _ in range(n)]
                    per = max(2, -(-len(fill) // n))
                    for i, op in enumerate(fill):
                        slots[min(i // per, n - 1)].append(op)
                    for i, op in enumerate(vm):
                        slots[min(n - 1, ((2 * i + 1) * n) // (2 * len(vm)))].append(op)
                    for i, m in enumerate(mf):
                        a(m)
                        for op in slots[i]:
                            emit_ins(op)

    first = 0
    if pro_limit is not None:
        body(0, {}, True, backlog)
        assert not backlog
        first = 1
    waits = {}
    saved = list(order)
    for it in range(first, NST // UN):
        body(it, waits, False, None)
    assert max(waits.values()) <= 63
    order[:] = saved
    a(f"s_mov_b32 s38, {NST // UN - first}")
    a.raw(".p2align 6")
    a.label(f"L_{tag}_loop")
    body(first, waits, True, None)
    a("s_sub_u32 s38, s38, 1")
    a("s_cmp_lg_u32 s38, 0")
    a(f"s_cbranch_scc1 L_{tag}_loop")
    stamp(a, 4)


G1_UPOFF = 14336 + 128
G1_STAGE = G1_UPOFF + 14336
G1_RING = opt('r1', 5)


def pf2(a):
    pf = opt("pf2nt", "").replace("-", "")
    n = opt("pf2n", 4)
    a(f"""
    s_load_dwordx2 s[46:47], s[0:1], {KA_WD}
    v_lshrrev_b32 v6, 3, v2
    v_lshlrev_b32 v6, 11, v6
    v_and_b32 v7, 7, v2
    v_lshl_add_u32 v6, v7, 7, v6
    s_lshr_b32 s23, s2, 3
    s_lshl_b32 s23, s23, 14
    s_and_b32 s32, s2, 1
    s_lshl_b32 s32, s32, 10
    s_add_u32 s23, s23, s32
    s_lshl_b32 s32, s17, 19
    s_add_u32 s23, s23, s32
    s_waitcnt lgkmcnt(0)
    """)
    srd(a, 48, 46, 3584 * 1024 * 2)
    for i in range(n):
        a(f"buffer_load_dword v{8 + i}, v6, s[48:51], s23 offen {pf}")
        a(f"s_add_u32 s23, s23, {1024 * 2048}")


def gen_gemm1(a, DEPTH=opt('d1', 16)):
    name = "gemm1_kernel"
    kernel_begin(a, name, 256)
    a(f"""
    s_load_dwordx4 s[4:7], s[0:1], {KA_WG}
    s_load_dwordx2 s[8:9], s[0:1], {KA_WS}
    v_lshrrev_b32 v1, 6, v0
    v_and_b32 v2, 63, v0
    v_readfirstlane_b32 s17, v1             ; wave
    s_lshr_b32 s18, s2, 5                   ; mt
    s_and_b32 s19, s2, 7
    s_lshl_b32 s19, s19, 2
    s_bfe_u32 s20, s2, 0x20003
    s_add_u32 s19, s19, s20                 ; nt
    s_waitcnt lgkmcnt(0)
    s_cmp_ge_u32 s17, 2
    s_cselect_b32 s24, s6, s4
    s_cselect_b32 s25, s7, s5
    s_mov_b32 s26, {1024 * 3584 * 2}
    s_mov_b32 s27, 0x20000
    s_lshl_b32 s20, s18, 2
    s_add_u32 s20, s20, s17                 ; m64 block
    s_lshl_b32 s21, s20, 17
    s_add_u32 s21, s21, {WS_LN}
    s_add_u32 s28, s8, s21
    s_addc_u32 s29, s9, 0
    s_mov_b32 s30, 131072
    s_mov_b32 s31, 0x20000
    """)
    srd(a, 40, 8, 2048 * 3584 * 2, off=WS_HH)
    ACC = 32
    a(f"""
    s_mul_i32 s21, s19, 224
    s_and_b32 s22, s17, 1
    s_mul_i32 s23, s22, {32 * 7168}
    s_add_u32 s21, s21, s23
    s_mov_b32 s23, {(1 << 20) // 14 + 1}
    s_movk_i32 s32, 7168
    """)
    for i in range(7):
        a(f"""
        v_add_u32 v3, {64 * i}, v2
        v_mul_lo_u32 v4, v3, s23
        v_lshrrev_b32 v4, 20, v4
        v_mul_u32_u24 v5, 14, v4
        v_sub_u32 v5, v3, v5
        v_mul_lo_u32 v4, v4, s32
        v_lshl_add_u32 v4, v5, 4, v4
        v_add_u32 v4, s21, v4
        v_subrev_u32 v{8 + i}, {1024 * (i % 4)}, v4
        """)
    a(f"""
    s_lshr_b32 s33, s17, 1
    s_mul_i32 s33, s33, {G1_UPOFF}
    s_mul_i32 s22, s22, 7168
    s_add_u32 s33, s33, s22
    v_lshlrev_b32 v15, 4, v2
    v_bfe_u32 v3, v2, 4, 1
    v_mul_u32_u24 v16, {G1_UPOFF}, v3
    v_lshrrev_b32 v3, 5, v2
    v_lshlrev_b32 v3, 3, v3
    v_bfe_u32 v4, v2, 2, 2
    v_add_u32 v3, v3, v4
    v_mul_u32_u24 v3, 224, v3
    v_add_u32 v16, v16, v3
    v_and_b32 v3, 1, v2
    v_lshl_add_u32 v16, v3, 4, v16
    v_bfe_u32 v3, v2, 1, 1
    v_lshl_add_u32 v16, v3, 3, v16
    """)
    WF = [0, 28]
    AF = 56
    dma = [[f"buffer_load_dwordx4 v{8 + i}, s[24:27], s34 offen offset:{1024 * (i & 3)} {NTW1} lds"] for i in range(7)]
    dma[0].insert(0, "s_mov_b32 m0, s35")
    dma[4].insert(0, "s_add_u32 m0, s35, 4096")

    def wread_ops(buf, sub):
        return [[f"ds_read_b64_tr_b16 {ar(WF[buf] + 4 * t + 2 * rd, 2)}, v17 offset:{(16 * sub + 4 * rd) * 224 + 32 * t}"]
                for t in range(7) for rd in range(2)]

    def mfmas(buf, af):
        out = []
        for t in range(7):
            for mb in range(2):
                acc = vr(ACC + 16 * (2 * t + mb), 16)
                out.append(f"v_mfma_f32_32x32x16_bf16 {acc}, {ar(WF[buf] + 4 * t, 4)}, {ar(af + 4 * mb, 4)}, {acc}")
        return out

    def addr_update():
        return [["v_add_u32 v17, s37, v16"]]

    def init_acc():
        for r in range(224):
            a(f"v_mov_b32 v{ACC + r}, 0")

    gemm_loop(a, "g1", 16, DEPTH, G1_RING, G1_STAGE, 64 * 7168, dma, wread_ops, mfmas, addr_update, AF, init_acc,
              pro_limit=(opt('p1', 0) or None))
    c = 0.7978845608028654
    k0 = -2.0 * c * 1.4426950408889634
    k1 = k0 * 0.044715
    a(f"""
    s_mov_b32 s44, {hex(f32bits(k1))}
    s_mov_b32 s45, {hex(f32bits(k1))}
    v_mov_b32 v4, {hex(f32bits(k0))}
    v_mov_b32 v5, {hex(f32bits(k0))}
    s_lshl_b32 s21, s20, 1
    s_mul_i32 s21, s21, {224 * 1024}
    s_mul_i32 s22, s19, {7 * 1024}
    s_add_u32 s21, s21, s22
    s_add_u32 s22, s21, {224 * 1024}
    s_nop 7
    """)
    if opt('pf2', 1) == 1:
        pf2(a)
    T = 16
    for t in range(7):
        for mb in range(2):
            C = ACC + 16 * (2 * t + mb)
            g = [vr(C + 2 * p, 2) for p in range(4)]
            u = [vr(C + 8 + 2 * p, 2) for p in range(4)]
            tt = [vr(T + 2 * p, 2) for p in range(4)]
            for p in range(4):
                a(f"v_pk_mul_f32 {tt[p]}, {g[p]}, {g[p]}")
            for p in range(4):
                a(f"v_pk_fma_f32 {tt[p]}, {tt[p]}, s[44:45], v[4:5]")
            for p in range(4):
                a(f"v_pk_mul_f32 {tt[p]}, {tt[p]}, {g[p]}")
            for i in range(8):
                a(f"v_exp_f32 v{T + i}, v{T + i}")
            for p in range(4):
                a(f"v_pk_mul_f32 {u[p]}, {u[p]}, {g[p]}")
            for p in range(4):
                a(f"v_pk_add_f32 {tt[p]}, {tt[p]}, 1.0 op_sel_hi:[1,0]")
            for i in range(8):
                a(f"v_rcp_f32 v{T + i}, v{T + i}")
            a("s_nop 0")
            for p in range(4):
                a(f"v_pk_mul_f32 {u[p]}, {u[p]}, {tt[p]}")
            for p in range(4):
                a(f"v_cvt_pk_bf16_f32 v{C + p}, v{C + 8 + 2 * p}, v{C + 9 + 2 * p}")
            so = "s21" if mb == 0 else "s22"
            if t < 4:
                a(f"buffer_store_dwordx4 {vr(C, 4)}, v15, s[40:43], {so} offen offset:{1024 * t} {STH}")
            else:
                if t == 4:
                    a(f"s_add_u32 {so}, {so}, 4096")
                a(f"buffer_store_dwordx4 {vr(C, 4)}, v15, s[40:43], {so} offen offset:{1024 * (t - 4)} {STH}")
    if opt('pf2', 1) == 2:
        pf2(a)
    if opt('rt2', ''):
        f = opt('rt2', '').replace("-", "").replace("+", " ")
        for i in range(opt("pf2n", 4)):
            a(f"s_sub_u32 s23, s23, {1024 * 2048}")
            a(f"buffer_load_dword v{8 + i}, v6, s[48:51], s23 offen {f}")
    stamp(a, 5)
    stamp_flush(a, 2, 8)
    kernel_end(a, name)
    return name, descriptor(name, 256, AF + 8 * DEPTH, 64), (256, 256, G1_STAGE * G1_RING)


G2_STAGE = 16384
G2_RING = opt('r2', 5)


def gen_gemm2(a, DEPTH=opt('d2', 16)):
    name = "gemm2_kernel"
    kernel_begin(a, name, 256)
    a(f"""
    s_load_dwordx4 s[4:7], s[0:1], {KA_WD}
    s_load_dwordx2 s[8:9], s[0:1], {KA_WS}
    v_lshrrev_b32 v1, 6, v0
    v_and_b32 v2, 63, v0
    v_readfirstlane_b32 s17, v1             ; wave
    s_bfe_u32 s18, s2, 0x20001
    s_lshl_b32 s18, s18, 2
    s_lshr_b32 s20, s2, 6
    s_add_u32 s18, s18, s20                 ; mt
    s_and_b32 s19, s2, 1
    s_lshl_b32 s19, s19, 3
    s_bfe_u32 s20, s2, 0x30003
    s_add_u32 s19, s19, s20                 ; nt
    s_lshl_b32 s20, s18, 2
    s_add_u32 s20, s20, s17
    s_mul_i32 s21, s20, {224 * 1024}
    s_add_u32 s21, s21, {WS_HH}
    s_waitcnt lgkmcnt(0)
    s_add_u32 s28, s8, s21
    s_addc_u32 s29, s9, 0
    s_mov_b32 s30, {224 * 1024}
    s_mov_b32 s31, 0x20000
    """)
    srd(a, 24, 4, 3584 * 1024 * 2)
    srd(a, 40, 6, 4 * MB)
    srd(a, 44, 8, 4 * MB, off=WS_H)
    ACC = 32
    HR = 64
    a(f"""
    v_lshrrev_b32 v3, 3, v2
    v_lshlrev_b32 v3, 11, v3
    v_bfe_u32 v4, v2, 4, 1
    v_lshlrev_b32 v4, 2, v4
    v_and_b32 v5, 7, v2
    v_xor_b32 v4, v4, v5
    v_lshl_add_u32 v3, v4, 4, v3
    s_lshl_b32 s21, s19, 7
    s_lshl_b32 s22, s17, 16
    s_add_u32 s21, s21, s22
    v_add_u32 v8, s21, v3
    v_add_u32 v9, {16384 - 1024}, v8
    v_add_u32 v10, {16384 - 1024}, v9
    v_add_u32 v11, {16384 - 1024}, v10
    s_lshl_b32 s33, s17, 12
    v_lshlrev_b32 v15, 4, v2
    """)
    a(f"""
    s_lshl_b32 s21, s20, 16
    s_lshl_b32 s22, s19, 12
    s_add_u32 s21, s21, s22
    """)
    for i in range(4):
        a(f"buffer_load_dwordx4 {vr(HR + 4 * i, 4)}, v15, s[44:47], s21 offen offset:{1024 * i}")
    a(f"""
    v_lshrrev_b32 v3, 5, v2
    v_lshlrev_b32 v3, 3, v3
    v_bfe_u32 v4, v2, 2, 2
    v_add_u32 v3, v3, v4
    v_lshlrev_b32 v16, 7, v3
    v_bfe_u32 v3, v2, 4, 1
    v_lshl_add_u32 v16, v3, 5, v16
    v_and_b32 v3, 1, v2
    v_lshl_add_u32 v16, v3, 4, v16
    v_bfe_u32 v3, v2, 1, 1
    v_lshl_add_u32 v16, v3, 3, v16
    v_bfe_u32 v3, v2, 3, 1
    v_lshl_add_u32 v16, v3, 6, v16
    v_xor_b32 v17, 64, v16
    """)
    WF = [0, 16]
    AF = 32
    dma = [[f"buffer_load_dwordx4 v{8 + i}, s[24:27], s34 offen offset:{1024 * i} {NTW2} lds"] for i in range(4)]
    dma[0].insert(0, "s_mov_b32 m0, s35")

    def wread_ops(buf, sub):
        return [[f"ds_read_b64_tr_b16 {ar(WF[buf] + 8 * kk + 4 * t + 2 * rd, 2)}, v{18 + t} offset:{(32 * sub + 16 * kk + 4 * rd) * 128}"]
                for kk in range(2) for t in range(2) for rd in range(2)]

    def mfmas(buf, af):
        out = []
        for kk in range(2):
            for t in range(2):
                acc = vr(ACC + 16 * t, 16)
                out.append(f"v_mfma_f32_32x32x16_bf16 {acc}, {ar(WF[buf] + 8 * kk + 4 * t, 4)}, {ar(af + 4 * kk, 4)}, {acc}")
        return out

    def addr_update():
        return [["v_add_u32 v18, s37, v16", "v_add_u32 v19, s37, v17"]]

    def init_acc():
        for r in range(32):
            a(f"v_mov_b32 v{ACC + r}, 0")

    gemm_loop(a, "g2", 28, DEPTH, G2_RING, G2_STAGE, 128 * 2048, dma, wread_ops, mfmas, addr_update, AF, init_acc,
              pro_limit=(opt('p2', 0) or None))
    a(f"""
    v_and_b32 v3, 31, v2
    v_lshlrev_b32 v3, 11, v3
    v_lshrrev_b32 v4, 5, v2
    v_lshl_add_u32 v3, v4, 4, v3
    s_lshl_b32 s21, s20, 16
    s_lshl_b32 s22, s19, 7
    s_add_u32 s21, s21, s22
    s_nop 7
    s_nop 7
    """)
    for g in range(4):
        C = ACC + 8 * g
        for p in range(4):
            a(f"v_cvt_pk_bf16_f32 v20, v{C + 2 * p}, v{C + 2 * p + 1}")
            a(f"v_lshlrev_b32 v22, 16, v{HR + 4 * g + p}")
            a(f"v_and_b32 v23, 0xffff0000, v{HR + 4 * g + p}")
            a(f"v_and_b32 v21, 0xffff0000, v20")
            a(f"v_lshlrev_b32 v20, 16, v20")
            a(f"v_pk_add_f32 v[20:21], v[20:21], v[22:23]")
            a(f"v_cvt_pk_bf16_f32 v{HR + 4 * g + p}, v20, v21")
        a(f"buffer_store_dwordx4 {vr(HR + 4 * g, 4)}, v3, s[40:43], s21 offen offset:{32 * g}")
    stamp(a, 5)
    stamp_flush(a, 3, 8)
    kernel_end(a, name)
    return name, descriptor(name, 80, AF + 8 * DEPTH, 64), (256, 256, G2_STAGE * G2_RING)


HEADER = open("cdna_kernels/" + NAME + ".s.ref").read().split("; Override launch")[0]


def main():
    out = sys.argv[1] if len(sys.argv) > 1 else f"cdna_kernels/{NAME}.s"
    global PROF
    PROF = "--prof" in sys.argv
    a = Asm()
    ks = [gen_conv(a), gen_ln(a), gen_gemm1(a), gen_gemm2(a)]
    s = HEADER
    for name, _, (g, b, lds) in ks:
        s += f"; @launch kernel={name} grid=({g},1,1) block=({b},1,1) lds={lds}\n"
    s += '.amdgcn_target "amdgcn-amd-amdhsa--gfx950"\n.text\n'
    s += a.text()
    s += '.section .rodata,"a"\n'
    for name, d, _ in ks:
        s += ".p2align 6\n" + d
    open(out, "w").write(s)


if __name__ == "__main__":
    main()
```

```python
import struct
import sys

NAME = "sequential_preLN__ssm_conv_h3__glu_gated_geglu__prompt"

KA_Q, KA_K, KA_V, KA_SK, KA_HK, KA_D, KA_X, KA_WG, KA_WU, KA_WD, KA_OUT, KA_DBG, KA_WS = [8 * i for i in range(13)]

MB = 1 << 20
WS_Z = 0
WS_H = 4 * MB
WS_LN = 8 * MB
WS_HH = 12 * MB


def f32bits(x):
    return struct.unpack("<I", struct.pack("<f", x))[0]


class Asm:
    def __init__(self):
        self.lines = []

    def __call__(self, s):
        for ln in s.strip("\n").split("\n"):
            self.lines.append("  " + ln.strip())

    def label(self, l):
        self.lines.append(l + ":")

    def raw(self, s):
        self.lines.append(s)

    def text(self):
        return "\n".join(self.lines) + "\n"


def vr(b, n=1, p="v"):
    return f"{p}{b}" if n == 1 else f"{p}[{b}:{b + n - 1}]"


def ar(b, n=1):
    return vr(b, n, "a")


def sr(b, n=1):
    return vr(b, n, "s")


def srd(a, d, base, nbytes, off=None):
    if off is None:
        a(f"s_mov_b32 s{d}, s{base}")
        a(f"s_mov_b32 s{d + 1}, s{base + 1}")
    else:
        a(f"s_add_u32 s{d}, s{base}, {off}")
        a(f"s_addc_u32 s{d + 1}, s{base + 1}, 0")
    a(f"s_mov_b32 s{d + 2}, {nbytes}")
    a(f"s_mov_b32 s{d + 3}, 0x20000")


PROF = False
import os
OPT = dict(x.split("=") for x in os.environ.get("GOPT", "").split(",") if x)


def opt(k, d):
    v = OPT.get(k)
    if v is None:
        return d
    return type(d)(v) if d is not None and not isinstance(d, str) else v


NTW1 = opt("ntw1", "nt").replace("-", "")
NTW2 = opt("ntw2", "nt").replace("-", "")
STH = opt("sth", "").replace("-", "").replace("+", " ")
STL = opt("stl", "").replace("-", "").replace("+", " ")
STZ = opt("stz", "").replace("-", "").replace("+", " ")
NTA = opt("nta", "").replace("-", "")
NTI = 'nt'
PROF_BASE = 48 * MB
ST0 = 80


def stamp(a, i, real=False):
    if not PROF:
        return
    a(f"{'s_memrealtime' if real else 's_memtime'} s[{ST0 + 2 * i}:{ST0 + 2 * i + 1}]")
    a("s_waitcnt lgkmcnt(0)")


def stamp_flush(a, kidx, n):
    if not PROF:
        return
    a("s_waitcnt vmcnt(0) lgkmcnt(0)")
    stamp(a, n - 2)
    stamp(a, n - 1, real=True)
    a(f"s_load_dwordx2 s[4:5], s[0:1], {KA_WS}")
    a("s_waitcnt lgkmcnt(0)")
    srd(a, 8, 4, 1 * MB, off=PROF_BASE + kidx * MB)
    a("s_lshl_b32 s6, s2, 2")
    a("s_add_u32 s6, s6, s17")
    a("s_lshl_b32 s6, s6, 6")
    a("v_mov_b32 v1, 0")
    for i in range(n):
        a(f"v_mov_b32 v2, s{ST0 + 2 * i}")
        a(f"buffer_store_dword v2, v1, s[8:11], s6 offen offset:{4 * i}")
    a("s_waitcnt vmcnt(0)")


def kernel_begin(a, name, nwg):
    a.raw(f".globl {name}")
    a.raw(".p2align 8")
    a.raw(f".type {name},@function")
    a.label(name)
    a(f"s_cmp_ge_u32 s2, {nwg}")
    a(f"s_cbranch_scc1 L_{name}_end")
    stamp(a, 0, real=True)
    stamp(a, 1)


def kernel_end(a, name):
    a.label(f"L_{name}_end")
    a("s_endpgm")


def descriptor(name, vgprs, agprs, sgprs):
    acc = (vgprs + 3) // 4 * 4
    nfv = acc + agprs if agprs else vgprs
    return f""".amdhsa_kernel {name}
  .amdhsa_next_free_vgpr {nfv}
  .amdhsa_next_free_sgpr {100 if PROF else sgprs}
  .amdhsa_accum_offset {acc}
  .amdhsa_group_segment_fixed_size 0
  .amdhsa_kernarg_size 104
  .amdhsa_user_sgpr_count 2
  .amdhsa_user_sgpr_kernarg_segment_ptr 1
  .amdhsa_system_sgpr_workgroup_id_x 1
  .amdhsa_float_denorm_mode_32 3
.end_amdhsa_kernel
"""


U_STRIDE = 4608
H_COPY = 4160
H_BASE = 4 * U_STRIDE
CONV_LDS = H_BASE + 4 * 2 * H_COPY


def gen_conv(a):
    name = "conv_kernel"
    kernel_begin(a, name, 256)
    a(f"""
    s_load_dwordx4 s[4:7], s[0:1], {KA_K}
    s_load_dwordx4 s[8:11], s[0:1], {KA_SK}
    s_load_dwordx2 s[12:13], s[0:1], {KA_D}
    s_load_dwordx2 s[14:15], s[0:1], {KA_WS}
    s_and_b32 s16, s2, 7
    s_lshl_b32 s16, s16, 7
    s_lshr_b32 s17, s2, 3
    s_lshl_b32 s17, s17, 2
    s_add_u32 s16, s16, s17                 ; s16 = d0
    v_lshrrev_b32 v1, 6, v0
    v_and_b32 v2, 63, v0                    ; v2 = lane
    v_readfirstlane_b32 s17, v1             ; s17 = wave
    s_lshl_b32 s18, s16, 3                  ; d0*8
    s_lshl_b32 s19, s16, 1                  ; d0*2
    s_waitcnt lgkmcnt(0)
    s_load_dwordx8 s[36:43], s[8:9], s18    ; shift_k[d0..d0+3][0..3]
    s_load_dwordx2 s[60:61], s[12:13], s19  ; ssm_D[d0..d0+3]
    """)
    srd(a, 20, 4, 4 * MB)
    srd(a, 24, 6, 4 * MB)
    srd(a, 28, 10, 4 * MB)
    srd(a, 32, 14, 4 * MB, off=WS_Z if WS_Z else None)
    a(f"""
    s_add_u32 s62, s16, s17
    s_lshl_b32 s62, s62, 12
    v_lshlrev_b32 v3, 4, v2
    """)
    HR = 100
    for i in range(4):
        a(f"buffer_load_dwordx4 {vr(HR + 8 * i, 4)}, v3, s[28:31], s62 offen offset:{1024 * i} {NTI}")
        a(f"buffer_load_dword {vr(HR + 8 * i + 4)}, v3, s[28:31], s62 offen offset:{1024 * i + 16} {NTI}")
    a(f"""
    v_lshlrev_b32 v4, 12, v0
    v_add_u32 v4, s19, v4
    v_subrev_u32 v7, {3 * 2048}, v4
    v_mov_b32 v6, 0x40000000
    v_cmp_eq_u32 vcc, 0, v2
    s_nop 1
    v_cndmask_b32 v5, v6, v4, vcc
    v_cndmask_b32 v7, v6, v7, vcc
    v_cmp_eq_u32 vcc, 0, v0
    s_nop 1
    v_cndmask_b32 v7, v7, v6, vcc
    s_mov_b32 s64, 0
    s_mov_b32 s65, {1 * MB}
    s_mov_b32 s66, {2 * MB}
    s_mov_b32 s67, {3 * MB}
    s_mov_b32 s68, 0
    s_mov_b32 s69, {1 * MB - 6144}
    s_mov_b32 s70, {2 * MB - 6144}
    s_mov_b32 s71, {3 * MB - 6144}
    s_mov_b32 s76, 4096
    s_mov_b32 s77, {1 * MB - 2048}
    s_mov_b32 s78, {2 * MB - 2048}
    s_mov_b32 s79, {3 * MB - 2048}
    """)
    RAW = [140, 156]

    def issue_q(q):
        b = RAW[q & 1]
        hv = "v7" if q == 0 else "v5"
        a(f"buffer_load_dwordx2 {vr(b + 0, 2)}, v4, s[20:23], s{64 + q} offen {NTI}")
        a(f"buffer_load_dwordx2 {vr(b + 2, 2)}, v4, s[20:23], s{64 + q} offen offset:2048 {NTI}")
        a(f"buffer_load_dwordx2 {vr(b + 4, 2)}, v4, s[24:27], s{64 + q} offen {NTI}")
        a(f"buffer_load_dwordx2 {vr(b + 6, 2)}, v4, s[24:27], s{64 + q} offen offset:2048 {NTI}")
        a(f"buffer_load_dwordx2 {vr(b + 8, 2)}, {hv}, s[20:23], s{68 + q} offen")
        a(f"buffer_load_dwordx2 {vr(b + 10, 2)}, {hv}, s[20:23], s{68 + q} offen offset:2048")
        a(f"buffer_load_dwordx2 {vr(b + 12, 2)}, {hv}, s[20:23], s{76 + q} offen")

    issue_q(0)
    a("s_barrier")
    issue_q(1)
    a("s_waitcnt lgkmcnt(0)")
    for j in range(4):
        for c in range(4):
            src = 36 + 2 * c + (j >> 1)
            dst = 44 + 4 * j + c
            if j & 1:
                a(f"s_and_b32 s{dst}, s{src}, 0xffff0000")
            else:
                a(f"s_lshl_b32 s{dst}, s{src}, 16")
    a(f"""
    s_cmp_ge_u32 s17, 2
    s_cselect_b32 s63, s61, s60
    s_lshl_b32 s72, s63, 16
    s_and_b32 s63, s63, 0xffff0000
    s_bitcmp1_b32 s17, 0
    s_cselect_b32 s63, s63, s72
    """)
    a(f"""
    s_mul_i32 s72, s17, {U_STRIDE}
    s_mul_i32 s73, s17, {2 * H_COPY}
    s_add_u32 s73, s73, {H_BASE}
    v_mov_b32 v8, 0
    v_mov_b32 v9, 0
    v_mov_b32 v10, 0
    v_mov_b32 v11, 0
    v_lshlrev_b32 v12, 3, v2
    v_add_u32 v12, s72, v12
    ds_write_b64 v12, v[8:9] offset:4096
    v_add_u32 v13, s73, v3
    s_waitcnt vmcnt(14)
    """)
    a(f"""
    v_readfirstlane_b32 s74, v{HR}
    v_and_b32 v14, 1, v2
    v_lshlrev_b32 v15, 4, v14
    v_add_u32 v15, s73, v15
    s_lshl_b32 s74, s74, 16
    v_mul_u32_u24 v16, 1, v14
    ds_write_b128 v15, v[8:11]
    v_mov_b32 v17, s74
    v_cmp_eq_u32 vcc, 1, v14
    v_mov_b32 v20, 0
    v_mov_b32 v21, 0
    v_mov_b32 v22, 0
    v_cndmask_b32 v23, 0, v17, vcc
    ds_write_b128 v15, v[20:23] offset:{H_COPY}
    """)
    for i in range(4):
        b = HR + 8 * i
        a(f"ds_write_b128 v13, {vr(b, 4)} offset:{32 + 1024 * i}")
        t = 24 + 4 * (i & 1)
        for d in range(4):
            a(f"v_alignbit_b32 v{t + d}, v{b + d + 1}, v{b + d}, 16")
        a(f"ds_write_b128 v13, {vr(t, 4)} offset:{H_COPY + 32 + 1024 * i}")
    a(f"""
    v_and_b32 v14, 15, v2                   ; a / i
    v_lshrrev_b32 v15, 4, v2                ; kq / q
    v_lshlrev_b32 v16, 4, v15
    v_lshl_add_u32 v16, v14, 1, v16         ; + 2a
    v_and_b32 v17, 1, v14
    v_cmp_eq_u32 vcc, 1, v17
    v_add_u32 v18, 2, v16
    v_add_u32 v19, {H_COPY}, v16
    v_cndmask_b32 v16, v19, v18, vcc
    v_add_u32 v16, s73, v16
    s_waitcnt lgkmcnt(0)
    """)
    for j in range(64):
        if j and j % 16 == 0:
            a("v_add_u32 v16, 1024, v16")
        o = (j % 16) * 16
        a(f"ds_read2_b32 {ar(4 * j, 2)}, v16 offset0:{o} offset1:{o + 1}")
        a(f"ds_read2_b32 {ar(4 * j + 2, 2)}, v16 offset0:{o + 2} offset1:{o + 3}")
    a(f"""
    v_lshlrev_b32 v17, 4, v15
    v_lshlrev_b32 v18, 5, v14
    v_sub_u32 v17, v17, v18
    v_add_u32 v17, 480, v17
    v_add_u32 v17, s72, v17
    """)
    a(f"""
    v_lshlrev_b32 v19, 3, v15
    v_add_u32 v19, v19, v18
    v_sub_u32 v18, {4088 - 3584}, v19
    v_add_u32 v18, s72, v18
    """)
    a(f"""
    v_lshlrev_b32 v19, 2, v0
    v_sub_u32 v19, {4092 - 3072}, v19
    """)
    a(f"""
    v_lshlrev_b32 v20, 15, v14              ; 2i*16384
    v_lshrrev_b32 v21, 1, v15
    v_lshlrev_b32 v21, 14, v21
    v_add_u32 v20, v20, v21
    v_and_b32 v21, 1, v15
    v_lshl_add_u32 v20, v21, 3, v20
    s_add_u32 s74, s16, s17
    s_lshl_b32 s74, s74, 4
    v_add_u32 v20, s74, v20
    """)
    ACC = 32
    for r in range(32):
        a(f"v_mov_b32 v{ACC + r}, 0")
    BF = [64, 68, 72, 76]
    KF = 176
    VF = 196
    KS = 204
    PK = 212

    def compute_q(q):
        b = RAW[q & 1]
        for d in range(2):
            a(f"v_mov_b32_dpp v{b + 12 + d}, v{b + 2 + d} wave_shr:1 row_mask:0xf bank_mask:0xf")
        for d in range(2):
            a(f"v_mov_b32_dpp v{b + 10 + d}, v{b + 0 + d} wave_shr:1 row_mask:0xf bank_mask:0xf")
        a("s_nop 0")
        for d in range(2):
            a(f"v_mov_b32_dpp v{b + 8 + d}, v{b + 12 + d} wave_shr:1 row_mask:0xf bank_mask:0xf")
        src = [b + 8, b + 10, b + 12, b + 0, b + 2]
        for r in [3, 4, 2, 1, 0]:
            for p in range(2):
                a(f"v_lshlrev_b32 v{KF + 4 * r + 2 * p}, 16, v{src[r] + p}")
                a(f"v_and_b32 v{KF + 4 * r + 2 * p + 1}, 0xffff0000, v{src[r] + p}")
        for r in range(2):
            for p in range(2):
                a(f"v_lshlrev_b32 v{VF + 4 * r + 2 * p}, 16, v{b + 4 + 2 * r + p}")
                a(f"v_and_b32 v{VF + 4 * r + 2 * p + 1}, 0xffff0000, v{b + 4 + 2 * r + p}")
        for j in range(4):
            for r in range(2):
                for p in range(2):
                    kreg = vr(KF + 4 * (3 + r - j) + 2 * p, 2)
                    w = sr(44 + 4 * j + 2 * p, 2)
                    d = vr(KS + 4 * r + 2 * p, 2)
                    if j == 0:
                        a(f"v_pk_mul_f32 {d}, {kreg}, {w}")
                    else:
                        a(f"v_pk_fma_f32 {d}, {kreg}, {w}, {d}")
        for r in range(2):
            for p in range(2):
                d = vr(KS + 4 * r + 2 * p, 2)
                a(f"v_pk_mul_f32 {d}, {d}, {vr(VF + 4 * r + 2 * p, 2)}")
        for c in range(4):
            a(f"v_cvt_pk_bf16_f32 v{PK + c}, v{KS + 4 + c}, v{KS + c}")
        for c in range(4):
            a(f"ds_write_b32 v19, v{PK + c} offset:{3072 - 1024 * q + c * U_STRIDE}")

    def mfma_e(e):
        seq = [(jp) for jp in range(8)]
        def rd(jp):
            a(f"ds_read_b128 {vr(BF[jp & 3], 4)}, v17 offset:{3584 - 512 * e + 64 * jp}")
        for jp in range(3):
            rd(jp)
        for jp in seq:
            if jp + 3 < 8:
                rd(jp + 3)
                a("s_waitcnt lgkmcnt(3)")
            else:
                a(f"s_waitcnt lgkmcnt({7 - jp})")
            for m in range(8 - e):
                acc = vr(ACC + 4 * (e + m), 4)
                a(f"v_mfma_f32_16x16x32_bf16 {acc}, {ar(4 * (jp + 8 * m), 4)}, {vr(BF[jp & 3], 4)}, {acc}")

    def epilogue_c(c):
        t = 80 + 8 * (c & 1)
        a(f"ds_read_b64 {vr(t, 2)}, v18 offset:{3584 - 512 * c}")
        a("s_waitcnt lgkmcnt(0)")
        a(f"v_and_b32 v{t + 2}, 0xffff0000, v{t + 1}")
        a(f"v_lshlrev_b32 v{t + 3}, 16, v{t + 1}")
        a(f"v_and_b32 v{t + 4}, 0xffff0000, v{t}")
        a(f"v_lshlrev_b32 v{t + 5}, 16, v{t}")
        for r in range(4):
            a(f"v_fma_f32 v{t + 2 + r}, v{t + 2 + r}, s63, v{ACC + 4 * c + r}")
        a(f"v_cvt_pk_bf16_f32 v{t}, v{t + 2}, v{t + 3}")
        a(f"v_cvt_pk_bf16_f32 v{t + 1}, v{t + 4}, v{t + 5}")
        a(f"s_mov_b32 s75, {c * 32 * 16384}")
        a(f"buffer_store_dwordx2 {vr(t, 2)}, v20, s[32:35], s75 offen {STZ}")

    stamp(a, 2)
    stores = 0
    for q in range(4):
        if q == 0:
            a("s_waitcnt vmcnt(7)")
        elif q == 1:
            a("s_waitcnt vmcnt(7)")
        elif q == 2:
            a("s_waitcnt vmcnt(9)")
        else:
            a("s_waitcnt vmcnt(4)")
        stamp(a, 3 + q)
        compute_q(q)
        if q + 2 < 4:
            issue_q(q + 2)
        a("s_waitcnt lgkmcnt(0)")
        a("s_barrier")
        mfma_e(2 * q)
        if q > 0:
            epilogue_c(2 * q - 2)
            epilogue_c(2 * q - 1)
        mfma_e(2 * q + 1)
    a("s_nop 7")
    epilogue_c(6)
    epilogue_c(7)
    stamp(a, 7)
    stamp_flush(a, 0, 10)
    kernel_end(a, name)
    return name, descriptor(name, 256, 256, 96), (256, 256, CONV_LDS)


LN_LDS = 16384 + 512


def bf16_round(a, v, tmp=None):
    a(f"v_cvt_pk_bf16_f32 {v}, {v}, {v}")
    a(f"v_and_b32 {v}, 0xffff0000, {v}")


def pf1(a):
    pf = opt("pf1nt", "").replace("-", "")
    a(f"""
    s_load_dwordx4 s[28:31], s[0:1], {KA_WG}
    v_and_b32 v122, 7, v2
    v_min_u32 v122, 6, v122
    v_lshlrev_b32 v122, 7, v122
    v_mul_u32_u24 v123, 7168, v4
    v_add_u32 v122, v122, v123
    s_lshr_b32 s36, s2, 3
    s_lshl_b32 s36, s36, 5
    s_and_b32 s37, s17, 1
    s_lshl_b32 s37, s37, 4
    s_add_u32 s36, s36, s37
    s_mul_i32 s36, s36, 7168
    s_add_u32 s37, s2, {opt('pf1x', 0)}
    s_and_b32 s37, s37, 7
    s_mul_i32 s37, s37, 896
    s_add_u32 s36, s36, s37
    s_add_u32 s37, s36, {8 * 7168}
    s_waitcnt lgkmcnt(0)
    s_cmp_ge_u32 s17, 2
    s_cselect_b32 s32, s30, s28
    s_cselect_b32 s33, s31, s29
    s_mov_b32 s34, {1024 * 3584 * 2}
    s_mov_b32 s35, 0x20000
    """)
    b2b = opt("b2b", "").replace("-", " ").replace("+", " ")
    a(f"buffer_load_dword v120, v122, s[32:35], s36 offen {pf}")
    if opt("b2bm", 0) == 1:
        a(f"buffer_load_dword v124, v122, s[32:35], s36 offen {b2b}")
    a(f"buffer_load_dword v121, v122, s[32:35], s37 offen {pf}")
    if opt("b2bm", 0) == 2:
        a(f"buffer_load_dword v124, v122, s[32:35], s36 offen {b2b}")
    if opt("b2bm", 0):
        a(f"buffer_load_dword v125, v122, s[32:35], s37 offen {b2b}")


def gen_ln(a):
    name = "ln_kernel"
    kernel_begin(a, name, 256)
    a(f"""
    s_load_dwordx2 s[4:5], s[0:1], {KA_Q}
    s_load_dwordx2 s[6:7], s[0:1], {KA_WS}
    v_lshrrev_b32 v1, 6, v0
    v_and_b32 v2, 63, v0                    ; lane
    v_readfirstlane_b32 s17, v1             ; wave
    v_and_b32 v3, 7, v2                     ; r
    v_lshrrev_b32 v4, 3, v2                 ; o
    s_waitcnt lgkmcnt(0)
    """)
    srd(a, 8, 4, 4 * MB)
    srd(a, 12, 6, 4 * MB)
    srd(a, 20, 6, 4 * MB, off=WS_H)
    srd(a, 24, 6, 4 * MB, off=WS_LN)
    a(f"""
    s_lshl_b32 s18, s2, 14
    s_lshl_b32 s19, s17, 12
    s_add_u32 s18, s18, s19
    v_lshlrev_b32 v5, 4, v2
    s_mov_b32 m0, s19
    s_nop 0
    buffer_load_dwordx4 v5, s[12:15], s18 offen lds
    buffer_load_dwordx4 v5, s[12:15], s18 offen offset:1024 lds
    buffer_load_dwordx4 v5, s[12:15], s18 offen offset:2048 lds
    buffer_load_dwordx4 v5, s[12:15], s18 offen offset:3072 lds
    """)
    a(f"""
    v_lshlrev_b32 v6, 11, v3
    v_lshl_add_u32 v6, v4, 4, v6
    s_lshl_b32 s18, s2, 14
    s_lshl_b32 s19, s17, 9
    s_add_u32 s18, s18, s19
    """)
    QR = 16
    for it in range(4):
        a(f"buffer_load_dwordx4 {vr(QR + 4 * it, 4)}, v6, s[8:11], s18 offen offset:{128 * it} {NTI}")
    if opt('pf1', 1) == 1:
        pf1(a)
    a(f"""
    v_lshrrev_b32 v7, 4, v2
    v_lshlrev_b32 v7, 8, v7                 ; (l>>4)*256
    v_bfe_u32 v8, v2, 1, 1
    v_lshl_add_u32 v7, v8, 7, v7
    v_bfe_u32 v8, v2, 2, 2
    v_lshl_add_u32 v7, v8, 4, v7
    v_and_b32 v8, 1, v2
    v_lshl_add_u32 v7, v8, 3, v7
    s_lshl_b32 s19, s17, 12
    v_add_u32 v7, s19, v7
    """)
    a(f"""
    v_lshlrev_b32 v9, 5, v3
    v_add_u32 v9, 16384, v9
    s_lshl_b32 s19, s17, 3
    v_add_u32 v10, s19, v9
    """)
    XF = 32
    ZR = 64
    ZF = 80
    a(f"s_waitcnt vmcnt({(4 if opt('b2bm', 0) else 2) if opt('pf1', 1) == 1 else 0})")
    stamp(a, 2)
    for it in range(4):
        for half in range(2):
            a(f"ds_read_b64_tr_b16 {vr(ZR + 4 * it + 2 * half, 2)}, v7 offset:{it * 1024 + half * 64}")
    for i in range(16):
        a(f"v_lshlrev_b32 v{XF + 2 * i}, 16, v{QR + i}")
        a(f"v_and_b32 v{XF + 2 * i + 1}, 0xffff0000, v{QR + i}")

    def stats(src, rnd):
        a(f"v_pk_add_f32 v[112:113], {vr(src, 2)}, {vr(src + 2, 2)}")
        a(f"v_pk_mul_f32 v[114:115], {vr(src, 2)}, {vr(src, 2)}")
        a(f"v_pk_fma_f32 v[114:115], {vr(src + 2, 2)}, {vr(src + 2, 2)}, v[114:115]")
        for i in range(2, 16):
            a(f"v_pk_add_f32 v[112:113], v[112:113], {vr(src + 2 * i, 2)}")
            a(f"v_pk_fma_f32 v[114:115], {vr(src + 2 * i, 2)}, {vr(src + 2 * i, 2)}, v[114:115]")
        a(f"""
        v_add_f32 v12, v112, v113
        v_add_f32 v13, v114, v115
        s_nop 1
        v_add_f32_dpp v12, v12, v12 row_ror:8 row_mask:0xf bank_mask:0xf
        v_add_f32_dpp v13, v13, v13 row_ror:8 row_mask:0xf bank_mask:0xf
        v_mov_b32 v14, v12
        v_mov_b32 v15, v13
        s_nop 1
        v_permlane16_swap_b32 v12, v14
        v_permlane16_swap_b32 v13, v15
        s_nop 1
        v_add_f32 v12, v12, v14
        v_add_f32 v13, v13, v15
        v_mov_b32 v14, v12
        v_mov_b32 v15, v13
        s_nop 1
        v_permlane32_swap_b32 v12, v14
        v_permlane32_swap_b32 v13, v15
        s_nop 1
        v_add_f32 v12, v12, v14
        v_add_f32 v13, v13, v15
        ds_write_b64 v10, v[12:13] offset:{256 * rnd}
        s_waitcnt lgkmcnt(0)
        s_barrier
        ds_read_b128 v[112:115], v9 offset:{256 * rnd}
        ds_read_b128 v[116:119], v9 offset:{256 * rnd + 16}
        s_waitcnt lgkmcnt(0)
        v_pk_add_f32 v[112:113], v[112:113], v[114:115]
        v_pk_add_f32 v[116:117], v[116:117], v[118:119]
        v_pk_add_f32 v[112:113], v[112:113], v[116:117]
        v_mul_f32 v12, {hex(f32bits(1.0 / 1024))}, v112      ; mean
        v_mul_f32 v13, {hex(f32bits(1.0 / 1024))}, v113      ; E[x^2]
        v_fma_f32 v13, -v12, v12, v13                        ; var
        v_max_f32 v13, 0, v13
        """)
        bf16_round(a, "v12")
        bf16_round(a, "v13")
        a(f"v_add_f32 v13, {hex(f32bits(1e-5))}, v13")
        bf16_round(a, "v13")
        a("v_sqrt_f32 v13, v13")
        a("s_nop 0")
        bf16_round(a, "v13")
        a("v_rcp_f32 v13, v13")
        a("s_nop 0")

    stats(XF, 0)
    stamp(a, 3)
    for i in range(16):
        a(f"v_lshlrev_b32 v{ZF + 2 * i}, 16, v{ZR + i}")
        a(f"v_and_b32 v{ZF + 2 * i + 1}, 0xffff0000, v{ZR + i}")
    a("v_mul_f32 v14, v12, v13")
    a("v_sub_f32 v14, 0, v14")
    a("v_mov_b32 v15, v14")
    a("v_mov_b32 v12, v13")
    for i in range(16):
        x = vr(XF + 2 * i, 2)
        z = vr(ZF + 2 * i, 2)
        a(f"v_pk_fma_f32 v[112:113], {x}, v[12:13], v[14:15]")
        a(f"v_pk_fma_f32 {z}, v[112:113], {z}, {x}")
        a(f"v_cvt_pk_bf16_f32 v{QR + i}, v{ZF + 2 * i}, v{ZF + 2 * i + 1}")
    a(f"""
    v_lshlrev_b32 v6, 9, v4
    v_lshl_add_u32 v6, v3, 4, v6
    s_lshr_b32 s18, s2, 2
    s_lshl_b32 s18, s18, 16
    s_and_b32 s19, s2, 3
    s_lshl_b32 s19, s19, 7
    s_add_u32 s18, s18, s19
    s_lshl_b32 s19, s17, 14
    s_add_u32 s18, s18, s19
    """)
    for it in range(4):
        a(f"buffer_store_dwordx4 {vr(QR + 4 * it, 4)}, v6, s[20:23], s18 offen {STL}")
        if it < 3:
            a("s_add_u32 s18, s18, 4096")
    for i in range(16):
        a(f"v_lshlrev_b32 v{XF + 2 * i}, 16, v{QR + i}")
        a(f"v_and_b32 v{XF + 2 * i + 1}, 0xffff0000, v{QR + i}")
    stats(XF, 1)
    stamp(a, 4)
    a("v_mul_f32 v14, v12, v13")
    a("v_sub_f32 v14, 0, v14")
    a("v_mov_b32 v15, v14")
    a("v_mov_b32 v12, v13")
    for i in range(16):
        x = vr(XF + 2 * i, 2)
        a(f"v_pk_fma_f32 {x}, {x}, v[12:13], v[14:15]")
        a(f"v_cvt_pk_bf16_f32 v{ZR + i}, v{XF + 2 * i}, v{XF + 2 * i + 1}")
    a(f"""
    v_lshrrev_b32 v6, 1, v4
    v_lshlrev_b32 v6, 11, v6
    v_and_b32 v7, 1, v4
    v_lshl_add_u32 v6, v7, 9, v6
    v_lshl_add_u32 v6, v3, 4, v6
    s_lshr_b32 s18, s2, 3
    s_lshl_b32 s18, s18, 17
    s_bfe_u32 s19, s2, 0x10002
    s_lshl_b32 s19, s19, 10
    s_add_u32 s18, s18, s19
    s_and_b32 s19, s2, 3
    s_lshl_b32 s19, s19, 7
    s_add_u32 s18, s18, s19
    s_lshl_b32 s19, s17, 15
    s_add_u32 s18, s18, s19
    """)
    for it in range(4):
        a(f"buffer_store_dwordx4 {vr(ZR + 4 * it, 4)}, v6, s[24:27], s18 offen {STL}")
        if it < 3:
            a("s_add_u32 s18, s18, 8192")
    if opt('pf1', 1) == 2:
        pf1(a)
    if opt('rt1', ''):
        f = opt('rt1', '').replace("-", "").replace("+", " ")
        a(f"buffer_load_dword v120, v122, s[32:35], s36 offen {f}")
        a(f"buffer_load_dword v121, v122, s[32:35], s37 offen {f}")
    stamp(a, 5)
    stamp_flush(a, 1, 8)
    kernel_end(a, name)
    return name, descriptor(name, 128, 0, 40), (256, 256, LN_LDS)


def gemm_loop(a, tag, NST, DEPTH, RING, STAGE, KADV, dma_items, wread_ops, mfmas, addr_update, AF, init_acc,
              pro_limit=None):
    UN = DEPTH // 4
    assert NST % UN == 0
    LDS = STAGE * RING
    nd = len(dma_items)
    base, rem = divmod(nd, 4)
    split = [base + (1 if i < rem else 0) for i in range(4)]

    def w_item(st, i):
        ins = list(dma_items[i])
        if i == nd - 1:
            ins += [f"s_add_u32 s34, s34, {KADV}", f"s_add_u32 s35, s35, {STAGE}",
                    f"s_cmp_ge_u32 s35, {LDS}", "s_cselect_b32 s35, s33, s35"]
        return (("W", st), ins)

    def a_items(idx):
        b = AF + 8 * (idx % DEPTH)
        return [(("A", idx), [f"buffer_load_dwordx4 {ar(b, 4)}, v15, s[28:31], s36 offen {NTA}"]),
                (("A", idx), [f"buffer_load_dwordx4 {ar(b + 4, 4)}, v15, s[28:31], s36 offen offset:1024 {NTA}",
                              "s_add_u32 s36, s36, 2048"])]

    def items_at(g):
        out = []
        ai = g - 1 + DEPTH
        A = a_items(ai) if ai >= 0 else []
        ph = (g + 1) % 4
        st = (g + 1) // 4 - 1 + RING
        lo = sum(split[:ph])
        W = [w_item(st, i) for i in range(lo, lo + split[ph])] if st >= 0 else []
        while A or W:
            if A:
                out.append(A.pop(0))
            if W:
                out.append(W.pop(0))
        return out

    order = []

    def cnt_after(t):
        idx = max(i for i, x in enumerate(order) if x == t)
        return len(order) - 1 - idx

    def emit_ins(ins):
        for x in ins:
            a(x)
            if " m0," in x:
                a("s_nop 0")

    a("s_mov_b32 s34, 0")
    a("s_mov_b32 s35, s33")
    a("s_mov_b32 s36, 0")
    backlog = []
    for g in range(-4 * RING - DEPTH, 0):
        backlog += items_at(g)
    npro = len(backlog) if pro_limit is None else pro_limit
    for t, ins in backlog[:npro]:
        emit_ins(ins)
        order.append(t)
    backlog = backlog[npro:]
    init_acc()
    stamp(a, 2)
    a(f"s_waitcnt vmcnt({cnt_after(('W', 0))})")
    a("s_barrier")
    stamp(a, 3)
    a("s_mov_b32 s37, 0")
    for op in addr_update():
        emit_ins(op)
    a(f"s_mov_b32 s37, {STAGE}")
    for op in wread_ops(0, 0):
        emit_ins(op)

    def body(it, waits, emit, backlog):
        for us in range(UN):
            st = it * UN + us
            for j in range(4):
                g = 4 * st + j
                buf = g & 1
                wv = cnt_after(("A", g))
                if j == 3:
                    assert order.count(("W", st + 1)) == nd
                    wv = min(wv, cnt_after(("W", st + 1)))
                k = 4 * us + j
                waits[k] = min(waits.get(k, 63), wv)
                fill = []
                if j == 3:
                    fill += addr_update()
                    fill += wread_ops(buf ^ 1, 0)
                    fill.append([f"s_add_u32 s37, s37, {STAGE}", f"s_cmp_ge_u32 s37, {LDS}", "s_cselect_b32 s37, 0, s37"])
                else:
                    fill += wread_ops(buf ^ 1, j + 1)
                mine = items_at(g)
                if backlog is not None:
                    n = len(mine)
                    backlog += mine
                    left = 4 * UN - k
                    take = n + -(-(len(backlog) - n) // left)
                    mine = backlog[:take]
                    del backlog[:take]
                vm = [ins for _, ins in mine]
                order.extend(t for t, _ in mine)
                if emit:
                    a(f"s_waitcnt vmcnt({waits[k]}) lgkmcnt(0)")
                    if j == 3:
                        a("s_barrier")
                    mf = mfmas(buf, AF + 8 * (g % DEPTH))
                    n = len(mf)
                    slots = [[] for _ in range(n)]
                    per = max(2, -(-len(fill) // n))
                    for i, op in enumerate(fill):
                        slots[min(i // per, n - 1)].append(op)
                    for i, op in enumerate(vm):
                        slots[min(n - 1, ((2 * i + 1) * n) // (2 * len(vm)))].append(op)
                    for i, m in enumerate(mf):
                        a(m)
                        for op in slots[i]:
                            emit_ins(op)

    first = 0
    if pro_limit is not None:
        body(0, {}, True, backlog)
        assert not backlog
        first = 1
    waits = {}
    saved = list(order)
    for it in range(first, NST // UN):
        body(it, waits, False, None)
    assert max(waits.values()) <= 63
    order[:] = saved
    a(f"s_mov_b32 s38, {NST // UN - first}")
    a.raw(".p2align 6")
    a.label(f"L_{tag}_loop")
    body(first, waits, True, None)
    a("s_sub_u32 s38, s38, 1")
    a("s_cmp_lg_u32 s38, 0")
    a(f"s_cbranch_scc1 L_{tag}_loop")
    stamp(a, 4)


G1_UPOFF = 14336 + 128
G1_STAGE = G1_UPOFF + 14336
G1_RING = opt('r1', 5)


def pf2(a):
    pf = opt("pf2nt", "").replace("-", "")
    n = opt("pf2n", 4)
    a(f"""
    s_load_dwordx2 s[46:47], s[0:1], {KA_WD}
    v_lshrrev_b32 v6, 3, v2
    v_lshlrev_b32 v6, 11, v6
    v_and_b32 v7, 7, v2
    v_lshl_add_u32 v6, v7, 7, v6
    s_lshr_b32 s23, s2, 3
    s_lshl_b32 s23, s23, 14
    s_add_u32 s32, s2, {opt('pf2x', 0)}
    s_and_b32 s32, s32, 1
    s_lshl_b32 s32, s32, 10
    s_add_u32 s23, s23, s32
    s_lshl_b32 s32, s17, 19
    s_add_u32 s23, s23, s32
    s_waitcnt lgkmcnt(0)
    """)
    srd(a, 48, 46, 3584 * 1024 * 2)
    for i in range(n):
        a(f"buffer_load_dword v{8 + i}, v6, s[48:51], s23 offen {pf}")
        a(f"s_add_u32 s23, s23, {1024 * 2048}")


def gen_gemm1(a, DEPTH=opt('d1', 16)):
    name = "gemm1_kernel"
    kernel_begin(a, name, 256)
    a(f"""
    s_load_dwordx4 s[4:7], s[0:1], {KA_WG}
    s_load_dwordx2 s[8:9], s[0:1], {KA_WS}
    v_lshrrev_b32 v1, 6, v0
    v_and_b32 v2, 63, v0
    v_readfirstlane_b32 s17, v1             ; wave
    s_lshr_b32 s18, s2, 5                   ; mt
    s_and_b32 s19, s2, 7
    s_lshl_b32 s19, s19, 2
    s_bfe_u32 s20, s2, 0x20003
    s_add_u32 s19, s19, s20                 ; nt
    s_waitcnt lgkmcnt(0)
    s_cmp_ge_u32 s17, 2
    s_cselect_b32 s24, s6, s4
    s_cselect_b32 s25, s7, s5
    s_mov_b32 s26, {1024 * 3584 * 2}
    s_mov_b32 s27, 0x20000
    s_lshl_b32 s20, s18, 2
    s_add_u32 s20, s20, s17                 ; m64 block
    s_lshl_b32 s21, s20, 17
    s_add_u32 s21, s21, {WS_LN}
    s_add_u32 s28, s8, s21
    s_addc_u32 s29, s9, 0
    s_mov_b32 s30, 131072
    s_mov_b32 s31, 0x20000
    """)
    srd(a, 40, 8, 2048 * 3584 * 2, off=WS_HH)
    ACC = 32
    a(f"""
    s_mul_i32 s21, s19, 224
    s_and_b32 s22, s17, 1
    s_mul_i32 s23, s22, {32 * 7168}
    s_add_u32 s21, s21, s23
    s_mov_b32 s23, {(1 << 20) // 14 + 1}
    s_movk_i32 s32, 7168
    """)
    for i in range(7):
        a(f"""
        v_add_u32 v3, {64 * i}, v2
        v_mul_lo_u32 v4, v3, s23
        v_lshrrev_b32 v4, 20, v4
        v_mul_u32_u24 v5, 14, v4
        v_sub_u32 v5, v3, v5
        v_mul_lo_u32 v4, v4, s32
        v_lshl_add_u32 v4, v5, 4, v4
        v_add_u32 v4, s21, v4
        v_subrev_u32 v{8 + i}, {1024 * (i % 4)}, v4
        """)
    a(f"""
    s_lshr_b32 s33, s17, 1
    s_mul_i32 s33, s33, {G1_UPOFF}
    s_mul_i32 s22, s22, 7168
    s_add_u32 s33, s33, s22
    v_lshlrev_b32 v15, 4, v2
    v_bfe_u32 v3, v2, 4, 1
    v_mul_u32_u24 v16, {G1_UPOFF}, v3
    v_lshrrev_b32 v3, 5, v2
    v_lshlrev_b32 v3, 3, v3
    v_bfe_u32 v4, v2, 2, 2
    v_add_u32 v3, v3, v4
    v_mul_u32_u24 v3, 224, v3
    v_add_u32 v16, v16, v3
    v_and_b32 v3, 1, v2
    v_lshl_add_u32 v16, v3, 4, v16
    v_bfe_u32 v3, v2, 1, 1
    v_lshl_add_u32 v16, v3, 3, v16
    """)
    WF = [0, 28]
    AF = 56
    dma = [[f"buffer_load_dwordx4 v{8 + i}, s[24:27], s34 offen offset:{1024 * (i & 3)} {NTW1} lds"] for i in range(7)]
    dma[0].insert(0, "s_mov_b32 m0, s35")
    dma[4].insert(0, "s_add_u32 m0, s35, 4096")

    def wread_ops(buf, sub):
        return [[f"ds_read_b64_tr_b16 {ar(WF[buf] + 4 * t + 2 * rd, 2)}, v17 offset:{(16 * sub + 4 * rd) * 224 + 32 * t}"]
                for t in range(7) for rd in range(2)]

    def mfmas(buf, af):
        out = []
        for t in range(7):
            for mb in range(2):
                acc = vr(ACC + 16 * (2 * t + mb), 16)
                out.append(f"v_mfma_f32_32x32x16_bf16 {acc}, {ar(WF[buf] + 4 * t, 4)}, {ar(af + 4 * mb, 4)}, {acc}")
        return out

    def addr_update():
        return [["v_add_u32 v17, s37, v16"]]

    def init_acc():
        for r in range(224):
            a(f"v_mov_b32 v{ACC + r}, 0")

    gemm_loop(a, "g1", 16, DEPTH, G1_RING, G1_STAGE, 64 * 7168, dma, wread_ops, mfmas, addr_update, AF, init_acc,
              pro_limit=(opt('p1', 0) or None))
    c = 0.7978845608028654
    k0 = -2.0 * c * 1.4426950408889634
    k1 = k0 * 0.044715
    a(f"""
    s_mov_b32 s44, {hex(f32bits(k1))}
    s_mov_b32 s45, {hex(f32bits(k1))}
    v_mov_b32 v4, {hex(f32bits(k0))}
    v_mov_b32 v5, {hex(f32bits(k0))}
    s_lshl_b32 s21, s20, 1
    s_mul_i32 s21, s21, {224 * 1024}
    s_mul_i32 s22, s19, {7 * 1024}
    s_add_u32 s21, s21, s22
    s_add_u32 s22, s21, {224 * 1024}
    s_nop 7
    """)
    if opt('pf2', 1) == 1:
        pf2(a)
    T = 16
    for t in range(7):
        for mb in range(2):
            C = ACC + 16 * (2 * t + mb)
            g = [vr(C + 2 * p, 2) for p in range(4)]
            u = [vr(C + 8 + 2 * p, 2) for p in range(4)]
            tt = [vr(T + 2 * p, 2) for p in range(4)]
            for p in range(4):
                a(f"v_pk_mul_f32 {tt[p]}, {g[p]}, {g[p]}")
            for p in range(4):
                a(f"v_pk_fma_f32 {tt[p]}, {tt[p]}, s[44:45], v[4:5]")
            for p in range(4):
                a(f"v_pk_mul_f32 {tt[p]}, {tt[p]}, {g[p]}")
            for i in range(8):
                a(f"v_exp_f32 v{T + i}, v{T + i}")
            for p in range(4):
                a(f"v_pk_mul_f32 {u[p]}, {u[p]}, {g[p]}")
            for p in range(4):
                a(f"v_pk_add_f32 {tt[p]}, {tt[p]}, 1.0 op_sel_hi:[1,0]")
            for i in range(8):
                a(f"v_rcp_f32 v{T + i}, v{T + i}")
            a("s_nop 0")
            for p in range(4):
                a(f"v_pk_mul_f32 {u[p]}, {u[p]}, {tt[p]}")
            for p in range(4):
                a(f"v_cvt_pk_bf16_f32 v{C + p}, v{C + 8 + 2 * p}, v{C + 9 + 2 * p}")
            so = "s21" if mb == 0 else "s22"
            if t < 4:
                a(f"buffer_store_dwordx4 {vr(C, 4)}, v15, s[40:43], {so} offen offset:{1024 * t} {STH}")
            else:
                if t == 4:
                    a(f"s_add_u32 {so}, {so}, 4096")
                a(f"buffer_store_dwordx4 {vr(C, 4)}, v15, s[40:43], {so} offen offset:{1024 * (t - 4)} {STH}")
    if opt('pf2', 1) == 2:
        pf2(a)
    if opt('rt2', ''):
        f = opt('rt2', '').replace("-", "").replace("+", " ")
        for i in range(opt("pf2n", 4)):
            a(f"s_sub_u32 s23, s23, {1024 * 2048}")
            a(f"buffer_load_dword v{8 + i}, v6, s[48:51], s23 offen {f}")
    stamp(a, 5)
    stamp_flush(a, 2, 8)
    kernel_end(a, name)
    return name, descriptor(name, 256, AF + 8 * DEPTH, 64), (256, 256, G1_STAGE * G1_RING)


G2_STAGE = 16384
G2_RING = opt('r2', 5)


def gen_gemm2(a, DEPTH=opt('d2', 16)):
    name = "gemm2_kernel"
    kernel_begin(a, name, 256)
    a(f"""
    s_load_dwordx4 s[4:7], s[0:1], {KA_WD}
    s_load_dwordx2 s[8:9], s[0:1], {KA_WS}
    v_lshrrev_b32 v1, 6, v0
    v_and_b32 v2, 63, v0
    v_readfirstlane_b32 s17, v1             ; wave
    s_bfe_u32 s18, s2, 0x20001
    s_lshl_b32 s18, s18, 2
    s_lshr_b32 s20, s2, 6
    s_add_u32 s18, s18, s20                 ; mt
    s_and_b32 s19, s2, 1
    s_lshl_b32 s19, s19, 3
    s_bfe_u32 s20, s2, 0x30003
    s_add_u32 s19, s19, s20                 ; nt
    s_lshl_b32 s20, s18, 2
    s_add_u32 s20, s20, s17
    s_mul_i32 s21, s20, {224 * 1024}
    s_add_u32 s21, s21, {WS_HH}
    s_waitcnt lgkmcnt(0)
    s_add_u32 s28, s8, s21
    s_addc_u32 s29, s9, 0
    s_mov_b32 s30, {224 * 1024}
    s_mov_b32 s31, 0x20000
    """)
    srd(a, 24, 4, 3584 * 1024 * 2)
    srd(a, 40, 6, 4 * MB)
    srd(a, 44, 8, 4 * MB, off=WS_H)
    ACC = 32
    HR = 64
    a(f"""
    v_lshrrev_b32 v3, 3, v2
    v_lshlrev_b32 v3, 11, v3
    v_bfe_u32 v4, v2, 4, 1
    v_lshlrev_b32 v4, 2, v4
    v_and_b32 v5, 7, v2
    v_xor_b32 v4, v4, v5
    v_lshl_add_u32 v3, v4, 4, v3
    s_lshl_b32 s21, s19, 7
    s_lshl_b32 s22, s17, 16
    s_add_u32 s21, s21, s22
    v_add_u32 v8, s21, v3
    v_add_u32 v9, {16384 - 1024}, v8
    v_add_u32 v10, {16384 - 1024}, v9
    v_add_u32 v11, {16384 - 1024}, v10
    s_lshl_b32 s33, s17, 12
    v_lshlrev_b32 v15, 4, v2
    """)
    a(f"""
    s_lshl_b32 s21, s20, 16
    s_lshl_b32 s22, s19, 12
    s_add_u32 s21, s21, s22
    """)
    for i in range(4):
        a(f"buffer_load_dwordx4 {vr(HR + 4 * i, 4)}, v15, s[44:47], s21 offen offset:{1024 * i}")
    a(f"""
    v_lshrrev_b32 v3, 5, v2
    v_lshlrev_b32 v3, 3, v3
    v_bfe_u32 v4, v2, 2, 2
    v_add_u32 v3, v3, v4
    v_lshlrev_b32 v16, 7, v3
    v_bfe_u32 v3, v2, 4, 1
    v_lshl_add_u32 v16, v3, 5, v16
    v_and_b32 v3, 1, v2
    v_lshl_add_u32 v16, v3, 4, v16
    v_bfe_u32 v3, v2, 1, 1
    v_lshl_add_u32 v16, v3, 3, v16
    v_bfe_u32 v3, v2, 3, 1
    v_lshl_add_u32 v16, v3, 6, v16
    v_xor_b32 v17, 64, v16
    """)
    WF = [0, 16]
    AF = 32
    dma = [[f"buffer_load_dwordx4 v{8 + i}, s[24:27], s34 offen offset:{1024 * i} {NTW2} lds"] for i in range(4)]
    dma[0].insert(0, "s_mov_b32 m0, s35")

    def wread_ops(buf, sub):
        return [[f"ds_read_b64_tr_b16 {ar(WF[buf] + 8 * kk + 4 * t + 2 * rd, 2)}, v{18 + t} offset:{(32 * sub + 16 * kk + 4 * rd) * 128}"]
                for kk in range(2) for t in range(2) for rd in range(2)]

    def mfmas(buf, af):
        out = []
        for kk in range(2):
            for t in range(2):
                acc = vr(ACC + 16 * t, 16)
                out.append(f"v_mfma_f32_32x32x16_bf16 {acc}, {ar(WF[buf] + 8 * kk + 4 * t, 4)}, {ar(af + 4 * kk, 4)}, {acc}")
        return out

    def addr_update():
        return [["v_add_u32 v18, s37, v16", "v_add_u32 v19, s37, v17"]]

    def init_acc():
        for r in range(32):
            a(f"v_mov_b32 v{ACC + r}, 0")

    gemm_loop(a, "g2", 28, DEPTH, G2_RING, G2_STAGE, 128 * 2048, dma, wread_ops, mfmas, addr_update, AF, init_acc,
              pro_limit=(opt('p2', 0) or None))
    a(f"""
    v_and_b32 v3, 31, v2
    v_lshlrev_b32 v3, 11, v3
    v_lshrrev_b32 v4, 5, v2
    v_lshl_add_u32 v3, v4, 4, v3
    s_lshl_b32 s21, s20, 16
    s_lshl_b32 s22, s19, 7
    s_add_u32 s21, s21, s22
    s_nop 7
    s_nop 7
    """)
    for g in range(4):
        C = ACC + 8 * g
        for p in range(4):
            a(f"v_cvt_pk_bf16_f32 v20, v{C + 2 * p}, v{C + 2 * p + 1}")
            a(f"v_lshlrev_b32 v22, 16, v{HR + 4 * g + p}")
            a(f"v_and_b32 v23, 0xffff0000, v{HR + 4 * g + p}")
            a(f"v_and_b32 v21, 0xffff0000, v20")
            a(f"v_lshlrev_b32 v20, 16, v20")
            a(f"v_pk_add_f32 v[20:21], v[20:21], v[22:23]")
            a(f"v_cvt_pk_bf16_f32 v{HR + 4 * g + p}, v20, v21")
        a(f"buffer_store_dwordx4 {vr(HR + 4 * g, 4)}, v3, s[40:43], s21 offen offset:{32 * g}")
    stamp(a, 5)
    stamp_flush(a, 3, 8)
    kernel_end(a, name)
    return name, descriptor(name, 80, AF + 8 * DEPTH, 64), (256, 256, G2_STAGE * G2_RING)


HEADER = open("cdna_kernels/" + NAME + ".s.ref").read().split("; Override launch")[0]


def main():
    out = sys.argv[1] if len(sys.argv) > 1 else f"cdna_kernels/{NAME}.s"
    global PROF
    PROF = "--prof" in sys.argv
    a = Asm()
    ks = [gen_conv(a), gen_ln(a), gen_gemm1(a), gen_gemm2(a)]
    s = HEADER
    for name, _, (g, b, lds) in ks:
        s += f"; @launch kernel={name} grid=({g},1,1) block=({b},1,1) lds={lds}\n"
    s += '.amdgcn_target "amdgcn-amd-amdhsa--gfx950"\n.text\n'
    s += a.text()
    s += '.section .rodata,"a"\n'
    for name, d, _ in ks:
        s += ".p2align 6\n" + d
    open(out, "w").write(s)


if __name__ == "__main__":
    main()
```

```python
import struct
import sys

NAME = "sequential_preLN__ssm_conv_h3__glu_gated_geglu__prompt"

KA_Q, KA_K, KA_V, KA_SK, KA_HK, KA_D, KA_X, KA_WG, KA_WU, KA_WD, KA_OUT, KA_DBG, KA_WS = [8 * i for i in range(13)]

MB = 1 << 20
WS_Z = 0
WS_H = 4 * MB
WS_LN = 8 * MB
WS_HH = 12 * MB


def f32bits(x):
    return struct.unpack("<I", struct.pack("<f", x))[0]


class Asm:
    def __init__(self):
        self.lines = []

    def __call__(self, s):
        for ln in s.strip("\n").split("\n"):
            self.lines.append("  " + ln.strip())

    def label(self, l):
        self.lines.append(l + ":")

    def raw(self, s):
        self.lines.append(s)

    def text(self):
        return "\n".join(self.lines) + "\n"


def vr(b, n=1, p="v"):
    return f"{p}{b}" if n == 1 else f"{p}[{b}:{b + n - 1}]"


def ar(b, n=1):
    return vr(b, n, "a")


def sr(b, n=1):
    return vr(b, n, "s")


def srd(a, d, base, nbytes, off=None):
    if off is None:
        a(f"s_mov_b32 s{d}, s{base}")
        a(f"s_mov_b32 s{d + 1}, s{base + 1}")
    else:
        a(f"s_add_u32 s{d}, s{base}, {off}")
        a(f"s_addc_u32 s{d + 1}, s{base + 1}, 0")
    a(f"s_mov_b32 s{d + 2}, {nbytes}")
    a(f"s_mov_b32 s{d + 3}, 0x20000")


PROF = False
import os
OPT = dict(x.split("=") for x in os.environ.get("GOPT", "").split(",") if x)


def opt(k, d):
    v = OPT.get(k)
    if v is None:
        return d
    return type(d)(v) if d is not None and not isinstance(d, str) else v


NTW1 = opt("ntw1", "nt").replace("-", "")
NTW2 = opt("ntw2", "nt").replace("-", "")
STH = opt("sth", "").replace("-", "").replace("+", " ")
STL = opt("stl", "").replace("-", "").replace("+", " ")
STZ = opt("stz", "").replace("-", "").replace("+", " ")
NTA = opt("nta", "").replace("-", "")
NTI = 'nt'
PROF_BASE = 48 * MB
ST0 = 80


def stamp(a, i, real=False):
    if not PROF:
        return
    a(f"{'s_memrealtime' if real else 's_memtime'} s[{ST0 + 2 * i}:{ST0 + 2 * i + 1}]")
    a("s_waitcnt lgkmcnt(0)")


def stamp_flush(a, kidx, n):
    if not PROF:
        return
    a("s_waitcnt vmcnt(0) lgkmcnt(0)")
    stamp(a, n - 2)
    stamp(a, n - 1, real=True)
    a(f"s_load_dwordx2 s[4:5], s[0:1], {KA_WS}")
    a("s_waitcnt lgkmcnt(0)")
    srd(a, 8, 4, 1 * MB, off=PROF_BASE + kidx * MB)
    a("s_lshl_b32 s6, s2, 2")
    a("s_add_u32 s6, s6, s17")
    a("s_lshl_b32 s6, s6, 6")
    a("v_mov_b32 v1, 0")
    for i in range(n):
        a(f"v_mov_b32 v2, s{ST0 + 2 * i}")
        a(f"buffer_store_dword v2, v1, s[8:11], s6 offen offset:{4 * i}")
    a("s_waitcnt vmcnt(0)")


def kernel_begin(a, name, nwg):
    a.raw(f".globl {name}")
    a.raw(".p2align 8")
    a.raw(f".type {name},@function")
    a.label(name)
    a(f"s_cmp_ge_u32 s2, {nwg}")
    a(f"s_cbranch_scc1 L_{name}_end")
    stamp(a, 0, real=True)
    stamp(a, 1)


def kernel_end(a, name):
    a.label(f"L_{name}_end")
    a("s_endpgm")


def descriptor(name, vgprs, agprs, sgprs):
    acc = (vgprs + 3) // 4 * 4
    nfv = acc + agprs if agprs else vgprs
    return f""".amdhsa_kernel {name}
  .amdhsa_next_free_vgpr {nfv}
  .amdhsa_next_free_sgpr {100 if PROF else sgprs}
  .amdhsa_accum_offset {acc}
  .amdhsa_group_segment_fixed_size 0
  .amdhsa_kernarg_size 104
  .amdhsa_user_sgpr_count 2
  .amdhsa_user_sgpr_kernarg_segment_ptr 1
  .amdhsa_system_sgpr_workgroup_id_x 1
  .amdhsa_float_denorm_mode_32 3
.end_amdhsa_kernel
"""


U_STRIDE = 4608
H_COPY = 4160
H_BASE = 4 * U_STRIDE
CONV_LDS = H_BASE + 4 * 2 * H_COPY


def gen_conv(a):
    name = "conv_kernel"
    kernel_begin(a, name, 256)
    a(f"""
    s_load_dwordx4 s[4:7], s[0:1], {KA_K}
    s_load_dwordx4 s[8:11], s[0:1], {KA_SK}
    s_load_dwordx2 s[12:13], s[0:1], {KA_D}
    s_load_dwordx2 s[14:15], s[0:1], {KA_WS}
    s_and_b32 s16, s2, 7
    s_lshl_b32 s16, s16, 7
    s_lshr_b32 s17, s2, 3
    s_lshl_b32 s17, s17, 2
    s_add_u32 s16, s16, s17                 ; s16 = d0
    v_lshrrev_b32 v1, 6, v0
    v_and_b32 v2, 63, v0                    ; v2 = lane
    v_readfirstlane_b32 s17, v1             ; s17 = wave
    s_lshl_b32 s18, s16, 3                  ; d0*8
    s_lshl_b32 s19, s16, 1                  ; d0*2
    s_waitcnt lgkmcnt(0)
    s_load_dwordx8 s[36:43], s[8:9], s18    ; shift_k[d0..d0+3][0..3]
    s_load_dwordx2 s[60:61], s[12:13], s19  ; ssm_D[d0..d0+3]
    """)
    srd(a, 20, 4, 4 * MB)
    srd(a, 24, 6, 4 * MB)
    srd(a, 28, 10, 4 * MB)
    srd(a, 32, 14, 4 * MB, off=WS_Z if WS_Z else None)
    a(f"""
    s_add_u32 s62, s16, s17
    s_lshl_b32 s62, s62, 12
    v_lshlrev_b32 v3, 4, v2
    """)
    HR = 100
    for i in range(4):
        a(f"buffer_load_dwordx4 {vr(HR + 8 * i, 4)}, v3, s[28:31], s62 offen offset:{1024 * i} {NTI}")
        a(f"buffer_load_dword {vr(HR + 8 * i + 4)}, v3, s[28:31], s62 offen offset:{1024 * i + 16} {NTI}")
    a(f"""
    v_lshlrev_b32 v4, 12, v0
    v_add_u32 v4, s19, v4
    v_subrev_u32 v7, {3 * 2048}, v4
    v_mov_b32 v6, 0x40000000
    v_cmp_eq_u32 vcc, 0, v2
    s_nop 1
    v_cndmask_b32 v5, v6, v4, vcc
    v_cndmask_b32 v7, v6, v7, vcc
    v_cmp_eq_u32 vcc, 0, v0
    s_nop 1
    v_cndmask_b32 v7, v7, v6, vcc
    s_mov_b32 s64, 0
    s_mov_b32 s65, {1 * MB}
    s_mov_b32 s66, {2 * MB}
    s_mov_b32 s67, {3 * MB}
    s_mov_b32 s68, 0
    s_mov_b32 s69, {1 * MB - 6144}
    s_mov_b32 s70, {2 * MB - 6144}
    s_mov_b32 s71, {3 * MB - 6144}
    s_mov_b32 s76, 4096
    s_mov_b32 s77, {1 * MB - 2048}
    s_mov_b32 s78, {2 * MB - 2048}
    s_mov_b32 s79, {3 * MB - 2048}
    """)
    RAW = [140, 156]

    def issue_q(q):
        b = RAW[q & 1]
        hv = "v7" if q == 0 else "v5"
        a(f"buffer_load_dwordx2 {vr(b + 0, 2)}, v4, s[20:23], s{64 + q} offen {NTI}")
        a(f"buffer_load_dwordx2 {vr(b + 2, 2)}, v4, s[20:23], s{64 + q} offen offset:2048 {NTI}")
        a(f"buffer_load_dwordx2 {vr(b + 4, 2)}, v4, s[24:27], s{64 + q} offen {NTI}")
        a(f"buffer_load_dwordx2 {vr(b + 6, 2)}, v4, s[24:27], s{64 + q} offen offset:2048 {NTI}")
        a(f"buffer_load_dwordx2 {vr(b + 8, 2)}, {hv}, s[20:23], s{68 + q} offen")
        a(f"buffer_load_dwordx2 {vr(b + 10, 2)}, {hv}, s[20:23], s{68 + q} offen offset:2048")
        a(f"buffer_load_dwordx2 {vr(b + 12, 2)}, {hv}, s[20:23], s{76 + q} offen")

    issue_q(0)
    a("s_barrier")
    issue_q(1)
    a("s_waitcnt lgkmcnt(0)")
    for j in range(4):
        for c in range(4):
            src = 36 + 2 * c + (j >> 1)
            dst = 44 + 4 * j + c
            if j & 1:
                a(f"s_and_b32 s{dst}, s{src}, 0xffff0000")
            else:
                a(f"s_lshl_b32 s{dst}, s{src}, 16")
    a(f"""
    s_cmp_ge_u32 s17, 2
    s_cselect_b32 s63, s61, s60
    s_lshl_b32 s72, s63, 16
    s_and_b32 s63, s63, 0xffff0000
    s_bitcmp1_b32 s17, 0
    s_cselect_b32 s63, s63, s72
    """)
    a(f"""
    s_mul_i32 s72, s17, {U_STRIDE}
    s_mul_i32 s73, s17, {2 * H_COPY}
    s_add_u32 s73, s73, {H_BASE}
    v_mov_b32 v8, 0
    v_mov_b32 v9, 0
    v_mov_b32 v10, 0
    v_mov_b32 v11, 0
    v_lshlrev_b32 v12, 3, v2
    v_add_u32 v12, s72, v12
    ds_write_b64 v12, v[8:9] offset:4096
    v_add_u32 v13, s73, v3
    s_waitcnt vmcnt(14)
    """)
    a(f"""
    v_readfirstlane_b32 s74, v{HR}
    v_and_b32 v14, 1, v2
    v_lshlrev_b32 v15, 4, v14
    v_add_u32 v15, s73, v15
    s_lshl_b32 s74, s74, 16
    v_mul_u32_u24 v16, 1, v14
    ds_write_b128 v15, v[8:11]
    v_mov_b32 v17, s74
    v_cmp_eq_u32 vcc, 1, v14
    v_mov_b32 v20, 0
    v_mov_b32 v21, 0
    v_mov_b32 v22, 0
    v_cndmask_b32 v23, 0, v17, vcc
    ds_write_b128 v15, v[20:23] offset:{H_COPY}
    """)
    for i in range(4):
        b = HR + 8 * i
        a(f"ds_write_b128 v13, {vr(b, 4)} offset:{32 + 1024 * i}")
        t = 24 + 4 * (i & 1)
        for d in range(4):
            a(f"v_alignbit_b32 v{t + d}, v{b + d + 1}, v{b + d}, 16")
        a(f"ds_write_b128 v13, {vr(t, 4)} offset:{H_COPY + 32 + 1024 * i}")
    a(f"""
    v_and_b32 v14, 15, v2                   ; a / i
    v_lshrrev_b32 v15, 4, v2                ; kq / q
    v_lshlrev_b32 v16, 4, v15
    v_lshl_add_u32 v16, v14, 1, v16         ; + 2a
    v_and_b32 v17, 1, v14
    v_cmp_eq_u32 vcc, 1, v17
    v_add_u32 v18, 2, v16
    v_add_u32 v19, {H_COPY}, v16
    v_cndmask_b32 v16, v19, v18, vcc
    v_add_u32 v16, s73, v16
    s_waitcnt lgkmcnt(0)
    """)
    for j in range(64):
        if j and j % 16 == 0:
            a("v_add_u32 v16, 1024, v16")
        o = (j % 16) * 16
        a(f"ds_read2_b32 {ar(4 * j, 2)}, v16 offset0:{o} offset1:{o + 1}")
        a(f"ds_read2_b32 {ar(4 * j + 2, 2)}, v16 offset0:{o + 2} offset1:{o + 3}")
    a(f"""
    v_lshlrev_b32 v17, 4, v15
    v_lshlrev_b32 v18, 5, v14
    v_sub_u32 v17, v17, v18
    v_add_u32 v17, 480, v17
    v_add_u32 v17, s72, v17
    """)
    a(f"""
    v_lshlrev_b32 v19, 3, v15
    v_add_u32 v19, v19, v18
    v_sub_u32 v18, {4088 - 3584}, v19
    v_add_u32 v18, s72, v18
    """)
    a(f"""
    v_lshlrev_b32 v19, 2, v0
    v_sub_u32 v19, {4092 - 3072}, v19
    """)
    a(f"""
    v_lshlrev_b32 v20, 15, v14              ; 2i*16384
    v_lshrrev_b32 v21, 1, v15
    v_lshlrev_b32 v21, 14, v21
    v_add_u32 v20, v20, v21
    v_and_b32 v21, 1, v15
    v_lshl_add_u32 v20, v21, 3, v20
    s_add_u32 s74, s16, s17
    s_lshl_b32 s74, s74, 4
    v_add_u32 v20, s74, v20
    """)
    ACC = 32
    for r in range(32):
        a(f"v_mov_b32 v{ACC + r}, 0")
    BF = [64, 68, 72, 76]
    KF = 176
    VF = 196
    KS = 204
    PK = 212

    def compute_q(q):
        b = RAW[q & 1]
        for d in range(2):
            a(f"v_mov_b32_dpp v{b + 12 + d}, v{b + 2 + d} wave_shr:1 row_mask:0xf bank_mask:0xf")
        for d in range(2):
            a(f"v_mov_b32_dpp v{b + 10 + d}, v{b + 0 + d} wave_shr:1 row_mask:0xf bank_mask:0xf")
        a("s_nop 0")
        for d in range(2):
            a(f"v_mov_b32_dpp v{b + 8 + d}, v{b + 12 + d} wave_shr:1 row_mask:0xf bank_mask:0xf")
        src = [b + 8, b + 10, b + 12, b + 0, b + 2]
        for r in [3, 4, 2, 1, 0]:
            for p in range(2):
                a(f"v_lshlrev_b32 v{KF + 4 * r + 2 * p}, 16, v{src[r] + p}")
                a(f"v_and_b32 v{KF + 4 * r + 2 * p + 1}, 0xffff0000, v{src[r] + p}")
        for r in range(2):
            for p in range(2):
                a(f"v_lshlrev_b32 v{VF + 4 * r + 2 * p}, 16, v{b + 4 + 2 * r + p}")
                a(f"v_and_b32 v{VF + 4 * r + 2 * p + 1}, 0xffff0000, v{b + 4 + 2 * r + p}")
        for j in range(4):
            for r in range(2):
                for p in range(2):
                    kreg = vr(KF + 4 * (3 + r - j) + 2 * p, 2)
                    w = sr(44 + 4 * j + 2 * p, 2)
                    d = vr(KS + 4 * r + 2 * p, 2)
                    if j == 0:
                        a(f"v_pk_mul_f32 {d}, {kreg}, {w}")
                    else:
                        a(f"v_pk_fma_f32 {d}, {kreg}, {w}, {d}")
        for r in range(2):
            for p in range(2):
                d = vr(KS + 4 * r + 2 * p, 2)
                a(f"v_pk_mul_f32 {d}, {d}, {vr(VF + 4 * r + 2 * p, 2)}")
        for c in range(4):
            a(f"v_cvt_pk_bf16_f32 v{PK + c}, v{KS + 4 + c}, v{KS + c}")
        for c in range(4):
            a(f"ds_write_b32 v19, v{PK + c} offset:{3072 - 1024 * q + c * U_STRIDE}")

    def mfma_e(e):
        seq = [(jp) for jp in range(8)]
        def rd(jp):
            a(f"ds_read_b128 {vr(BF[jp & 3], 4)}, v17 offset:{3584 - 512 * e + 64 * jp}")
        for jp in range(3):
            rd(jp)
        for jp in seq:
            if jp + 3 < 8:
                rd(jp + 3)
                a("s_waitcnt lgkmcnt(3)")
            else:
                a(f"s_waitcnt lgkmcnt({7 - jp})")
            for m in range(8 - e):
                acc = vr(ACC + 4 * (e + m), 4)
                a(f"v_mfma_f32_16x16x32_bf16 {acc}, {ar(4 * (jp + 8 * m), 4)}, {vr(BF[jp & 3], 4)}, {acc}")

    def epilogue_c(c):
        t = 80 + 8 * (c & 1)
        a(f"ds_read_b64 {vr(t, 2)}, v18 offset:{3584 - 512 * c}")
        a("s_waitcnt lgkmcnt(0)")
        a(f"v_and_b32 v{t + 2}, 0xffff0000, v{t + 1}")
        a(f"v_lshlrev_b32 v{t + 3}, 16, v{t + 1}")
        a(f"v_and_b32 v{t + 4}, 0xffff0000, v{t}")
        a(f"v_lshlrev_b32 v{t + 5}, 16, v{t}")
        for r in range(4):
            a(f"v_fma_f32 v{t + 2 + r}, v{t + 2 + r}, s63, v{ACC + 4 * c + r}")
        a(f"v_cvt_pk_bf16_f32 v{t}, v{t + 2}, v{t + 3}")
        a(f"v_cvt_pk_bf16_f32 v{t + 1}, v{t + 4}, v{t + 5}")
        a(f"s_mov_b32 s75, {c * 32 * 16384}")
        a(f"buffer_store_dwordx2 {vr(t, 2)}, v20, s[32:35], s75 offen {STZ}")

    stamp(a, 2)
    stores = 0
    for q in range(4):
        if q == 0:
            a("s_waitcnt vmcnt(7)")
        elif q == 1:
            a("s_waitcnt vmcnt(7)")
        elif q == 2:
            a("s_waitcnt vmcnt(9)")
        else:
            a("s_waitcnt vmcnt(4)")
        stamp(a, 3 + q)
        compute_q(q)
        if q + 2 < 4:
            issue_q(q + 2)
        a("s_waitcnt lgkmcnt(0)")
        a("s_barrier")
        mfma_e(2 * q)
        if q > 0:
            epilogue_c(2 * q - 2)
            epilogue_c(2 * q - 1)
        mfma_e(2 * q + 1)
    a("s_nop 7")
    epilogue_c(6)
    epilogue_c(7)
    stamp(a, 7)
    stamp_flush(a, 0, 10)
    kernel_end(a, name)
    return name, descriptor(name, 256, 256, 96), (256, 256, CONV_LDS)


LN_LDS = 16384 + 512


def bf16_round(a, v, tmp=None):
    a(f"v_cvt_pk_bf16_f32 {v}, {v}, {v}")
    a(f"v_and_b32 {v}, 0xffff0000, {v}")


def pf1(a):
    pf = opt("pf1nt", "").replace("-", "")
    a(f"""
    s_load_dwordx4 s[28:31], s[0:1], {KA_WG}
    v_and_b32 v122, 7, v2
    v_min_u32 v122, 6, v122
    v_lshlrev_b32 v122, 7, v122
    v_mul_u32_u24 v123, 7168, v4
    v_add_u32 v122, v122, v123
    s_lshr_b32 s36, s2, 3
    s_lshl_b32 s36, s36, 5
    s_and_b32 s37, s17, 1
    s_lshl_b32 s37, s37, 4
    s_add_u32 s36, s36, s37
    s_mul_i32 s36, s36, 7168
    s_add_u32 s37, s2, {opt('pf1x', 0)}
    s_and_b32 s37, s37, 7
    s_mul_i32 s37, s37, 896
    s_add_u32 s36, s36, s37
    s_add_u32 s37, s36, {8 * 7168}
    s_waitcnt lgkmcnt(0)
    s_cmp_ge_u32 s17, 2
    s_cselect_b32 s32, s30, s28
    s_cselect_b32 s33, s31, s29
    s_mov_b32 s34, {1024 * 3584 * 2}
    s_mov_b32 s35, 0x20000
    """)
    b2b = opt("b2b", "").replace("-", " ").replace("+", " ")
    a(f"buffer_load_dword v120, v122, s[32:35], s36 offen {pf}")
    if opt("b2bm", 0) == 1:
        a(f"buffer_load_dword v124, v122, s[32:35], s36 offen {b2b}")
    a(f"buffer_load_dword v121, v122, s[32:35], s37 offen {pf}")
    if opt("b2bm", 0) == 2:
        a(f"buffer_load_dword v124, v122, s[32:35], s36 offen {b2b}")
    if opt("b2bm", 0):
        a(f"buffer_load_dword v125, v122, s[32:35], s37 offen {b2b}")


def gen_ln(a):
    name = "ln_kernel"
    kernel_begin(a, name, 256)
    a(f"""
    s_load_dwordx2 s[4:5], s[0:1], {KA_Q}
    s_load_dwordx2 s[6:7], s[0:1], {KA_WS}
    v_lshrrev_b32 v1, 6, v0
    v_and_b32 v2, 63, v0                    ; lane
    v_readfirstlane_b32 s17, v1             ; wave
    v_and_b32 v3, 7, v2                     ; r
    v_lshrrev_b32 v4, 3, v2                 ; o
    s_waitcnt lgkmcnt(0)
    """)
    srd(a, 8, 4, 4 * MB)
    srd(a, 12, 6, 4 * MB)
    srd(a, 20, 6, 4 * MB, off=WS_H)
    srd(a, 24, 6, 4 * MB, off=WS_LN)
    a(f"""
    s_lshl_b32 s18, s2, 14
    s_lshl_b32 s19, s17, 12
    s_add_u32 s18, s18, s19
    v_lshlrev_b32 v5, 4, v2
    s_mov_b32 m0, s19
    s_nop 0
    buffer_load_dwordx4 v5, s[12:15], s18 offen lds
    buffer_load_dwordx4 v5, s[12:15], s18 offen offset:1024 lds
    buffer_load_dwordx4 v5, s[12:15], s18 offen offset:2048 lds
    buffer_load_dwordx4 v5, s[12:15], s18 offen offset:3072 lds
    """)
    a(f"""
    v_lshlrev_b32 v6, 11, v3
    v_lshl_add_u32 v6, v4, 4, v6
    s_lshl_b32 s18, s2, 14
    s_lshl_b32 s19, s17, 9
    s_add_u32 s18, s18, s19
    """)
    QR = 16
    for it in range(4):
        a(f"buffer_load_dwordx4 {vr(QR + 4 * it, 4)}, v6, s[8:11], s18 offen offset:{128 * it} {NTI}")
    if opt('pf1', 1) == 1:
        pf1(a)
    a(f"""
    v_lshrrev_b32 v7, 4, v2
    v_lshlrev_b32 v7, 8, v7                 ; (l>>4)*256
    v_bfe_u32 v8, v2, 1, 1
    v_lshl_add_u32 v7, v8, 7, v7
    v_bfe_u32 v8, v2, 2, 2
    v_lshl_add_u32 v7, v8, 4, v7
    v_and_b32 v8, 1, v2
    v_lshl_add_u32 v7, v8, 3, v7
    s_lshl_b32 s19, s17, 12
    v_add_u32 v7, s19, v7
    """)
    a(f"""
    v_lshlrev_b32 v9, 5, v3
    v_add_u32 v9, 16384, v9
    s_lshl_b32 s19, s17, 3
    v_add_u32 v10, s19, v9
    """)
    XF = 32
    ZR = 64
    ZF = 80
    a(f"s_waitcnt vmcnt({(4 if opt('b2bm', 0) else 2) if opt('pf1', 1) == 1 else 0})")
    stamp(a, 2)
    for it in range(4):
        for half in range(2):
            a(f"ds_read_b64_tr_b16 {vr(ZR + 4 * it + 2 * half, 2)}, v7 offset:{it * 1024 + half * 64}")
    for i in range(16):
        a(f"v_lshlrev_b32 v{XF + 2 * i}, 16, v{QR + i}")
        a(f"v_and_b32 v{XF + 2 * i + 1}, 0xffff0000, v{QR + i}")

    def stats(src, rnd):
        a(f"v_pk_add_f32 v[112:113], {vr(src, 2)}, {vr(src + 2, 2)}")
        a(f"v_pk_mul_f32 v[114:115], {vr(src, 2)}, {vr(src, 2)}")
        a(f"v_pk_fma_f32 v[114:115], {vr(src + 2, 2)}, {vr(src + 2, 2)}, v[114:115]")
        for i in range(2, 16):
            a(f"v_pk_add_f32 v[112:113], v[112:113], {vr(src + 2 * i, 2)}")
            a(f"v_pk_fma_f32 v[114:115], {vr(src + 2 * i, 2)}, {vr(src + 2 * i, 2)}, v[114:115]")
        a(f"""
        v_add_f32 v12, v112, v113
        v_add_f32 v13, v114, v115
        s_nop 1
        v_add_f32_dpp v12, v12, v12 row_ror:8 row_mask:0xf bank_mask:0xf
        v_add_f32_dpp v13, v13, v13 row_ror:8 row_mask:0xf bank_mask:0xf
        v_mov_b32 v14, v12
        v_mov_b32 v15, v13
        s_nop 1
        v_permlane16_swap_b32 v12, v14
        v_permlane16_swap_b32 v13, v15
        s_nop 1
        v_add_f32 v12, v12, v14
        v_add_f32 v13, v13, v15
        v_mov_b32 v14, v12
        v_mov_b32 v15, v13
        s_nop 1
        v_permlane32_swap_b32 v12, v14
        v_permlane32_swap_b32 v13, v15
        s_nop 1
        v_add_f32 v12, v12, v14
        v_add_f32 v13, v13, v15
        ds_write_b64 v10, v[12:13] offset:{256 * rnd}
        s_waitcnt lgkmcnt(0)
        s_barrier
        ds_read_b128 v[112:115], v9 offset:{256 * rnd}
        ds_read_b128 v[116:119], v9 offset:{256 * rnd + 16}
        s_waitcnt lgkmcnt(0)
        v_pk_add_f32 v[112:113], v[112:113], v[114:115]
        v_pk_add_f32 v[116:117], v[116:117], v[118:119]
        v_pk_add_f32 v[112:113], v[112:113], v[116:117]
        v_mul_f32 v12, {hex(f32bits(1.0 / 1024))}, v112      ; mean
        v_mul_f32 v13, {hex(f32bits(1.0 / 1024))}, v113      ; E[x^2]
        v_fma_f32 v13, -v12, v12, v13                        ; var
        v_max_f32 v13, 0, v13
        """)
        bf16_round(a, "v12")
        bf16_round(a, "v13")
        a(f"v_add_f32 v13, {hex(f32bits(1e-5))}, v13")
        bf16_round(a, "v13")
        a("v_sqrt_f32 v13, v13")
        a("s_nop 0")
        bf16_round(a, "v13")
        a("v_rcp_f32 v13, v13")
        a("s_nop 0")

    stats(XF, 0)
    stamp(a, 3)
    for i in range(16):
        a(f"v_lshlrev_b32 v{ZF + 2 * i}, 16, v{ZR + i}")
        a(f"v_and_b32 v{ZF + 2 * i + 1}, 0xffff0000, v{ZR + i}")
    a("v_mul_f32 v14, v12, v13")
    a("v_sub_f32 v14, 0, v14")
    a("v_mov_b32 v15, v14")
    a("v_mov_b32 v12, v13")
    for i in range(16):
        x = vr(XF + 2 * i, 2)
        z = vr(ZF + 2 * i, 2)
        a(f"v_pk_fma_f32 v[112:113], {x}, v[12:13], v[14:15]")
        a(f"v_pk_fma_f32 {z}, v[112:113], {z}, {x}")
        a(f"v_cvt_pk_bf16_f32 v{QR + i}, v{ZF + 2 * i}, v{ZF + 2 * i + 1}")
    a(f"""
    v_lshlrev_b32 v6, 9, v4
    v_lshl_add_u32 v6, v3, 4, v6
    s_lshr_b32 s18, s2, 2
    s_lshl_b32 s18, s18, 16
    s_and_b32 s19, s2, 3
    s_lshl_b32 s19, s19, 7
    s_add_u32 s18, s18, s19
    s_lshl_b32 s19, s17, 14
    s_add_u32 s18, s18, s19
    """)
    for it in range(4):
        a(f"buffer_store_dwordx4 {vr(QR + 4 * it, 4)}, v6, s[20:23], s18 offen {STL}")
        if it < 3:
            a("s_add_u32 s18, s18, 4096")
    for i in range(16):
        a(f"v_lshlrev_b32 v{XF + 2 * i}, 16, v{QR + i}")
        a(f"v_and_b32 v{XF + 2 * i + 1}, 0xffff0000, v{QR + i}")
    stats(XF, 1)
    stamp(a, 4)
    a("v_mul_f32 v14, v12, v13")
    a("v_sub_f32 v14, 0, v14")
    a("v_mov_b32 v15, v14")
    a("v_mov_b32 v12, v13")
    for i in range(16):
        x = vr(XF + 2 * i, 2)
        a(f"v_pk_fma_f32 {x}, {x}, v[12:13], v[14:15]")
        a(f"v_cvt_pk_bf16_f32 v{ZR + i}, v{XF + 2 * i}, v{XF + 2 * i + 1}")
    a(f"""
    v_lshrrev_b32 v6, 1, v4
    v_lshlrev_b32 v6, 11, v6
    v_and_b32 v7, 1, v4
    v_lshl_add_u32 v6, v7, 9, v6
    v_lshl_add_u32 v6, v3, 4, v6
    s_lshr_b32 s18, s2, 3
    s_lshl_b32 s18, s18, 17
    s_bfe_u32 s19, s2, 0x10002
    s_lshl_b32 s19, s19, 10
    s_add_u32 s18, s18, s19
    s_and_b32 s19, s2, 3
    s_lshl_b32 s19, s19, 7
    s_add_u32 s18, s18, s19
    s_lshl_b32 s19, s17, 15
    s_add_u32 s18, s18, s19
    """)
    for it in range(4):
        a(f"buffer_store_dwordx4 {vr(ZR + 4 * it, 4)}, v6, s[24:27], s18 offen {STL}")
        if it < 3:
            a("s_add_u32 s18, s18, 8192")
    if opt('pf1', 1) == 2:
        pf1(a)
    if opt('rt1', ''):
        f = opt('rt1', '').replace("-", "").replace("+", " ")
        a(f"buffer_load_dword v120, v122, s[32:35], s36 offen {f}")
        a(f"buffer_load_dword v121, v122, s[32:35], s37 offen {f}")
    stamp(a, 5)
    stamp_flush(a, 1, 8)
    kernel_end(a, name)
    return name, descriptor(name, 128, 0, 40), (256, 256, LN_LDS)


def gemm_loop(a, tag, NST, DEPTH, RING, STAGE, KADV, dma_items, wread_ops, mfmas, addr_update, AF, init_acc,
              pro_limit=None):
    UN = DEPTH // 4
    assert NST % UN == 0
    LDS = STAGE * RING
    nd = len(dma_items)
    base, rem = divmod(nd, 4)
    split = [base + (1 if i < rem else 0) for i in range(4)]

    def w_item(st, i):
        ins = list(dma_items[i])
        if i == nd - 1:
            ins += [f"s_add_u32 s34, s34, {KADV}", f"s_add_u32 s35, s35, {STAGE}",
                    f"s_cmp_ge_u32 s35, {LDS}", "s_cselect_b32 s35, s33, s35"]
        return (("W", st), ins)

    def a_items(idx):
        b = AF + 8 * (idx % DEPTH)
        return [(("A", idx), [f"buffer_load_dwordx4 {ar(b, 4)}, v15, s[28:31], s36 offen {NTA}"]),
                (("A", idx), [f"buffer_load_dwordx4 {ar(b + 4, 4)}, v15, s[28:31], s36 offen offset:1024 {NTA}",
                              "s_add_u32 s36, s36, 2048"])]

    def items_at(g):
        out = []
        ai = g - 1 + DEPTH
        A = a_items(ai) if ai >= 0 else []
        ph = (g + 1) % 4
        st = (g + 1) // 4 - 1 + RING
        lo = sum(split[:ph])
        W = [w_item(st, i) for i in range(lo, lo + split[ph])] if st >= 0 else []
        while A or W:
            if A:
                out.append(A.pop(0))
            if W:
                out.append(W.pop(0))
        return out

    order = []

    def cnt_after(t):
        idx = max(i for i, x in enumerate(order) if x == t)
        return len(order) - 1 - idx

    def emit_ins(ins):
        for x in ins:
            a(x)
            if " m0," in x:
                a("s_nop 0")

    a("s_mov_b32 s34, 0")
    a("s_mov_b32 s35, s33")
    a("s_mov_b32 s36, 0")
    backlog = []
    for g in range(-4 * RING - DEPTH, 0):
        backlog += items_at(g)
    npro = len(backlog) if pro_limit is None else pro_limit
    for t, ins in backlog[:npro]:
        emit_ins(ins)
        order.append(t)
    backlog = backlog[npro:]
    init_acc()
    stamp(a, 2)
    a(f"s_waitcnt vmcnt({cnt_after(('W', 0))})")
    a("s_barrier")
    stamp(a, 3)
    a("s_mov_b32 s37, 0")
    for op in addr_update():
        emit_ins(op)
    a(f"s_mov_b32 s37, {STAGE}")
    for op in wread_ops(0, 0):
        emit_ins(op)

    def body(it, waits, emit, backlog):
        for us in range(UN):
            st = it * UN + us
            for j in range(4):
                g = 4 * st + j
                buf = g & 1
                wv = cnt_after(("A", g))
                if j == 3:
                    assert order.count(("W", st + 1)) == nd
                    wv = min(wv, cnt_after(("W", st + 1)))
                k = 4 * us + j
                waits[k] = min(waits.get(k, 63), wv)
                fill = []
                if j == 3:
                    fill += addr_update()
                    fill += wread_ops(buf ^ 1, 0)
                    fill.append([f"s_add_u32 s37, s37, {STAGE}", f"s_cmp_ge_u32 s37, {LDS}", "s_cselect_b32 s37, 0, s37"])
                else:
                    fill += wread_ops(buf ^ 1, j + 1)
                mine = items_at(g)
                if backlog is not None:
                    n = len(mine)
                    backlog += mine
                    left = 4 * UN - k
                    take = n + -(-(len(backlog) - n) // left)
                    mine = backlog[:take]
                    del backlog[:take]
                vm = [ins for _, ins in mine]
                order.extend(t for t, _ in mine)
                if emit:
                    a(f"s_waitcnt vmcnt({waits[k]}) lgkmcnt(0)")
                    if j == 3:
                        a("s_barrier")
                    mf = mfmas(buf, AF + 8 * (g % DEPTH))
                    n = len(mf)
                    slots = [[] for _ in range(n)]
                    per = max(2, -(-len(fill) // n))
                    for i, op in enumerate(fill):
                        slots[min(i // per, n - 1)].append(op)
                    for i, op in enumerate(vm):
                        slots[min(n - 1, ((2 * i + 1) * n) // (2 * len(vm)))].append(op)
                    for i, m in enumerate(mf):
                        a(m)
                        for op in slots[i]:
                            emit_ins(op)

    first = 0
    if pro_limit is not None:
        body(0, {}, True, backlog)
        assert not backlog
        first = 1
    waits = {}
    saved = list(order)
    for it in range(first, NST // UN):
        body(it, waits, False, None)
    assert max(waits.values()) <= 63
    order[:] = saved
    a(f"s_mov_b32 s38, {NST // UN - first}")
    a.raw(".p2align 6")
    a.label(f"L_{tag}_loop")
    body(first, waits, True, None)
    a("s_sub_u32 s38, s38, 1")
    a("s_cmp_lg_u32 s38, 0")
    a(f"s_cbranch_scc1 L_{tag}_loop")
    stamp(a, 4)


G1_UPOFF = 14336 + 128
G1_STAGE = G1_UPOFF + 14336
G1_RING = opt('r1', 5)


def pf2(a):
    pf = opt("pf2nt", "").replace("-", "")
    n = opt("pf2n", 4)
    a(f"""
    s_load_dwordx2 s[46:47], s[0:1], {KA_WD}
    v_lshrrev_b32 v6, 3, v2
    v_lshlrev_b32 v6, 11, v6
    v_and_b32 v7, 7, v2
    v_lshl_add_u32 v6, v7, 7, v6
    s_lshr_b32 s23, s2, 3
    s_lshl_b32 s23, s23, 14
    s_add_u32 s32, s2, {opt('pf2x', 0)}
    s_and_b32 s32, s32, 1
    s_lshl_b32 s32, s32, 10
    s_add_u32 s23, s23, s32
    s_lshl_b32 s32, s17, 19
    s_add_u32 s23, s23, s32
    s_waitcnt lgkmcnt(0)
    """)
    srd(a, 48, 46, 3584 * 1024 * 2)
    for i in range(n):
        a(f"buffer_load_dword v{8 + i}, v6, s[48:51], s23 offen {pf}")
        a(f"s_add_u32 s23, s23, {1024 * 2048}")


def gen_gemm1(a, DEPTH=opt('d1', 16)):
    name = "gemm1_kernel"
    kernel_begin(a, name, 256)
    a(f"""
    s_load_dwordx4 s[4:7], s[0:1], {KA_WG}
    s_load_dwordx2 s[8:9], s[0:1], {KA_WS}
    v_lshrrev_b32 v1, 6, v0
    v_and_b32 v2, 63, v0
    v_readfirstlane_b32 s17, v1             ; wave
    s_lshr_b32 s18, s2, 5                   ; mt
    s_and_b32 s19, s2, 7
    s_lshl_b32 s19, s19, 2
    s_bfe_u32 s20, s2, 0x20003
    s_add_u32 s19, s19, s20                 ; nt
    s_waitcnt lgkmcnt(0)
    s_cmp_ge_u32 s17, 2
    s_cselect_b32 s24, s6, s4
    s_cselect_b32 s25, s7, s5
    s_mov_b32 s26, {1024 * 3584 * 2}
    s_mov_b32 s27, 0x20000
    s_lshl_b32 s20, s18, 2
    s_add_u32 s20, s20, s17                 ; m64 block
    s_lshl_b32 s21, s20, 17
    s_add_u32 s21, s21, {WS_LN}
    s_add_u32 s28, s8, s21
    s_addc_u32 s29, s9, 0
    s_mov_b32 s30, 131072
    s_mov_b32 s31, 0x20000
    """)
    srd(a, 40, 8, 2048 * 3584 * 2, off=WS_HH)
    ACC = 32
    a(f"""
    s_mul_i32 s21, s19, 224
    s_and_b32 s22, s17, 1
    s_mul_i32 s23, s22, {32 * 7168}
    s_add_u32 s21, s21, s23
    s_mov_b32 s23, {(1 << 20) // 14 + 1}
    s_movk_i32 s32, 7168
    """)
    for i in range(7):
        a(f"""
        v_add_u32 v3, {64 * i}, v2
        v_mul_lo_u32 v4, v3, s23
        v_lshrrev_b32 v4, 20, v4
        v_mul_u32_u24 v5, 14, v4
        v_sub_u32 v5, v3, v5
        v_mul_lo_u32 v4, v4, s32
        v_lshl_add_u32 v4, v5, 4, v4
        v_add_u32 v4, s21, v4
        v_subrev_u32 v{8 + i}, {1024 * (i % 4)}, v4
        """)
    a(f"""
    s_lshr_b32 s33, s17, 1
    s_mul_i32 s33, s33, {G1_UPOFF}
    s_mul_i32 s22, s22, 7168
    s_add_u32 s33, s33, s22
    v_lshlrev_b32 v15, 4, v2
    v_bfe_u32 v3, v2, 4, 1
    v_mul_u32_u24 v16, {G1_UPOFF}, v3
    v_lshrrev_b32 v3, 5, v2
    v_lshlrev_b32 v3, 3, v3
    v_bfe_u32 v4, v2, 2, 2
    v_add_u32 v3, v3, v4
    v_mul_u32_u24 v3, 224, v3
    v_add_u32 v16, v16, v3
    v_and_b32 v3, 1, v2
    v_lshl_add_u32 v16, v3, 4, v16
    v_bfe_u32 v3, v2, 1, 1
    v_lshl_add_u32 v16, v3, 3, v16
    """)
    WF = [0, 28]
    AF = 56
    dma = [[f"buffer_load_dwordx4 v{8 + i}, s[24:27], s34 offen offset:{1024 * (i & 3)} {NTW1} lds"] for i in range(7)]
    dma[0].insert(0, "s_mov_b32 m0, s35")
    dma[4].insert(0, "s_add_u32 m0, s35, 4096")

    def wread_ops(buf, sub):
        return [[f"ds_read_b64_tr_b16 {ar(WF[buf] + 4 * t + 2 * rd, 2)}, v17 offset:{(16 * sub + 4 * rd) * 224 + 32 * t}"]
                for t in range(7) for rd in range(2)]

    def mfmas(buf, af):
        out = []
        for t in range(7):
            for mb in range(2):
                acc = vr(ACC + 16 * (2 * t + mb), 16)
                out.append(f"v_mfma_f32_32x32x16_bf16 {acc}, {ar(WF[buf] + 4 * t, 4)}, {ar(af + 4 * mb, 4)}, {acc}")
        return out

    def addr_update():
        return [["v_add_u32 v17, s37, v16"]]

    def init_acc():
        for r in range(224):
            a(f"v_mov_b32 v{ACC + r}, 0")

    gemm_loop(a, "g1", 16, DEPTH, G1_RING, G1_STAGE, 64 * 7168, dma, wread_ops, mfmas, addr_update, AF, init_acc,
              pro_limit=(opt('p1', 0) or None))
    c = 0.7978845608028654
    k0 = -2.0 * c * 1.4426950408889634
    k1 = k0 * 0.044715
    a(f"""
    s_mov_b32 s44, {hex(f32bits(k1))}
    s_mov_b32 s45, {hex(f32bits(k1))}
    v_mov_b32 v4, {hex(f32bits(k0))}
    v_mov_b32 v5, {hex(f32bits(k0))}
    s_lshl_b32 s21, s20, 1
    s_mul_i32 s21, s21, {224 * 1024}
    s_mul_i32 s22, s19, {7 * 1024}
    s_add_u32 s21, s21, s22
    s_add_u32 s22, s21, {224 * 1024}
    s_nop 7
    """)
    if opt('pf2', 1) == 1:
        pf2(a)
    T = 16
    for t in range(7):
        for mb in range(2):
            C = ACC + 16 * (2 * t + mb)
            g = [vr(C + 2 * p, 2) for p in range(4)]
            u = [vr(C + 8 + 2 * p, 2) for p in range(4)]
            tt = [vr(T + 2 * p, 2) for p in range(4)]
            for p in range(4):
                a(f"v_pk_mul_f32 {tt[p]}, {g[p]}, {g[p]}")
            for p in range(4):
                a(f"v_pk_fma_f32 {tt[p]}, {tt[p]}, s[44:45], v[4:5]")
            for p in range(4):
                a(f"v_pk_mul_f32 {tt[p]}, {tt[p]}, {g[p]}")
            for i in range(8):
                a(f"v_exp_f32 v{T + i}, v{T + i}")
            for p in range(4):
                a(f"v_pk_mul_f32 {u[p]}, {u[p]}, {g[p]}")
            for p in range(4):
                a(f"v_pk_add_f32 {tt[p]}, {tt[p]}, 1.0 op_sel_hi:[1,0]")
            for i in range(8):
                a(f"v_rcp_f32 v{T + i}, v{T + i}")
            a("s_nop 0")
            for p in range(4):
                a(f"v_pk_mul_f32 {u[p]}, {u[p]}, {tt[p]}")
            for p in range(4):
                a(f"v_cvt_pk_bf16_f32 v{C + p}, v{C + 8 + 2 * p}, v{C + 9 + 2 * p}")
            so = "s21" if mb == 0 else "s22"
            if t < 4:
                a(f"buffer_store_dwordx4 {vr(C, 4)}, v15, s[40:43], {so} offen offset:{1024 * t} {STH}")
            else:
                if t == 4:
                    a(f"s_add_u32 {so}, {so}, 4096")
                a(f"buffer_store_dwordx4 {vr(C, 4)}, v15, s[40:43], {so} offen offset:{1024 * (t - 4)} {STH}")
    if opt('pf2', 1) == 2:
        pf2(a)
    if opt('rt2', ''):
        f = opt('rt2', '').replace("-", "").replace("+", " ")
        for i in range(opt("pf2n", 4)):
            a(f"s_sub_u32 s23, s23, {1024 * 2048}")
            a(f"buffer_load_dword v{8 + i}, v6, s[48:51], s23 offen {f}")
    stamp(a, 5)
    stamp_flush(a, 2, 8)
    kernel_end(a, name)
    return name, descriptor(name, 256, AF + 8 * DEPTH, 64), (256, 256, G1_STAGE * G1_RING)


G2_STAGE = 16384
G2_RING = opt('r2', 5)


def gen_gemm2(a, DEPTH=opt('d2', 16)):
    name = "gemm2_kernel"
    kernel_begin(a, name, 256)
    a(f"""
    s_load_dwordx4 s[4:7], s[0:1], {KA_WD}
    s_load_dwordx2 s[8:9], s[0:1], {KA_WS}
    v_lshrrev_b32 v1, 6, v0
    v_and_b32 v2, 63, v0
    v_readfirstlane_b32 s17, v1             ; wave
    s_bfe_u32 s18, s2, 0x20001
    s_lshl_b32 s18, s18, 2
    s_lshr_b32 s20, s2, 6
    s_add_u32 s18, s18, s20                 ; mt
    s_and_b32 s19, s2, 1
    s_lshl_b32 s19, s19, 3
    s_bfe_u32 s20, s2, 0x30003
    s_add_u32 s19, s19, s20                 ; nt
    s_lshl_b32 s20, s18, 2
    s_add_u32 s20, s20, s17
    s_mul_i32 s21, s20, {224 * 1024}
    s_add_u32 s21, s21, {WS_HH}
    s_waitcnt lgkmcnt(0)
    s_add_u32 s28, s8, s21
    s_addc_u32 s29, s9, 0
    s_mov_b32 s30, {224 * 1024}
    s_mov_b32 s31, 0x20000
    """)
    srd(a, 24, 4, 3584 * 1024 * 2)
    srd(a, 40, 6, 4 * MB)
    srd(a, 44, 8, 4 * MB, off=WS_H)
    ACC = 32
    HR = 64
    a(f"""
    v_lshrrev_b32 v3, 3, v2
    v_lshlrev_b32 v3, 11, v3
    v_bfe_u32 v4, v2, 4, 1
    v_lshlrev_b32 v4, 2, v4
    v_and_b32 v5, 7, v2
    v_xor_b32 v4, v4, v5
    v_lshl_add_u32 v3, v4, 4, v3
    s_lshl_b32 s21, s19, 7
    s_lshl_b32 s22, s17, 16
    s_add_u32 s21, s21, s22
    v_add_u32 v8, s21, v3
    v_add_u32 v9, {16384 - 1024}, v8
    v_add_u32 v10, {16384 - 1024}, v9
    v_add_u32 v11, {16384 - 1024}, v10
    s_lshl_b32 s33, s17, 12
    v_lshlrev_b32 v15, 4, v2
    """)
    a(f"""
    s_lshl_b32 s21, s20, 16
    s_lshl_b32 s22, s19, 12
    s_add_u32 s21, s21, s22
    """)
    for i in range(4):
        a(f"buffer_load_dwordx4 {vr(HR + 4 * i, 4)}, v15, s[44:47], s21 offen offset:{1024 * i}")
    a(f"""
    v_lshrrev_b32 v3, 5, v2
    v_lshlrev_b32 v3, 3, v3
    v_bfe_u32 v4, v2, 2, 2
    v_add_u32 v3, v3, v4
    v_lshlrev_b32 v16, 7, v3
    v_bfe_u32 v3, v2, 4, 1
    v_lshl_add_u32 v16, v3, 5, v16
    v_and_b32 v3, 1, v2
    v_lshl_add_u32 v16, v3, 4, v16
    v_bfe_u32 v3, v2, 1, 1
    v_lshl_add_u32 v16, v3, 3, v16
    v_bfe_u32 v3, v2, 3, 1
    v_lshl_add_u32 v16, v3, 6, v16
    v_xor_b32 v17, 64, v16
    """)
    WF = [0, 16]
    AF = 32
    dma = [[f"buffer_load_dwordx4 v{8 + i}, s[24:27], s34 offen offset:{1024 * i} {NTW2} lds"] for i in range(4)]
    dma[0].insert(0, "s_mov_b32 m0, s35")

    def wread_ops(buf, sub):
        return [[f"ds_read_b64_tr_b16 {ar(WF[buf] + 8 * kk + 4 * t + 2 * rd, 2)}, v{18 + t} offset:{(32 * sub + 16 * kk + 4 * rd) * 128}"]
                for kk in range(2) for t in range(2) for rd in range(2)]

    def mfmas(buf, af):
        out = []
        for kk in range(2):
            for t in range(2):
                acc = vr(ACC + 16 * t, 16)
                out.append(f"v_mfma_f32_32x32x16_bf16 {acc}, {ar(WF[buf] + 8 * kk + 4 * t, 4)}, {ar(af + 4 * kk, 4)}, {acc}")
        return out

    def addr_update():
        return [["v_add_u32 v18, s37, v16", "v_add_u32 v19, s37, v17"]]

    def init_acc():
        for r in range(32):
            a(f"v_mov_b32 v{ACC + r}, 0")

    gemm_loop(a, "g2", 28, DEPTH, G2_RING, G2_STAGE, 128 * 2048, dma, wread_ops, mfmas, addr_update, AF, init_acc,
              pro_limit=(opt('p2', 0) or None))
    a(f"""
    v_and_b32 v3, 31, v2
    v_lshlrev_b32 v3, 11, v3
    v_lshrrev_b32 v4, 5, v2
    v_lshl_add_u32 v3, v4, 4, v3
    s_lshl_b32 s21, s20, 16
    s_lshl_b32 s22, s19, 7
    s_add_u32 s21, s21, s22
    s_nop 7
    s_nop 7
    """)
    for g in range(4):
        C = ACC + 8 * g
        for p in range(4):
            a(f"v_cvt_pk_bf16_f32 v20, v{C + 2 * p}, v{C + 2 * p + 1}")
            a(f"v_lshlrev_b32 v22, 16, v{HR + 4 * g + p}")
            a(f"v_and_b32 v23, 0xffff0000, v{HR + 4 * g + p}")
            a(f"v_and_b32 v21, 0xffff0000, v20")
            a(f"v_lshlrev_b32 v20, 16, v20")
            a(f"v_pk_add_f32 v[20:21], v[20:21], v[22:23]")
            a(f"v_cvt_pk_bf16_f32 v{HR + 4 * g + p}, v20, v21")
        a(f"buffer_store_dwordx4 {vr(HR + 4 * g, 4)}, v3, s[40:43], s21 offen offset:{32 * g}")
    stamp(a, 5)
    stamp_flush(a, 3, 8)
    kernel_end(a, name)
    return name, descriptor(name, 80, AF + 8 * DEPTH, 64), (256, 256, G2_STAGE * G2_RING)


def gen_enc(a):
    kA, iA, kB, iB, mult = [int(x) for x in opt("enc", "").split(":")]
    name = "enc_kernel"
    a.raw(f".globl {name}")
    a.raw(".p2align 8")
    a.raw(f".type {name},@function")
    a.label(name)
    a(f"""
    s_cmp_ge_u32 s2, 1
    s_cbranch_scc1 L_enc_end
    s_memrealtime s[10:11]
    s_load_dwordx2 s[4:5], s[0:1], {KA_WS}
    s_waitcnt lgkmcnt(0)
    s_add_u32 s4, s4, {PROF_BASE}
    s_addc_u32 s5, s5, 0
    s_mov_b32 s8, {kA * MB + 4 * iA}
    s_mov_b32 s9, {(kB % 9) * MB + 4 * iB}
    s_load_dword s6, s[4:5], s8
    s_load_dword s7, s[4:5], s9
    s_waitcnt lgkmcnt(0)
    """)
    if kB == 9:
        a("s_mov_b32 s7, s10")
    a(f"""
    s_sub_u32 s6, s7, s6
    s_min_u32 s6, s6, {opt("encmax", 10000)}
    s_mul_i32 s6, s6, {mult}
    s_lshr_b32 s6, s6, {opt("encsh", 0)}
    """)
    a.label("L_enc_loop")
    a("""
    s_memrealtime s[12:13]
    s_waitcnt lgkmcnt(0)
    s_sub_u32 s12, s12, s10
    s_cmp_lt_u32 s12, s6
    s_cbranch_scc1 L_enc_loop
    """)
    a.label("L_enc_end")
    a("s_endpgm")
    return name, descriptor(name, 8, 0, 32), (1, 64, 0)


HEADER = open("cdna_kernels/" + NAME + ".s.ref").read().split("; Override launch")[0]


def main():
    out = sys.argv[1] if len(sys.argv) > 1 else f"cdna_kernels/{NAME}.s"
    global PROF
    PROF = "--prof" in sys.argv
    a = Asm()
    ks = [gen_conv(a), gen_ln(a), gen_gemm1(a), gen_gemm2(a)]
    if opt("enc", ""):
        ks.append(gen_enc(a))
    s = HEADER
    for name, _, (g, b, lds) in ks:
        s += f"; @launch kernel={name} grid=({g},1,1) block=({b},1,1) lds={lds}\n"
    s += '.amdgcn_target "amdgcn-amd-amdhsa--gfx950"\n.text\n'
    s += a.text()
    s += '.section .rodata,"a"\n'
    for name, d, _ in ks:
        s += ".p2align 6\n" + d
    open(out, "w").write(s)


if __name__ == "__main__":
    main()
```

```python
import struct
import sys

NAME = "sequential_preLN__ssm_conv_h3__glu_gated_geglu__prompt"

KA_Q, KA_K, KA_V, KA_SK, KA_HK, KA_D, KA_X, KA_WG, KA_WU, KA_WD, KA_OUT, KA_DBG, KA_WS = [8 * i for i in range(13)]

MB = 1 << 20
WS_Z = 0
WS_H = 4 * MB
WS_LN = 8 * MB
WS_HH = 12 * MB


def f32bits(x):
    return struct.unpack("<I", struct.pack("<f", x))[0]


class Asm:
    def __init__(self):
        self.lines = []

    def __call__(self, s):
        for ln in s.strip("\n").split("\n"):
            self.lines.append("  " + ln.strip())

    def label(self, l):
        self.lines.append(l + ":")

    def raw(self, s):
        self.lines.append(s)

    def text(self):
        return "\n".join(self.lines) + "\n"


def vr(b, n=1, p="v"):
    return f"{p}{b}" if n == 1 else f"{p}[{b}:{b + n - 1}]"


def ar(b, n=1):
    return vr(b, n, "a")


def sr(b, n=1):
    return vr(b, n, "s")


def srd(a, d, base, nbytes, off=None):
    if off is None:
        a(f"s_mov_b32 s{d}, s{base}")
        a(f"s_mov_b32 s{d + 1}, s{base + 1}")
    else:
        a(f"s_add_u32 s{d}, s{base}, {off}")
        a(f"s_addc_u32 s{d + 1}, s{base + 1}, 0")
    a(f"s_mov_b32 s{d + 2}, {nbytes}")
    a(f"s_mov_b32 s{d + 3}, 0x20000")


PROF = False
import os
OPT = dict(x.split("=") for x in os.environ.get("GOPT", "").split(",") if x)


def opt(k, d):
    v = OPT.get(k)
    if v is None:
        return d
    return type(d)(v) if d is not None and not isinstance(d, str) else v


NTW1 = opt("ntw1", "nt").replace("-", "")
NTW2 = opt("ntw2", "nt").replace("-", "")
STH = opt("sth", "").replace("-", "").replace("+", " ")
STL = opt("stl", "").replace("-", "").replace("+", " ")
STZ = opt("stz", "").replace("-", "").replace("+", " ")
NTA = opt("nta", "").replace("-", "")
NTI = 'nt'
PROF_BASE = 48 * MB
ST0 = 80


def stamp(a, i, real=False):
    if not PROF:
        return
    a(f"{'s_memrealtime' if real else 's_memtime'} s[{ST0 + 2 * i}:{ST0 + 2 * i + 1}]")
    a("s_waitcnt lgkmcnt(0)")


def stamp_flush(a, kidx, n, lw=2):
    if not PROF:
        return
    a("s_waitcnt vmcnt(0) lgkmcnt(0)")
    stamp(a, n - 2)
    stamp(a, n - 1, real=True)
    a(f"s_load_dwordx2 s[4:5], s[0:1], {KA_WS}")
    a("s_waitcnt lgkmcnt(0)")
    srd(a, 8, 4, 1 * MB, off=PROF_BASE + kidx * MB)
    a(f"s_lshl_b32 s6, s2, {lw}")
    a("s_add_u32 s6, s6, s17")
    a("s_lshl_b32 s6, s6, 6")
    a("v_mov_b32 v1, 0")
    for i in range(n):
        a(f"v_mov_b32 v2, s{ST0 + 2 * i}")
        a(f"buffer_store_dword v2, v1, s[8:11], s6 offen offset:{4 * i}")
    a("s_waitcnt vmcnt(0)")


def kernel_begin(a, name, nwg):
    a.raw(f".globl {name}")
    a.raw(".p2align 8")
    a.raw(f".type {name},@function")
    a.label(name)
    a(f"s_cmp_ge_u32 s2, {nwg}")
    a(f"s_cbranch_scc1 L_{name}_end")
    stamp(a, 0, real=True)
    stamp(a, 1)


def kernel_end(a, name):
    a.label(f"L_{name}_end")
    a("s_endpgm")


def descriptor(name, vgprs, agprs, sgprs):
    acc = (vgprs + 3) // 4 * 4
    nfv = acc + agprs if agprs else vgprs
    return f""".amdhsa_kernel {name}
  .amdhsa_next_free_vgpr {nfv}
  .amdhsa_next_free_sgpr {100 if PROF else sgprs}
  .amdhsa_accum_offset {acc}
  .amdhsa_group_segment_fixed_size 0
  .amdhsa_kernarg_size 104
  .amdhsa_user_sgpr_count 2
  .amdhsa_user_sgpr_kernarg_segment_ptr 1
  .amdhsa_system_sgpr_workgroup_id_x 1
  .amdhsa_float_denorm_mode_32 3
.end_amdhsa_kernel
"""


U_STRIDE = 4608
H_COPY = 4160
H_BASE = 4 * U_STRIDE
CONV_LDS = H_BASE + 4 * 2 * H_COPY


def gen_conv(a):
    name = "conv_kernel"
    kernel_begin(a, name, 256)
    a(f"""
    s_load_dwordx4 s[4:7], s[0:1], {KA_K}
    s_load_dwordx4 s[8:11], s[0:1], {KA_SK}
    s_load_dwordx2 s[12:13], s[0:1], {KA_D}
    s_load_dwordx2 s[14:15], s[0:1], {KA_WS}
    s_and_b32 s16, s2, 7
    s_lshl_b32 s16, s16, 7
    s_lshr_b32 s17, s2, 3
    s_lshl_b32 s17, s17, 2
    s_add_u32 s16, s16, s17                 ; s16 = d0
    v_lshrrev_b32 v1, 6, v0
    v_and_b32 v2, 63, v0                    ; v2 = lane
    v_readfirstlane_b32 s17, v1             ; s17 = wave
    s_lshl_b32 s18, s16, 3                  ; d0*8
    s_lshl_b32 s19, s16, 1                  ; d0*2
    s_waitcnt lgkmcnt(0)
    s_load_dwordx8 s[36:43], s[8:9], s18    ; shift_k[d0..d0+3][0..3]
    s_load_dwordx2 s[60:61], s[12:13], s19  ; ssm_D[d0..d0+3]
    """)
    srd(a, 20, 4, 4 * MB)
    srd(a, 24, 6, 4 * MB)
    srd(a, 28, 10, 4 * MB)
    srd(a, 32, 14, 4 * MB, off=WS_Z if WS_Z else None)
    a(f"""
    s_add_u32 s62, s16, s17
    s_lshl_b32 s62, s62, 12
    v_lshlrev_b32 v3, 4, v2
    """)
    HR = 100
    for i in range(4):
        a(f"buffer_load_dwordx4 {vr(HR + 8 * i, 4)}, v3, s[28:31], s62 offen offset:{1024 * i} {NTI}")
        a(f"buffer_load_dword {vr(HR + 8 * i + 4)}, v3, s[28:31], s62 offen offset:{1024 * i + 16} {NTI}")
    a(f"""
    v_lshlrev_b32 v4, 12, v0
    v_add_u32 v4, s19, v4
    v_subrev_u32 v7, {3 * 2048}, v4
    v_mov_b32 v6, 0x40000000
    v_cmp_eq_u32 vcc, 0, v2
    s_nop 1
    v_cndmask_b32 v5, v6, v4, vcc
    v_cndmask_b32 v7, v6, v7, vcc
    v_cmp_eq_u32 vcc, 0, v0
    s_nop 1
    v_cndmask_b32 v7, v7, v6, vcc
    s_mov_b32 s64, 0
    s_mov_b32 s65, {1 * MB}
    s_mov_b32 s66, {2 * MB}
    s_mov_b32 s67, {3 * MB}
    s_mov_b32 s68, 0
    s_mov_b32 s69, {1 * MB - 6144}
    s_mov_b32 s70, {2 * MB - 6144}
    s_mov_b32 s71, {3 * MB - 6144}
    s_mov_b32 s76, 4096
    s_mov_b32 s77, {1 * MB - 2048}
    s_mov_b32 s78, {2 * MB - 2048}
    s_mov_b32 s79, {3 * MB - 2048}
    """)
    RAW = [140, 156]

    def issue_q(q):
        b = RAW[q & 1]
        hv = "v7" if q == 0 else "v5"
        a(f"buffer_load_dwordx2 {vr(b + 0, 2)}, v4, s[20:23], s{64 + q} offen {NTI}")
        a(f"buffer_load_dwordx2 {vr(b + 2, 2)}, v4, s[20:23], s{64 + q} offen offset:2048 {NTI}")
        a(f"buffer_load_dwordx2 {vr(b + 4, 2)}, v4, s[24:27], s{64 + q} offen {NTI}")
        a(f"buffer_load_dwordx2 {vr(b + 6, 2)}, v4, s[24:27], s{64 + q} offen offset:2048 {NTI}")
        a(f"buffer_load_dwordx2 {vr(b + 8, 2)}, {hv}, s[20:23], s{68 + q} offen")
        a(f"buffer_load_dwordx2 {vr(b + 10, 2)}, {hv}, s[20:23], s{68 + q} offen offset:2048")
        a(f"buffer_load_dwordx2 {vr(b + 12, 2)}, {hv}, s[20:23], s{76 + q} offen")

    issue_q(0)
    a("s_barrier")
    issue_q(1)
    a("s_waitcnt lgkmcnt(0)")
    for j in range(4):
        for c in range(4):
            src = 36 + 2 * c + (j >> 1)
            dst = 44 + 4 * j + c
            if j & 1:
                a(f"s_and_b32 s{dst}, s{src}, 0xffff0000")
            else:
                a(f"s_lshl_b32 s{dst}, s{src}, 16")
    a(f"""
    s_cmp_ge_u32 s17, 2
    s_cselect_b32 s63, s61, s60
    s_lshl_b32 s72, s63, 16
    s_and_b32 s63, s63, 0xffff0000
    s_bitcmp1_b32 s17, 0
    s_cselect_b32 s63, s63, s72
    """)
    a(f"""
    s_mul_i32 s72, s17, {U_STRIDE}
    s_mul_i32 s73, s17, {2 * H_COPY}
    s_add_u32 s73, s73, {H_BASE}
    v_mov_b32 v8, 0
    v_mov_b32 v9, 0
    v_mov_b32 v10, 0
    v_mov_b32 v11, 0
    v_lshlrev_b32 v12, 3, v2
    v_add_u32 v12, s72, v12
    ds_write_b64 v12, v[8:9] offset:4096
    v_add_u32 v13, s73, v3
    s_waitcnt vmcnt(14)
    """)
    a(f"""
    v_readfirstlane_b32 s74, v{HR}
    v_and_b32 v14, 1, v2
    v_lshlrev_b32 v15, 4, v14
    v_add_u32 v15, s73, v15
    s_lshl_b32 s74, s74, 16
    v_mul_u32_u24 v16, 1, v14
    ds_write_b128 v15, v[8:11]
    v_mov_b32 v17, s74
    v_cmp_eq_u32 vcc, 1, v14
    v_mov_b32 v20, 0
    v_mov_b32 v21, 0
    v_mov_b32 v22, 0
    v_cndmask_b32 v23, 0, v17, vcc
    ds_write_b128 v15, v[20:23] offset:{H_COPY}
    """)
    for i in range(4):
        b = HR + 8 * i
        a(f"ds_write_b128 v13, {vr(b, 4)} offset:{32 + 1024 * i}")
        t = 24 + 4 * (i & 1)
        for d in range(4):
            a(f"v_alignbit_b32 v{t + d}, v{b + d + 1}, v{b + d}, 16")
        a(f"ds_write_b128 v13, {vr(t, 4)} offset:{H_COPY + 32 + 1024 * i}")
    a(f"""
    v_and_b32 v14, 15, v2                   ; a / i
    v_lshrrev_b32 v15, 4, v2                ; kq / q
    v_lshlrev_b32 v16, 4, v15
    v_lshl_add_u32 v16, v14, 1, v16         ; + 2a
    v_and_b32 v17, 1, v14
    v_cmp_eq_u32 vcc, 1, v17
    v_add_u32 v18, 2, v16
    v_add_u32 v19, {H_COPY}, v16
    v_cndmask_b32 v16, v19, v18, vcc
    v_add_u32 v16, s73, v16
    s_waitcnt lgkmcnt(0)
    """)
    for j in range(64):
        if j and j % 16 == 0:
            a("v_add_u32 v16, 1024, v16")
        o = (j % 16) * 16
        a(f"ds_read2_b32 {ar(4 * j, 2)}, v16 offset0:{o} offset1:{o + 1}")
        a(f"ds_read2_b32 {ar(4 * j + 2, 2)}, v16 offset0:{o + 2} offset1:{o + 3}")
    a(f"""
    v_lshlrev_b32 v17, 4, v15
    v_lshlrev_b32 v18, 5, v14
    v_sub_u32 v17, v17, v18
    v_add_u32 v17, 480, v17
    v_add_u32 v17, s72, v17
    """)
    a(f"""
    v_lshlrev_b32 v19, 3, v15
    v_add_u32 v19, v19, v18
    v_sub_u32 v18, {4088 - 3584}, v19
    v_add_u32 v18, s72, v18
    """)
    a(f"""
    v_lshlrev_b32 v19, 2, v0
    v_sub_u32 v19, {4092 - 3072}, v19
    """)
    a(f"""
    v_lshlrev_b32 v20, 15, v14              ; 2i*16384
    v_lshrrev_b32 v21, 1, v15
    v_lshlrev_b32 v21, 14, v21
    v_add_u32 v20, v20, v21
    v_and_b32 v21, 1, v15
    v_lshl_add_u32 v20, v21, 3, v20
    s_add_u32 s74, s16, s17
    s_lshl_b32 s74, s74, 4
    v_add_u32 v20, s74, v20
    """)
    ACC = 32
    for r in range(32):
        a(f"v_mov_b32 v{ACC + r}, 0")
    BF = [64, 68, 72, 76]
    KF = 176
    VF = 196
    KS = 204
    PK = 212

    def compute_q(q):
        b = RAW[q & 1]
        for d in range(2):
            a(f"v_mov_b32_dpp v{b + 12 + d}, v{b + 2 + d} wave_shr:1 row_mask:0xf bank_mask:0xf")
        for d in range(2):
            a(f"v_mov_b32_dpp v{b + 10 + d}, v{b + 0 + d} wave_shr:1 row_mask:0xf bank_mask:0xf")
        a("s_nop 0")
        for d in range(2):
            a(f"v_mov_b32_dpp v{b + 8 + d}, v{b + 12 + d} wave_shr:1 row_mask:0xf bank_mask:0xf")
        src = [b + 8, b + 10, b + 12, b + 0, b + 2]
        for r in [3, 4, 2, 1, 0]:
            for p in range(2):
                a(f"v_lshlrev_b32 v{KF + 4 * r + 2 * p}, 16, v{src[r] + p}")
                a(f"v_and_b32 v{KF + 4 * r + 2 * p + 1}, 0xffff0000, v{src[r] + p}")
        for r in range(2):
            for p in range(2):
                a(f"v_lshlrev_b32 v{VF + 4 * r + 2 * p}, 16, v{b + 4 + 2 * r + p}")
                a(f"v_and_b32 v{VF + 4 * r + 2 * p + 1}, 0xffff0000, v{b + 4 + 2 * r + p}")
        for j in range(4):
            for r in range(2):
                for p in range(2):
                    kreg = vr(KF + 4 * (3 + r - j) + 2 * p, 2)
                    w = sr(44 + 4 * j + 2 * p, 2)
                    d = vr(KS + 4 * r + 2 * p, 2)
                    if j == 0:
                        a(f"v_pk_mul_f32 {d}, {kreg}, {w}")
                    else:
                        a(f"v_pk_fma_f32 {d}, {kreg}, {w}, {d}")
        for r in range(2):
            for p in range(2):
                d = vr(KS + 4 * r + 2 * p, 2)
                a(f"v_pk_mul_f32 {d}, {d}, {vr(VF + 4 * r + 2 * p, 2)}")
        for c in range(4):
            a(f"v_cvt_pk_bf16_f32 v{PK + c}, v{KS + 4 + c}, v{KS + c}")
        for c in range(4):
            a(f"ds_write_b32 v19, v{PK + c} offset:{3072 - 1024 * q + c * U_STRIDE}")

    def mfma_e(e):
        seq = [(jp) for jp in range(8)]
        def rd(jp):
            a(f"ds_read_b128 {vr(BF[jp & 3], 4)}, v17 offset:{3584 - 512 * e + 64 * jp}")
        for jp in range(3):
            rd(jp)
        for jp in seq:
            if jp + 3 < 8:
                rd(jp + 3)
                a("s_waitcnt lgkmcnt(3)")
            else:
                a(f"s_waitcnt lgkmcnt({7 - jp})")
            for m in range(8 - e):
                acc = vr(ACC + 4 * (e + m), 4)
                a(f"v_mfma_f32_16x16x32_bf16 {acc}, {ar(4 * (jp + 8 * m), 4)}, {vr(BF[jp & 3], 4)}, {acc}")

    def epilogue_c(c):
        t = 80 + 8 * (c & 1)
        a(f"ds_read_b64 {vr(t, 2)}, v18 offset:{3584 - 512 * c}")
        a("s_waitcnt lgkmcnt(0)")
        a(f"v_and_b32 v{t + 2}, 0xffff0000, v{t + 1}")
        a(f"v_lshlrev_b32 v{t + 3}, 16, v{t + 1}")
        a(f"v_and_b32 v{t + 4}, 0xffff0000, v{t}")
        a(f"v_lshlrev_b32 v{t + 5}, 16, v{t}")
        for r in range(4):
            a(f"v_fma_f32 v{t + 2 + r}, v{t + 2 + r}, s63, v{ACC + 4 * c + r}")
        a(f"v_cvt_pk_bf16_f32 v{t}, v{t + 2}, v{t + 3}")
        a(f"v_cvt_pk_bf16_f32 v{t + 1}, v{t + 4}, v{t + 5}")
        a(f"s_mov_b32 s75, {c * 32 * 16384}")
        a(f"buffer_store_dwordx2 {vr(t, 2)}, v20, s[32:35], s75 offen {STZ}")

    stamp(a, 2)
    stores = 0
    for q in range(4):
        if q == 0:
            a("s_waitcnt vmcnt(7)")
        elif q == 1:
            a("s_waitcnt vmcnt(7)")
        elif q == 2:
            a("s_waitcnt vmcnt(9)")
        else:
            a("s_waitcnt vmcnt(4)")
        stamp(a, 3 + q)
        compute_q(q)
        if q + 2 < 4:
            issue_q(q + 2)
        a("s_waitcnt lgkmcnt(0)")
        a("s_barrier")
        mfma_e(2 * q)
        if q > 0:
            epilogue_c(2 * q - 2)
            epilogue_c(2 * q - 1)
        mfma_e(2 * q + 1)
    a("s_nop 7")
    epilogue_c(6)
    epilogue_c(7)
    stamp(a, 7)
    stamp_flush(a, 0, 10)
    kernel_end(a, name)
    return name, descriptor(name, 256, 256, 96), (256, 256, CONV_LDS)


Z_BASE = CONV_LDS
CONV2_LDS = Z_BASE + 16384 + 16


def gen_conv2(a):
    name = "conv_kernel"
    kernel_begin(a, name, 256)
    a(f"""
    s_load_dwordx4 s[4:7], s[0:1], {KA_K}
    s_load_dwordx4 s[8:11], s[0:1], {KA_SK}
    s_load_dwordx2 s[12:13], s[0:1], {KA_D}
    s_load_dwordx2 s[14:15], s[0:1], {KA_WS}
    s_and_b32 s16, s2, 7
    s_lshl_b32 s16, s16, 7
    s_lshr_b32 s17, s2, 3
    s_lshl_b32 s17, s17, 2
    s_add_u32 s16, s16, s17                 ; s16 = d0
    v_lshrrev_b32 v1, 6, v0
    v_and_b32 v2, 63, v0                    ; v2 = lane
    v_readfirstlane_b32 s17, v1             ; s17 = wave
    s_lshl_b32 s18, s16, 3                  ; d0*8
    s_lshl_b32 s19, s16, 1                  ; d0*2
    s_cmp_ge_u32 s17, 4
    s_cbranch_scc1 L_conv_prod
    """)
    a(f"""
    s_add_u32 s62, s16, s17
    s_lshl_b32 s62, s62, 12
    v_lshlrev_b32 v3, 4, v2
    s_waitcnt lgkmcnt(0)
    s_load_dwordx2 s[60:61], s[12:13], s19  ; ssm_D[d0..d0+3]
    """)
    srd(a, 28, 10, 4 * MB)
    HR = 64
    for i in range(4):
        a(f"buffer_load_dwordx4 {vr(HR + 8 * i, 4)}, v3, s[28:31], s62 offen offset:{1024 * i} {NTI}")
    a(f"""
    s_mul_i32 s72, s17, {U_STRIDE}
    s_mul_i32 s73, s17, {2 * H_COPY}
    s_add_u32 s73, s73, {H_BASE}
    v_mov_b32 v8, 0
    v_mov_b32 v9, 0
    v_mov_b32 v10, 0
    v_mov_b32 v11, 0
    v_lshlrev_b32 v12, 3, v2
    v_add_u32 v12, s72, v12
    ds_write_b64 v12, v[8:9] offset:4096
    v_mov_b32 v13, {Z_BASE + 16384}
    ds_write_b128 v13, v[8:11]
    s_waitcnt lgkmcnt(0)
    s_barrier
    v_add_u32 v13, s73, v3
    v_and_b32 v14, 15, v2                   ; a / i
    v_lshrrev_b32 v15, 4, v2                ; kq / q
    v_lshlrev_b32 v16, 4, v15
    v_lshl_add_u32 v16, v14, 1, v16
    v_and_b32 v17, 1, v14
    v_cmp_eq_u32 vcc, 1, v17
    v_add_u32 v18, 2, v16
    v_add_u32 v19, {H_COPY}, v16
    v_cndmask_b32 v16, v19, v18, vcc
    v_add_u32 v16, s73, v16
    v_add_u32 v21, 1024, v16
    v_add_u32 v22, 2048, v16
    v_add_u32 v23, 3072, v16
    v_lshlrev_b32 v17, 4, v15
    v_lshlrev_b32 v18, 5, v14
    v_sub_u32 v17, v17, v18
    v_add_u32 v17, 480, v17
    v_add_u32 v17, s72, v17
    v_lshlrev_b32 v19, 3, v15
    v_add_u32 v19, v19, v18
    v_sub_u32 v18, {4088 - 3584}, v19
    v_add_u32 v18, s72, v18
    v_lshrrev_b32 v19, 1, v15
    v_lshlrev_b32 v19, 2, v19
    v_add_u32 v19, s17, v19                 ; slot = (q>>1)*4 + w
    v_and_b32 v20, 7, v14
    v_xor_b32 v19, v19, v20
    v_lshlrev_b32 v19, 4, v19
    v_lshl_add_u32 v19, v14, 7, v19
    v_and_b32 v20, 1, v15
    v_lshl_add_u32 v19, v20, 3, v19
    v_add_u32 v19, {Z_BASE}, v19
    v_and_b32 v24, 1, v2
    v_lshlrev_b32 v25, 4, v24
    v_add_u32 v25, s73, v25
    ds_write_b128 v25, v[8:11]
    s_waitcnt lgkmcnt(0)
    s_cmp_ge_u32 s17, 2
    s_cselect_b32 s63, s61, s60
    s_lshl_b32 s74, s63, 16
    s_and_b32 s63, s63, 0xffff0000
    s_bitcmp1_b32 s17, 0
    s_cselect_b32 s63, s63, s74             ; D (f32)
    """)
    ACC = 32
    for r in range(32):
        a(f"v_mov_b32 v{ACC + r}, 0")
    a("s_waitcnt vmcnt(0)")
    stamp(a, 2)
    for i in range(4):
        a(f"v_readfirstlane_b32 s{64 + i}, v{HR + 8 * i}")
    a(f"""
    v_cmp_eq_u32 vcc, 1, v24
    s_lshl_b32 s74, s64, 16
    v_mov_b32 v26, s74
    v_mov_b32 v{HR + 4}, s65
    v_mov_b32 v{HR + 12}, s66
    v_mov_b32 v{HR + 20}, s67
    v_cndmask_b32 v11, 0, v26, vcc
    ds_write_b128 v25, v[8:11] offset:{H_COPY}
    """)
    for i in range(4):
        b = HR + 8 * i
        a(f"ds_write_b128 v13, {vr(b, 4)} offset:{32 + 1024 * i}")
        a(f"v_mov_b32_dpp v{b + 4}, v{b} wave_shl:1 row_mask:0xf bank_mask:0xf")
    for i in range(4):
        b = HR + 8 * i
        t = 96 + 4 * i
        for d in range(4):
            a(f"v_alignbit_b32 v{t + d}, v{b + d + 1}, v{b + d}, 16")
        a(f"ds_write_b128 v13, {vr(t, 4)} offset:{H_COPY + 32 + 1024 * i}")
    a("s_waitcnt lgkmcnt(0)")
    HV = ["v16", "v21", "v22", "v23"]
    slot_of = {}

    def load_A(m, grp):
        slot_of[m] = grp
        for jp in range(8):
            j = jp + 8 * m
            o = (j % 16) * 16
            r = 32 * grp + 4 * jp
            a(f"ds_read2_b32 {ar(r, 2)}, {HV[j // 16]} offset0:{o} offset1:{o + 1}")
            a(f"ds_read2_b32 {ar(r + 2, 2)}, {HV[j // 16]} offset0:{o + 2} offset1:{o + 3}")

    BFB = 64
    CNT = Z_BASE + 16384

    def mfma_phase(steps, extra_reads=()):
        flat = [(e, jp, [m for m in ms if e + m <= 7]) for e, ms in steps for jp in range(8)]
        n = len(flat)
        D = 7
        for x in extra_reads:
            a(x)

        def rd(i):
            e, jp, _ = flat[i]
            a(f"ds_read_b128 {vr(BFB + 4 * (i & 7), 4)}, v17 offset:{3584 - 512 * e + 64 * jp}")
        for i in range(min(D, n)):
            rd(i)
        for i, (e, jp, ms) in enumerate(flat):
            if i + D < n:
                rd(i + D)
                a(f"s_waitcnt lgkmcnt({D})")
            else:
                a(f"s_waitcnt lgkmcnt({n - 1 - i})")
            for m in ms:
                acc = vr(ACC + 4 * (e + m), 4)
                a(f"v_mfma_f32_16x16x32_bf16 {acc}, {ar(32 * slot_of[m] + 4 * jp, 4)}, {vr(BFB + 4 * (i & 7), 4)}, {acc}")

    def kv_reads(cs):
        return [f"ds_read_b64 {vr(96 + 8 * n, 2)}, v18 offset:{3584 - 512 * c}" for n, c in enumerate(cs)]

    def epilogue(cs):
        for n, c in enumerate(cs):
            t = 96 + 8 * n
            a(f"v_and_b32 v{t + 2}, 0xffff0000, v{t + 1}")
            a(f"v_lshlrev_b32 v{t + 3}, 16, v{t + 1}")
            a(f"v_and_b32 v{t + 4}, 0xffff0000, v{t}")
            a(f"v_lshlrev_b32 v{t + 5}, 16, v{t}")
        for n, c in enumerate(cs):
            t = 96 + 8 * n
            for r in range(4):
                a(f"v_fma_f32 v{t + 2 + r}, v{t + 2 + r}, s63, v{ACC + 4 * c + r}")
            a(f"v_cvt_pk_bf16_f32 v{t}, v{t + 2}, v{t + 3}")
            a(f"v_cvt_pk_bf16_f32 v{t + 1}, v{t + 4}, v{t + 5}")
            a(f"ds_write_b64 v19, {vr(t, 2)} offset:{2048 * c}")
        a("s_waitcnt lgkmcnt(0)")

    def wait_q(q):
        a.label(f"L_conv_w{q}")
        a(f"""
        ds_read_b32 v27, v26 offset:{4 * q}
        s_waitcnt lgkmcnt(0)
        v_readfirstlane_b32 s75, v27
        s_cmp_ge_u32 s75, 4
        s_cbranch_scc1 L_conv_g{q}
        s_sleep 1
        s_branch L_conv_w{q}
        """)
        a.label(f"L_conv_g{q}")
        stamp(a, 4 + q)

    a(f"v_mov_b32 v26, {CNT}")
    for m in (4, 5, 6, 7):
        load_A(m, m - 4)
    a("s_waitcnt lgkmcnt(0)")
    stamp(a, 3)
    wait_q(0)
    mfma_phase([(0, [4, 5, 6, 7]), (1, [4, 5, 6])])
    load_A(0, 3)
    load_A(1, 2)
    mfma_phase([(0, [0, 1]), (1, [0, 1])])
    wait_q(1)
    mfma_phase([(2, [4, 5, 0, 1]), (3, [4, 0, 1])], kv_reads([0, 1]))
    load_A(2, 1)
    load_A(3, 0)
    epilogue([0, 1])
    mfma_phase([(e, [2, 3]) for e in range(4)])
    wait_q(2)
    mfma_phase([(4, [0, 1, 2, 3]), (5, [0, 1, 2])], kv_reads([2, 3, 4]))
    epilogue([2, 3, 4])
    wait_q(3)
    mfma_phase([(6, [0, 1]), (7, [0])], kv_reads([5, 6, 7]))
    epilogue([5, 6, 7])
    a("s_branch L_conv_fin")
    a.label("L_conv_prod")
    a(f"""
    v_and_b32 v3, 255, v0                   ; t
    s_lshr_b32 s62, s2, 3
    s_lshl_b32 s62, s62, 17
    s_and_b32 s63, s2, 7
    s_lshl_b32 s63, s63, 8
    s_add_u32 s62, s62, s63
    s_and_b32 s63, s17, 1
    s_lshl_b32 s63, s63, 7
    s_add_u32 s62, s62, s63
    v_lshlrev_b32 v8, 11, v2
    s_waitcnt lgkmcnt(0)
    s_load_dwordx8 s[36:43], s[8:9], s18    ; shift_k[d0..d0+3][0..3]
    s_cmp_ge_u32 s17, 6
    s_cselect_b32 s28, s6, s4
    s_cselect_b32 s29, s7, s5
    s_mov_b32 s30, {4 * MB}
    s_mov_b32 s31, 0x20000
    """)
    if opt("cpf", 1):
        a(f"buffer_load_dword v9, v8, s[28:31], s62 offen {opt('cpfnt', 'nt').replace('-', '')}")
    srd(a, 20, 4, 4 * MB)
    srd(a, 24, 6, 4 * MB)
    a(f"""
    v_lshlrev_b32 v4, 12, v3
    v_add_u32 v4, s19, v4
    v_subrev_u32 v7, {3 * 2048}, v4
    v_mov_b32 v6, 0x40000000
    v_cmp_eq_u32 vcc, 0, v2
    s_nop 1
    v_cndmask_b32 v5, v6, v4, vcc
    v_cndmask_b32 v7, v6, v7, vcc
    v_cmp_eq_u32 vcc, 0, v3
    s_nop 1
    v_cndmask_b32 v7, v7, v6, vcc
    s_mov_b32 s64, 0
    s_mov_b32 s65, {1 * MB}
    s_mov_b32 s66, {2 * MB}
    s_mov_b32 s67, {3 * MB}
    s_mov_b32 s68, 0
    s_mov_b32 s69, {1 * MB - 6144}
    s_mov_b32 s70, {2 * MB - 6144}
    s_mov_b32 s71, {3 * MB - 6144}
    s_mov_b32 s76, 4096
    s_mov_b32 s77, {1 * MB - 2048}
    s_mov_b32 s78, {2 * MB - 2048}
    s_mov_b32 s79, {3 * MB - 2048}
    """)
    RAW = [32, 48]
    NTN = opt("ntn", "").replace("-", "")

    def issue_k(q):
        b = RAW[q & 1]
        hv = "v7" if q == 0 else "v5"
        a(f"buffer_load_dwordx2 {vr(b + 0, 2)}, v4, s[20:23], s{64 + q} offen {NTN}")
        a(f"buffer_load_dwordx2 {vr(b + 8, 2)}, {hv}, s[20:23], s{68 + q} offen")
        a(f"buffer_load_dwordx2 {vr(b + 10, 2)}, {hv}, s[20:23], s{68 + q} offen offset:2048")
        a(f"buffer_load_dwordx2 {vr(b + 12, 2)}, {hv}, s[20:23], s{76 + q} offen")
        a(f"buffer_load_dwordx2 {vr(b + 2, 2)}, v4, s[20:23], s{64 + q} offen offset:2048 {NTN}")

    def issue_v(q):
        b = RAW[q & 1]
        a(f"buffer_load_dwordx2 {vr(b + 4, 2)}, v4, s[24:27], s{64 + q} offen {NTN}")
        a(f"buffer_load_dwordx2 {vr(b + 6, 2)}, v4, s[24:27], s{64 + q} offen offset:2048 {NTN}")

    a("s_barrier")
    issue_k(0)
    issue_v(0)
    stamp(a, 2)
    a("s_waitcnt lgkmcnt(0)")
    for j in range(4):
        for c in range(4):
            src = 36 + 2 * c + (j >> 1)
            dst = 44 + 4 * j + c
            if j & 1:
                a(f"s_and_b32 s{dst}, s{src}, 0xffff0000")
            else:
                a(f"s_lshl_b32 s{dst}, s{src}, 16")
    a(f"""
    v_lshlrev_b32 v19, 2, v3
    v_sub_u32 v19, {4092 - 3072}, v19
    """)
    stamp(a, 3)
    KF = 64
    VF = 84
    KS = 92
    PK = 100

    def compute_q(q):
        b = RAW[q & 1]
        for d in range(2):
            a(f"v_mov_b32_dpp v{b + 12 + d}, v{b + 2 + d} wave_shr:1 row_mask:0xf bank_mask:0xf")
        for d in range(2):
            a(f"v_mov_b32_dpp v{b + 10 + d}, v{b + 0 + d} wave_shr:1 row_mask:0xf bank_mask:0xf")
        a("s_nop 0")
        for d in range(2):
            a(f"v_mov_b32_dpp v{b + 8 + d}, v{b + 12 + d} wave_shr:1 row_mask:0xf bank_mask:0xf")
        src = [b + 8, b + 10, b + 12, b + 0, b + 2]
        for r in [3, 4, 2, 1, 0]:
            for p in range(2):
                a(f"v_lshlrev_b32 v{KF + 4 * r + 2 * p}, 16, v{src[r] + p}")
                a(f"v_and_b32 v{KF + 4 * r + 2 * p + 1}, 0xffff0000, v{src[r] + p}")
        for r in range(2):
            for p in range(2):
                a(f"v_lshlrev_b32 v{VF + 4 * r + 2 * p}, 16, v{b + 4 + 2 * r + p}")
                a(f"v_and_b32 v{VF + 4 * r + 2 * p + 1}, 0xffff0000, v{b + 4 + 2 * r + p}")
        for j in range(4):
            for r in range(2):
                for p in range(2):
                    kreg = vr(KF + 4 * (3 + r - j) + 2 * p, 2)
                    w = sr(44 + 4 * j + 2 * p, 2)
                    d = vr(KS + 4 * r + 2 * p, 2)
                    if j == 0:
                        a(f"v_pk_mul_f32 {d}, {kreg}, {w}")
                    else:
                        a(f"v_pk_fma_f32 {d}, {kreg}, {w}, {d}")
        for r in range(2):
            for p in range(2):
                d = vr(KS + 4 * r + 2 * p, 2)
                a(f"v_pk_mul_f32 {d}, {d}, {vr(VF + 4 * r + 2 * p, 2)}")
        for c in range(4):
            a(f"v_cvt_pk_bf16_f32 v{PK + c}, v{KS + 4 + c}, v{KS + c}")
        for c in range(4):
            a(f"ds_write_b32 v19, v{PK + c} offset:{3072 - 1024 * q + c * U_STRIDE}")

    a(f"v_mov_b32 v20, {Z_BASE + 16384}")
    a("v_mov_b32 v21, 1")
    for q in range(4):
        if q < 3:
            issue_k(q + 1)
        a(f"s_waitcnt vmcnt({5 if q < 3 else 0})")
        stamp(a, 4 + q)
        compute_q(q)
        a("s_waitcnt lgkmcnt(0)")
        a("s_mov_b64 exec, 1")
        a(f"ds_add_u32 v20, v21 offset:{4 * q}")
        a("s_mov_b64 exec, -1")
        if q < 3:
            issue_v(q + 1)
    a.label("L_conv_fin")
    srd(a, 32, 14, 4 * MB)
    a(f"""
    v_lshlrev_b32 v3, 4, v0
    v_add_u32 v3, {Z_BASE}, v3
    v_lshrrev_b32 v4, 3, v0                 ; B (r = 0)
    v_xor_b32 v5, v0, v4
    v_and_b32 v5, 7, v5
    v_lshlrev_b32 v4, 15, v4                ; 2B*16384
    v_lshrrev_b32 v6, 2, v5
    v_lshl_add_u32 v4, v6, 14, v4
    v_and_b32 v5, 3, v5
    v_lshl_add_u32 v4, v5, 4, v4
    s_lshl_b32 s18, s16, 4
    s_add_u32 s19, s18, {2 * MB}
    s_barrier
    ds_read_b128 v[8:11], v3
    ds_read_b128 v[12:15], v3 offset:8192
    s_waitcnt lgkmcnt(1)
    buffer_store_dwordx4 v[8:11], v4, s[32:35], s18 offen {STZ}
    s_waitcnt lgkmcnt(0)
    buffer_store_dwordx4 v[12:15], v4, s[32:35], s19 offen {STZ}
    """)
    stamp_flush(a, 0, 10, lw=3)
    kernel_end(a, name)
    return name, descriptor(name, 128, 128, 96), (256, 512, CONV2_LDS)


LN_LDS = 16384 + 512


def bf16_round(a, v, tmp=None):
    a(f"v_cvt_pk_bf16_f32 {v}, {v}, {v}")
    a(f"v_and_b32 {v}, 0xffff0000, {v}")


def pf1(a):
    pf = opt("pf1nt", "").replace("-", "")
    a(f"""
    s_load_dwordx4 s[28:31], s[0:1], {KA_WG}
    v_and_b32 v122, 7, v2
    v_min_u32 v122, 6, v122
    v_lshlrev_b32 v122, 7, v122
    v_mul_u32_u24 v123, 7168, v4
    v_add_u32 v122, v122, v123
    s_lshr_b32 s36, s2, 3
    s_lshl_b32 s36, s36, 5
    s_and_b32 s37, s17, 1
    s_lshl_b32 s37, s37, 4
    s_add_u32 s36, s36, s37
    s_mul_i32 s36, s36, 7168
    s_add_u32 s37, s2, {opt('pf1x', 0)}
    s_and_b32 s37, s37, 7
    s_mul_i32 s37, s37, 896
    s_add_u32 s36, s36, s37
    s_add_u32 s37, s36, {8 * 7168}
    s_waitcnt lgkmcnt(0)
    s_cmp_ge_u32 s17, 2
    s_cselect_b32 s32, s30, s28
    s_cselect_b32 s33, s31, s29
    s_mov_b32 s34, {1024 * 3584 * 2}
    s_mov_b32 s35, 0x20000
    """)
    b2b = opt("b2b", "").replace("-", " ").replace("+", " ")
    a(f"buffer_load_dword v120, v122, s[32:35], s36 offen {pf}")
    if opt("b2bm", 0) == 1:
        a(f"buffer_load_dword v124, v122, s[32:35], s36 offen {b2b}")
    a(f"buffer_load_dword v121, v122, s[32:35], s37 offen {pf}")
    if opt("b2bm", 0) == 2:
        a(f"buffer_load_dword v124, v122, s[32:35], s36 offen {b2b}")
    if opt("b2bm", 0):
        a(f"buffer_load_dword v125, v122, s[32:35], s37 offen {b2b}")


def gen_ln(a):
    name = "ln_kernel"
    kernel_begin(a, name, 256)
    a(f"""
    s_load_dwordx2 s[4:5], s[0:1], {KA_Q}
    s_load_dwordx2 s[6:7], s[0:1], {KA_WS}
    v_lshrrev_b32 v1, 6, v0
    v_and_b32 v2, 63, v0                    ; lane
    v_readfirstlane_b32 s17, v1             ; wave
    v_and_b32 v3, 7, v2                     ; r
    v_lshrrev_b32 v4, 3, v2                 ; o
    s_waitcnt lgkmcnt(0)
    """)
    srd(a, 8, 4, 4 * MB)
    srd(a, 12, 6, 4 * MB)
    srd(a, 20, 6, 4 * MB, off=WS_H)
    srd(a, 24, 6, 4 * MB, off=WS_LN)
    a(f"""
    s_lshl_b32 s18, s2, 14
    s_lshl_b32 s19, s17, 12
    s_add_u32 s18, s18, s19
    v_lshlrev_b32 v5, 4, v2
    s_mov_b32 m0, s19
    s_nop 0
    buffer_load_dwordx4 v5, s[12:15], s18 offen lds
    buffer_load_dwordx4 v5, s[12:15], s18 offen offset:1024 lds
    buffer_load_dwordx4 v5, s[12:15], s18 offen offset:2048 lds
    buffer_load_dwordx4 v5, s[12:15], s18 offen offset:3072 lds
    """)
    a(f"""
    v_lshlrev_b32 v6, 11, v3
    v_lshl_add_u32 v6, v4, 4, v6
    s_lshl_b32 s18, s2, 14
    s_lshl_b32 s19, s17, 9
    s_add_u32 s18, s18, s19
    """)
    QR = 16
    for it in range(4):
        a(f"buffer_load_dwordx4 {vr(QR + 4 * it, 4)}, v6, s[8:11], s18 offen offset:{128 * it} {NTI}")
    if opt('pf1', 1) == 1:
        pf1(a)
    a(f"""
    v_lshrrev_b32 v7, 4, v2
    v_lshlrev_b32 v7, 8, v7                 ; (l>>4)*256
    v_bfe_u32 v8, v2, 1, 1
    v_lshl_add_u32 v7, v8, 7, v7
    v_bfe_u32 v8, v2, 2, 2
    v_lshl_add_u32 v7, v8, 4, v7
    v_and_b32 v8, 1, v2
    v_lshl_add_u32 v7, v8, 3, v7
    s_lshl_b32 s19, s17, 12
    v_add_u32 v7, s19, v7
    """)
    a(f"""
    v_lshlrev_b32 v9, 5, v3
    v_add_u32 v9, 16384, v9
    s_lshl_b32 s19, s17, 3
    v_add_u32 v10, s19, v9
    """)
    XF = 32
    ZR = 64
    ZF = 80
    a(f"s_waitcnt vmcnt({(4 if opt('b2bm', 0) else 2) if opt('pf1', 1) == 1 else 0})")
    stamp(a, 2)
    for it in range(4):
        for half in range(2):
            a(f"ds_read_b64_tr_b16 {vr(ZR + 4 * it + 2 * half, 2)}, v7 offset:{it * 1024 + half * 64}")
    for i in range(16):
        a(f"v_lshlrev_b32 v{XF + 2 * i}, 16, v{QR + i}")
        a(f"v_and_b32 v{XF + 2 * i + 1}, 0xffff0000, v{QR + i}")

    def stats(src, rnd):
        a(f"v_pk_add_f32 v[112:113], {vr(src, 2)}, {vr(src + 2, 2)}")
        a(f"v_pk_mul_f32 v[114:115], {vr(src, 2)}, {vr(src, 2)}")
        a(f"v_pk_fma_f32 v[114:115], {vr(src + 2, 2)}, {vr(src + 2, 2)}, v[114:115]")
        for i in range(2, 16):
            a(f"v_pk_add_f32 v[112:113], v[112:113], {vr(src + 2 * i, 2)}")
            a(f"v_pk_fma_f32 v[114:115], {vr(src + 2 * i, 2)}, {vr(src + 2 * i, 2)}, v[114:115]")
        a(f"""
        v_add_f32 v12, v112, v113
        v_add_f32 v13, v114, v115
        s_nop 1
        v_add_f32_dpp v12, v12, v12 row_ror:8 row_mask:0xf bank_mask:0xf
        v_add_f32_dpp v13, v13, v13 row_ror:8 row_mask:0xf bank_mask:0xf
        v_mov_b32 v14, v12
        v_mov_b32 v15, v13
        s_nop 1
        v_permlane16_swap_b32 v12, v14
        v_permlane16_swap_b32 v13, v15
        s_nop 1
        v_add_f32 v12, v12, v14
        v_add_f32 v13, v13, v15
        v_mov_b32 v14, v12
        v_mov_b32 v15, v13
        s_nop 1
        v_permlane32_swap_b32 v12, v14
        v_permlane32_swap_b32 v13, v15
        s_nop 1
        v_add_f32 v12, v12, v14
        v_add_f32 v13, v13, v15
        ds_write_b64 v10, v[12:13] offset:{256 * rnd}
        s_waitcnt lgkmcnt(0)
        s_barrier
        ds_read_b128 v[112:115], v9 offset:{256 * rnd}
        ds_read_b128 v[116:119], v9 offset:{256 * rnd + 16}
        s_waitcnt lgkmcnt(0)
        v_pk_add_f32 v[112:113], v[112:113], v[114:115]
        v_pk_add_f32 v[116:117], v[116:117], v[118:119]
        v_pk_add_f32 v[112:113], v[112:113], v[116:117]
        v_mul_f32 v12, {hex(f32bits(1.0 / 1024))}, v112      ; mean
        v_mul_f32 v13, {hex(f32bits(1.0 / 1024))}, v113      ; E[x^2]
        v_fma_f32 v13, -v12, v12, v13                        ; var
        v_max_f32 v13, 0, v13
        """)
        bf16_round(a, "v12")
        bf16_round(a, "v13")
        a(f"v_add_f32 v13, {hex(f32bits(1e-5))}, v13")
        bf16_round(a, "v13")
        a("v_sqrt_f32 v13, v13")
        a("s_nop 0")
        bf16_round(a, "v13")
        a("v_rcp_f32 v13, v13")
        a("s_nop 0")

    stats(XF, 0)
    stamp(a, 3)
    for i in range(16):
        a(f"v_lshlrev_b32 v{ZF + 2 * i}, 16, v{ZR + i}")
        a(f"v_and_b32 v{ZF + 2 * i + 1}, 0xffff0000, v{ZR + i}")
    a("v_mul_f32 v14, v12, v13")
    a("v_sub_f32 v14, 0, v14")
    a("v_mov_b32 v15, v14")
    a("v_mov_b32 v12, v13")
    for i in range(16):
        x = vr(XF + 2 * i, 2)
        z = vr(ZF + 2 * i, 2)
        a(f"v_pk_fma_f32 v[112:113], {x}, v[12:13], v[14:15]")
        a(f"v_pk_fma_f32 {z}, v[112:113], {z}, {x}")
        a(f"v_cvt_pk_bf16_f32 v{QR + i}, v{ZF + 2 * i}, v{ZF + 2 * i + 1}")
    a(f"""
    v_lshlrev_b32 v6, 9, v4
    v_lshl_add_u32 v6, v3, 4, v6
    s_lshr_b32 s18, s2, 2
    s_lshl_b32 s18, s18, 16
    s_and_b32 s19, s2, 3
    s_lshl_b32 s19, s19, 7
    s_add_u32 s18, s18, s19
    s_lshl_b32 s19, s17, 14
    s_add_u32 s18, s18, s19
    """)
    for it in range(4):
        a(f"buffer_store_dwordx4 {vr(QR + 4 * it, 4)}, v6, s[20:23], s18 offen {STL}")
        if it < 3:
            a("s_add_u32 s18, s18, 4096")
    for i in range(16):
        a(f"v_lshlrev_b32 v{XF + 2 * i}, 16, v{QR + i}")
        a(f"v_and_b32 v{XF + 2 * i + 1}, 0xffff0000, v{QR + i}")
    stats(XF, 1)
    stamp(a, 4)
    a("v_mul_f32 v14, v12, v13")
    a("v_sub_f32 v14, 0, v14")
    a("v_mov_b32 v15, v14")
    a("v_mov_b32 v12, v13")
    for i in range(16):
        x = vr(XF + 2 * i, 2)
        a(f"v_pk_fma_f32 {x}, {x}, v[12:13], v[14:15]")
        a(f"v_cvt_pk_bf16_f32 v{ZR + i}, v{XF + 2 * i}, v{XF + 2 * i + 1}")
    a(f"""
    v_lshrrev_b32 v6, 1, v4
    v_lshlrev_b32 v6, 11, v6
    v_and_b32 v7, 1, v4
    v_lshl_add_u32 v6, v7, 9, v6
    v_lshl_add_u32 v6, v3, 4, v6
    s_lshr_b32 s18, s2, 3
    s_lshl_b32 s18, s18, 17
    s_bfe_u32 s19, s2, 0x10002
    s_lshl_b32 s19, s19, 10
    s_add_u32 s18, s18, s19
    s_and_b32 s19, s2, 3
    s_lshl_b32 s19, s19, 7
    s_add_u32 s18, s18, s19
    s_lshl_b32 s19, s17, 15
    s_add_u32 s18, s18, s19
    """)
    for it in range(4):
        a(f"buffer_store_dwordx4 {vr(ZR + 4 * it, 4)}, v6, s[24:27], s18 offen {STL}")
        if it < 3:
            a("s_add_u32 s18, s18, 8192")
    if opt('pf1', 1) == 2:
        pf1(a)
    if opt('rt1', ''):
        f = opt('rt1', '').replace("-", "").replace("+", " ")
        a(f"buffer_load_dword v120, v122, s[32:35], s36 offen {f}")
        a(f"buffer_load_dword v121, v122, s[32:35], s37 offen {f}")
    stamp(a, 5)
    stamp_flush(a, 1, 8)
    kernel_end(a, name)
    return name, descriptor(name, 128, 0, 40), (256, 256, LN_LDS)


def gemm_loop(a, tag, NST, DEPTH, RING, STAGE, KADV, dma_items, wread_ops, mfmas, addr_update, AF, init_acc,
              pro_limit=None):
    UN = DEPTH // 4
    assert NST % UN == 0
    LDS = STAGE * RING
    nd = len(dma_items)
    base, rem = divmod(nd, 4)
    split = [base + (1 if i < rem else 0) for i in range(4)]

    def w_item(st, i):
        ins = list(dma_items[i])
        if i == nd - 1:
            ins += [f"s_add_u32 s34, s34, {KADV}", f"s_add_u32 s35, s35, {STAGE}",
                    f"s_cmp_ge_u32 s35, {LDS}", "s_cselect_b32 s35, s33, s35"]
        return (("W", st), ins)

    def a_items(idx):
        b = AF + 8 * (idx % DEPTH)
        return [(("A", idx), [f"buffer_load_dwordx4 {ar(b, 4)}, v15, s[28:31], s36 offen {NTA}"]),
                (("A", idx), [f"buffer_load_dwordx4 {ar(b + 4, 4)}, v15, s[28:31], s36 offen offset:1024 {NTA}",
                              "s_add_u32 s36, s36, 2048"])]

    def items_at(g):
        out = []
        ai = g - 1 + DEPTH
        A = a_items(ai) if ai >= 0 else []
        ph = (g + 1) % 4
        st = (g + 1) // 4 - 1 + RING
        lo = sum(split[:ph])
        W = [w_item(st, i) for i in range(lo, lo + split[ph])] if st >= 0 else []
        while A or W:
            if A:
                out.append(A.pop(0))
            if W:
                out.append(W.pop(0))
        return out

    order = []

    def cnt_after(t):
        idx = max(i for i, x in enumerate(order) if x == t)
        return len(order) - 1 - idx

    def emit_ins(ins):
        for x in ins:
            a(x)
            if " m0," in x:
                a("s_nop 0")

    a("s_mov_b32 s34, 0")
    a("s_mov_b32 s35, s33")
    a("s_mov_b32 s36, 0")
    backlog = []
    for g in range(-4 * RING - DEPTH, 0):
        backlog += items_at(g)
    npro = len(backlog) if pro_limit is None else pro_limit
    for t, ins in backlog[:npro]:
        emit_ins(ins)
        order.append(t)
    backlog = backlog[npro:]
    init_acc()
    stamp(a, 2)
    a(f"s_waitcnt vmcnt({cnt_after(('W', 0))})")
    a("s_barrier")
    stamp(a, 3)
    a("s_mov_b32 s37, 0")
    for op in addr_update():
        emit_ins(op)
    a(f"s_mov_b32 s37, {STAGE}")
    for op in wread_ops(0, 0):
        emit_ins(op)

    def body(it, waits, emit, backlog):
        for us in range(UN):
            st = it * UN + us
            for j in range(4):
                g = 4 * st + j
                buf = g & 1
                wv = cnt_after(("A", g))
                if j == 3:
                    assert order.count(("W", st + 1)) == nd
                    wv = min(wv, cnt_after(("W", st + 1)))
                k = 4 * us + j
                waits[k] = min(waits.get(k, 63), wv)
                fill = []
                if j == 3:
                    fill += addr_update()
                    fill += wread_ops(buf ^ 1, 0)
                    fill.append([f"s_add_u32 s37, s37, {STAGE}", f"s_cmp_ge_u32 s37, {LDS}", "s_cselect_b32 s37, 0, s37"])
                else:
                    fill += wread_ops(buf ^ 1, j + 1)
                mine = items_at(g)
                if backlog is not None:
                    n = len(mine)
                    backlog += mine
                    left = 4 * UN - k
                    take = n + -(-(len(backlog) - n) // left)
                    mine = backlog[:take]
                    del backlog[:take]
                vm = [ins for _, ins in mine]
                order.extend(t for t, _ in mine)
                if emit:
                    a(f"s_waitcnt vmcnt({waits[k]}) lgkmcnt(0)")
                    if j == 3:
                        a("s_barrier")
                    mf = mfmas(buf, AF + 8 * (g % DEPTH))
                    n = len(mf)
                    slots = [[] for _ in range(n)]
                    per = max(2, -(-len(fill) // n))
                    for i, op in enumerate(fill):
                        slots[min(i // per, n - 1)].append(op)
                    for i, op in enumerate(vm):
                        slots[min(n - 1, ((2 * i + 1) * n) // (2 * len(vm)))].append(op)
                    for i, m in enumerate(mf):
                        a(m)
                        for op in slots[i]:
                            emit_ins(op)

    first = 0
    if pro_limit is not None:
        body(0, {}, True, backlog)
        assert not backlog
        first = 1
    waits = {}
    saved = list(order)
    for it in range(first, NST // UN):
        body(it, waits, False, None)
    assert max(waits.values()) <= 63
    order[:] = saved
    a(f"s_mov_b32 s38, {NST // UN - first}")
    a.raw(".p2align 6")
    a.label(f"L_{tag}_loop")
    body(first, waits, True, None)
    a("s_sub_u32 s38, s38, 1")
    a("s_cmp_lg_u32 s38, 0")
    a(f"s_cbranch_scc1 L_{tag}_loop")
    stamp(a, 4)


G1_UPOFF = 14336 + 128
G1_STAGE = G1_UPOFF + 14336
G1_RING = opt('r1', 5)


def pf2(a):
    pf = opt("pf2nt", "").replace("-", "")
    n = opt("pf2n", 4)
    a(f"""
    s_load_dwordx2 s[46:47], s[0:1], {KA_WD}
    v_lshrrev_b32 v6, 3, v2
    v_lshlrev_b32 v6, 11, v6
    v_and_b32 v7, 7, v2
    v_lshl_add_u32 v6, v7, 7, v6
    s_lshr_b32 s23, s2, 3
    s_lshl_b32 s23, s23, 14
    s_add_u32 s32, s2, {opt('pf2x', 0)}
    s_and_b32 s32, s32, 1
    s_lshl_b32 s32, s32, 10
    s_add_u32 s23, s23, s32
    s_lshl_b32 s32, s17, 19
    s_add_u32 s23, s23, s32
    s_waitcnt lgkmcnt(0)
    """)
    srd(a, 48, 46, 3584 * 1024 * 2)
    for i in range(n):
        a(f"buffer_load_dword v{8 + i}, v6, s[48:51], s23 offen {pf}")
        a(f"s_add_u32 s23, s23, {1024 * 2048}")


def gen_gemm1(a, DEPTH=opt('d1', 16)):
    name = "gemm1_kernel"
    kernel_begin(a, name, 256)
    a(f"""
    s_load_dwordx4 s[4:7], s[0:1], {KA_WG}
    s_load_dwordx2 s[8:9], s[0:1], {KA_WS}
    v_lshrrev_b32 v1, 6, v0
    v_and_b32 v2, 63, v0
    v_readfirstlane_b32 s17, v1             ; wave
    s_lshr_b32 s18, s2, 5                   ; mt
    s_and_b32 s19, s2, 7
    s_lshl_b32 s19, s19, 2
    s_bfe_u32 s20, s2, 0x20003
    s_add_u32 s19, s19, s20                 ; nt
    s_waitcnt lgkmcnt(0)
    s_cmp_ge_u32 s17, 2
    s_cselect_b32 s24, s6, s4
    s_cselect_b32 s25, s7, s5
    s_mov_b32 s26, {1024 * 3584 * 2}
    s_mov_b32 s27, 0x20000
    s_lshl_b32 s20, s18, 2
    s_add_u32 s20, s20, s17                 ; m64 block
    s_lshl_b32 s21, s20, 17
    s_add_u32 s21, s21, {WS_LN}
    s_add_u32 s28, s8, s21
    s_addc_u32 s29, s9, 0
    s_mov_b32 s30, 131072
    s_mov_b32 s31, 0x20000
    """)
    srd(a, 40, 8, 2048 * 3584 * 2, off=WS_HH)
    ACC = 32
    a(f"""
    s_mul_i32 s21, s19, 224
    s_and_b32 s22, s17, 1
    s_mul_i32 s23, s22, {32 * 7168}
    s_add_u32 s21, s21, s23
    s_mov_b32 s23, {(1 << 20) // 14 + 1}
    s_movk_i32 s32, 7168
    """)
    for i in range(7):
        a(f"""
        v_add_u32 v3, {64 * i}, v2
        v_mul_lo_u32 v4, v3, s23
        v_lshrrev_b32 v4, 20, v4
        v_mul_u32_u24 v5, 14, v4
        v_sub_u32 v5, v3, v5
        v_mul_lo_u32 v4, v4, s32
        v_lshl_add_u32 v4, v5, 4, v4
        v_add_u32 v4, s21, v4
        v_subrev_u32 v{8 + i}, {1024 * (i % 4)}, v4
        """)
    a(f"""
    s_lshr_b32 s33, s17, 1
    s_mul_i32 s33, s33, {G1_UPOFF}
    s_mul_i32 s22, s22, 7168
    s_add_u32 s33, s33, s22
    v_lshlrev_b32 v15, 4, v2
    v_bfe_u32 v3, v2, 4, 1
    v_mul_u32_u24 v16, {G1_UPOFF}, v3
    v_lshrrev_b32 v3, 5, v2
    v_lshlrev_b32 v3, 3, v3
    v_bfe_u32 v4, v2, 2, 2
    v_add_u32 v3, v3, v4
    v_mul_u32_u24 v3, 224, v3
    v_add_u32 v16, v16, v3
    v_and_b32 v3, 1, v2
    v_lshl_add_u32 v16, v3, 4, v16
    v_bfe_u32 v3, v2, 1, 1
    v_lshl_add_u32 v16, v3, 3, v16
    """)
    WF = [0, 28]
    AF = 56
    dma = [[f"buffer_load_dwordx4 v{8 + i}, s[24:27], s34 offen offset:{1024 * (i & 3)} {NTW1} lds"] for i in range(7)]
    dma[0].insert(0, "s_mov_b32 m0, s35")
    dma[4].insert(0, "s_add_u32 m0, s35, 4096")

    def wread_ops(buf, sub):
        return [[f"ds_read_b64_tr_b16 {ar(WF[buf] + 4 * t + 2 * rd, 2)}, v17 offset:{(16 * sub + 4 * rd) * 224 + 32 * t}"]
                for t in range(7) for rd in range(2)]

    def mfmas(buf, af):
        out = []
        for t in range(7):
            for mb in range(2):
                acc = vr(ACC + 16 * (2 * t + mb), 16)
                out.append(f"v_mfma_f32_32x32x16_bf16 {acc}, {ar(WF[buf] + 4 * t, 4)}, {ar(af + 4 * mb, 4)}, {acc}")
        return out

    def addr_update():
        return [["v_add_u32 v17, s37, v16"]]

    def init_acc():
        for r in range(224):
            a(f"v_mov_b32 v{ACC + r}, 0")

    gemm_loop(a, "g1", 16, DEPTH, G1_RING, G1_STAGE, 64 * 7168, dma, wread_ops, mfmas, addr_update, AF, init_acc,
              pro_limit=(opt('p1', 0) or None))
    c = 0.7978845608028654
    k0 = -2.0 * c * 1.4426950408889634
    k1 = k0 * 0.044715
    a(f"""
    s_mov_b32 s44, {hex(f32bits(k1))}
    s_mov_b32 s45, {hex(f32bits(k1))}
    v_mov_b32 v4, {hex(f32bits(k0))}
    v_mov_b32 v5, {hex(f32bits(k0))}
    s_lshl_b32 s21, s20, 1
    s_mul_i32 s21, s21, {224 * 1024}
    s_mul_i32 s22, s19, {7 * 1024}
    s_add_u32 s21, s21, s22
    s_add_u32 s22, s21, {224 * 1024}
    s_nop 7
    """)
    if opt('pf2', 1) == 1:
        pf2(a)
    T = 16
    for t in range(7):
        for mb in range(2):
            C = ACC + 16 * (2 * t + mb)
            g = [vr(C + 2 * p, 2) for p in range(4)]
            u = [vr(C + 8 + 2 * p, 2) for p in range(4)]
            tt = [vr(T + 2 * p, 2) for p in range(4)]
            for p in range(4):
                a(f"v_pk_mul_f32 {tt[p]}, {g[p]}, {g[p]}")
            for p in range(4):
                a(f"v_pk_fma_f32 {tt[p]}, {tt[p]}, s[44:45], v[4:5]")
            for p in range(4):
                a(f"v_pk_mul_f32 {tt[p]}, {tt[p]}, {g[p]}")
            for i in range(8):
                a(f"v_exp_f32 v{T + i}, v{T + i}")
            for p in range(4):
                a(f"v_pk_mul_f32 {u[p]}, {u[p]}, {g[p]}")
            for p in range(4):
                a(f"v_pk_add_f32 {tt[p]}, {tt[p]}, 1.0 op_sel_hi:[1,0]")
            for i in range(8):
                a(f"v_rcp_f32 v{T + i}, v{T + i}")
            a("s_nop 0")
            for p in range(4):
                a(f"v_pk_mul_f32 {u[p]}, {u[p]}, {tt[p]}")
            for p in range(4):
                a(f"v_cvt_pk_bf16_f32 v{C + p}, v{C + 8 + 2 * p}, v{C + 9 + 2 * p}")
            so = "s21" if mb == 0 else "s22"
            if t < 4:
                a(f"buffer_store_dwordx4 {vr(C, 4)}, v15, s[40:43], {so} offen offset:{1024 * t} {STH}")
            else:
                if t == 4:
                    a(f"s_add_u32 {so}, {so}, 4096")
                a(f"buffer_store_dwordx4 {vr(C, 4)}, v15, s[40:43], {so} offen offset:{1024 * (t - 4)} {STH}")
    if opt('pf2', 1) == 2:
        pf2(a)
    if opt('rt2', ''):
        f = opt('rt2', '').replace("-", "").replace("+", " ")
        for i in range(opt("pf2n", 4)):
            a(f"s_sub_u32 s23, s23, {1024 * 2048}")
            a(f"buffer_load_dword v{8 + i}, v6, s[48:51], s23 offen {f}")
    stamp(a, 5)
    stamp_flush(a, 2, 8)
    kernel_end(a, name)
    return name, descriptor(name, 256, AF + 8 * DEPTH, 64), (256, 256, G1_STAGE * G1_RING)


G2_STAGE = 16384
G2_RING = opt('r2', 5)


def gen_gemm2(a, DEPTH=opt('d2', 16)):
    name = "gemm2_kernel"
    kernel_begin(a, name, 256)
    a(f"""
    s_load_dwordx4 s[4:7], s[0:1], {KA_WD}
    s_load_dwordx2 s[8:9], s[0:1], {KA_WS}
    v_lshrrev_b32 v1, 6, v0
    v_and_b32 v2, 63, v0
    v_readfirstlane_b32 s17, v1             ; wave
    s_bfe_u32 s18, s2, 0x20001
    s_lshl_b32 s18, s18, 2
    s_lshr_b32 s20, s2, 6
    s_add_u32 s18, s18, s20                 ; mt
    s_and_b32 s19, s2, 1
    s_lshl_b32 s19, s19, 3
    s_bfe_u32 s20, s2, 0x30003
    s_add_u32 s19, s19, s20                 ; nt
    s_lshl_b32 s20, s18, 2
    s_add_u32 s20, s20, s17
    s_mul_i32 s21, s20, {224 * 1024}
    s_add_u32 s21, s21, {WS_HH}
    s_waitcnt lgkmcnt(0)
    s_add_u32 s28, s8, s21
    s_addc_u32 s29, s9, 0
    s_mov_b32 s30, {224 * 1024}
    s_mov_b32 s31, 0x20000
    """)
    srd(a, 24, 4, 3584 * 1024 * 2)
    srd(a, 40, 6, 4 * MB)
    srd(a, 44, 8, 4 * MB, off=WS_H)
    ACC = 32
    HR = 64
    a(f"""
    v_lshrrev_b32 v3, 3, v2
    v_lshlrev_b32 v3, 11, v3
    v_bfe_u32 v4, v2, 4, 1
    v_lshlrev_b32 v4, 2, v4
    v_and_b32 v5, 7, v2
    v_xor_b32 v4, v4, v5
    v_lshl_add_u32 v3, v4, 4, v3
    s_lshl_b32 s21, s19, 7
    s_lshl_b32 s22, s17, 16
    s_add_u32 s21, s21, s22
    v_add_u32 v8, s21, v3
    v_add_u32 v9, {16384 - 1024}, v8
    v_add_u32 v10, {16384 - 1024}, v9
    v_add_u32 v11, {16384 - 1024}, v10
    s_lshl_b32 s33, s17, 12
    v_lshlrev_b32 v15, 4, v2
    """)
    a(f"""
    s_lshl_b32 s21, s20, 16
    s_lshl_b32 s22, s19, 12
    s_add_u32 s21, s21, s22
    """)
    for i in range(4):
        a(f"buffer_load_dwordx4 {vr(HR + 4 * i, 4)}, v15, s[44:47], s21 offen offset:{1024 * i}")
    a(f"""
    v_lshrrev_b32 v3, 5, v2
    v_lshlrev_b32 v3, 3, v3
    v_bfe_u32 v4, v2, 2, 2
    v_add_u32 v3, v3, v4
    v_lshlrev_b32 v16, 7, v3
    v_bfe_u32 v3, v2, 4, 1
    v_lshl_add_u32 v16, v3, 5, v16
    v_and_b32 v3, 1, v2
    v_lshl_add_u32 v16, v3, 4, v16
    v_bfe_u32 v3, v2, 1, 1
    v_lshl_add_u32 v16, v3, 3, v16
    v_bfe_u32 v3, v2, 3, 1
    v_lshl_add_u32 v16, v3, 6, v16
    v_xor_b32 v17, 64, v16
    """)
    WF = [0, 16]
    AF = 32
    dma = [[f"buffer_load_dwordx4 v{8 + i}, s[24:27], s34 offen offset:{1024 * i} {NTW2} lds"] for i in range(4)]
    dma[0].insert(0, "s_mov_b32 m0, s35")

    def wread_ops(buf, sub):
        return [[f"ds_read_b64_tr_b16 {ar(WF[buf] + 8 * kk + 4 * t + 2 * rd, 2)}, v{18 + t} offset:{(32 * sub + 16 * kk + 4 * rd) * 128}"]
                for kk in range(2) for t in range(2) for rd in range(2)]

    def mfmas(buf, af):
        out = []
        for kk in range(2):
            for t in range(2):
                acc = vr(ACC + 16 * t, 16)
                out.append(f"v_mfma_f32_32x32x16_bf16 {acc}, {ar(WF[buf] + 8 * kk + 4 * t, 4)}, {ar(af + 4 * kk, 4)}, {acc}")
        return out

    def addr_update():
        return [["v_add_u32 v18, s37, v16", "v_add_u32 v19, s37, v17"]]

    def init_acc():
        for r in range(32):
            a(f"v_mov_b32 v{ACC + r}, 0")

    gemm_loop(a, "g2", 28, DEPTH, G2_RING, G2_STAGE, 128 * 2048, dma, wread_ops, mfmas, addr_update, AF, init_acc,
              pro_limit=(opt('p2', 0) or None))
    a(f"""
    v_and_b32 v3, 31, v2
    v_lshlrev_b32 v3, 11, v3
    v_lshrrev_b32 v4, 5, v2
    v_lshl_add_u32 v3, v4, 4, v3
    s_lshl_b32 s21, s20, 16
    s_lshl_b32 s22, s19, 7
    s_add_u32 s21, s21, s22
    s_nop 7
    s_nop 7
    """)
    for g in range(4):
        C = ACC + 8 * g
        for p in range(4):
            a(f"v_cvt_pk_bf16_f32 v20, v{C + 2 * p}, v{C + 2 * p + 1}")
            a(f"v_lshlrev_b32 v22, 16, v{HR + 4 * g + p}")
            a(f"v_and_b32 v23, 0xffff0000, v{HR + 4 * g + p}")
            a(f"v_and_b32 v21, 0xffff0000, v20")
            a(f"v_lshlrev_b32 v20, 16, v20")
            a(f"v_pk_add_f32 v[20:21], v[20:21], v[22:23]")
            a(f"v_cvt_pk_bf16_f32 v{HR + 4 * g + p}, v20, v21")
        a(f"buffer_store_dwordx4 {vr(HR + 4 * g, 4)}, v3, s[40:43], s21 offen offset:{32 * g}")
    stamp(a, 5)
    stamp_flush(a, 3, 8)
    kernel_end(a, name)
    return name, descriptor(name, 80, AF + 8 * DEPTH, 64), (256, 256, G2_STAGE * G2_RING)


def gen_enc(a):
    kA, iA, kB, iB, mult = [int(x) for x in opt("enc", "").split(":")]
    name = "enc_kernel"
    a.raw(f".globl {name}")
    a.raw(".p2align 8")
    a.raw(f".type {name},@function")
    a.label(name)
    a(f"""
    s_cmp_ge_u32 s2, 1
    s_cbranch_scc1 L_enc_end
    s_memrealtime s[10:11]
    s_load_dwordx2 s[4:5], s[0:1], {KA_WS}
    s_waitcnt lgkmcnt(0)
    s_add_u32 s4, s4, {PROF_BASE}
    s_addc_u32 s5, s5, 0
    s_mov_b32 s8, {kA * MB + 4 * iA}
    s_mov_b32 s9, {(kB % 9) * MB + 4 * iB}
    s_load_dword s6, s[4:5], s8
    s_load_dword s7, s[4:5], s9
    s_waitcnt lgkmcnt(0)
    """)
    if kB == 9:
        a("s_mov_b32 s7, s10")
    a(f"""
    s_sub_u32 s6, s7, s6
    s_min_u32 s6, s6, {opt("encmax", 10000)}
    s_mul_i32 s6, s6, {mult}
    s_lshr_b32 s6, s6, {opt("encsh", 0)}
    """)
    a.label("L_enc_loop")
    a("""
    s_memrealtime s[12:13]
    s_waitcnt lgkmcnt(0)
    s_sub_u32 s12, s12, s10
    s_cmp_lt_u32 s12, s6
    s_cbranch_scc1 L_enc_loop
    """)
    a.label("L_enc_end")
    a("s_endpgm")
    return name, descriptor(name, 8, 0, 32), (1, 64, 0)


HEADER = open("cdna_kernels/" + NAME + ".s.ref").read().split("; Override launch")[0]


def main():
    out = sys.argv[1] if len(sys.argv) > 1 else f"cdna_kernels/{NAME}.s"
    global PROF
    PROF = "--prof" in sys.argv
    a = Asm()
    ks = [gen_conv2(a) if opt('conv', 2) == 2 else gen_conv(a), gen_ln(a), gen_gemm1(a), gen_gemm2(a)]
    if opt("enc", ""):
        ks.append(gen_enc(a))
    s = HEADER
    for name, _, (g, b, lds) in ks:
        s += f"; @launch kernel={name} grid=({g},1,1) block=({b},1,1) lds={lds}\n"
    s += '.amdgcn_target "amdgcn-amd-amdhsa--gfx950"\n.text\n'
    s += a.text()
    s += '.section .rodata,"a"\n'
    for name, d, _ in ks:
        s += ".p2align 6\n" + d
    open(out, "w").write(s)


if __name__ == "__main__":
    main()
```

```python
import struct
import sys

NAME = "sequential_preLN__ssm_conv_h3__glu_gated_geglu__prompt"

KA_Q, KA_K, KA_V, KA_SK, KA_HK, KA_D, KA_X, KA_WG, KA_WU, KA_WD, KA_OUT, KA_DBG, KA_WS = [8 * i for i in range(13)]

MB = 1 << 20
WS_Z = 0
WS_H = 4 * MB
WS_LN = 8 * MB
WS_HH = 12 * MB


def f32bits(x):
    return struct.unpack("<I", struct.pack("<f", x))[0]


class Asm:
    def __init__(self):
        self.lines = []

    def __call__(self, s):
        for ln in s.strip("\n").split("\n"):
            self.lines.append("  " + ln.strip())

    def label(self, l):
        self.lines.append(l + ":")

    def raw(self, s):
        self.lines.append(s)

    def text(self):
        return "\n".join(self.lines) + "\n"


def vr(b, n=1, p="v"):
    return f"{p}{b}" if n == 1 else f"{p}[{b}:{b + n - 1}]"


def ar(b, n=1):
    return vr(b, n, "a")


def sr(b, n=1):
    return vr(b, n, "s")


def srd(a, d, base, nbytes, off=None):
    if off is None:
        a(f"s_mov_b32 s{d}, s{base}")
        a(f"s_mov_b32 s{d + 1}, s{base + 1}")
    else:
        a(f"s_add_u32 s{d}, s{base}, {off}")
        a(f"s_addc_u32 s{d + 1}, s{base + 1}, 0")
    a(f"s_mov_b32 s{d + 2}, {nbytes}")
    a(f"s_mov_b32 s{d + 3}, 0x20000")


PROF = False
import os
OPT = dict(x.split("=") for x in os.environ.get("GOPT", "").split(",") if x)


def opt(k, d):
    v = OPT.get(k)
    if v is None:
        return d
    return type(d)(v) if d is not None and not isinstance(d, str) else v


NTW1 = opt("ntw1", "nt").replace("-", "")
NTW2 = opt("ntw2", "nt").replace("-", "")
STH = opt("sth", "").replace("-", "").replace("+", " ")
STL = opt("stl", "").replace("-", "").replace("+", " ")
STZ = opt("stz", "").replace("-", "").replace("+", " ")
NTA = opt("nta", "").replace("-", "")
NTI = 'nt'
PROF_BASE = 48 * MB
ST0 = 80


def stamp(a, i, real=False):
    if not PROF:
        return
    a(f"{'s_memrealtime' if real else 's_memtime'} s[{ST0}:{ST0 + 1}]")
    a("s_waitcnt lgkmcnt(0)")
    a(f"s_mov_b32 s{ST0 + 2 + i}, s{ST0}")


def stamp_flush(a, kidx, n, lw=2):
    if not PROF:
        return
    a("s_waitcnt vmcnt(0) lgkmcnt(0)")
    stamp(a, n - 2)
    stamp(a, n - 1, real=True)
    a(f"s_load_dwordx2 s[4:5], s[0:1], {KA_WS}")
    a("s_waitcnt lgkmcnt(0)")
    srd(a, 8, 4, 1 * MB, off=PROF_BASE + kidx * MB)
    a(f"s_lshl_b32 s6, s2, {lw}")
    a("s_add_u32 s6, s6, s17")
    a("s_lshl_b32 s6, s6, 6")
    a("v_mov_b32 v1, 0")
    for i in range(n):
        a(f"v_mov_b32 v2, s{ST0 + 2 + i}")
        a(f"buffer_store_dword v2, v1, s[8:11], s6 offen offset:{4 * i}")
    a("s_waitcnt vmcnt(0)")


def kernel_begin(a, name, nwg):
    a.raw(f".globl {name}")
    a.raw(".p2align 8")
    a.raw(f".type {name},@function")
    a.label(name)
    a(f"s_cmp_ge_u32 s2, {nwg}")
    a(f"s_cbranch_scc1 L_{name}_end")
    stamp(a, 0, real=True)
    stamp(a, 1)


def kernel_end(a, name):
    a.label(f"L_{name}_end")
    a("s_endpgm")


def descriptor(name, vgprs, agprs, sgprs):
    acc = (vgprs + 3) // 4 * 4
    nfv = acc + agprs if agprs else vgprs
    return f""".amdhsa_kernel {name}
  .amdhsa_next_free_vgpr {nfv}
  .amdhsa_next_free_sgpr {max(100, sgprs) if PROF else sgprs}
  .amdhsa_accum_offset {acc}
  .amdhsa_group_segment_fixed_size 0
  .amdhsa_kernarg_size 104
  .amdhsa_user_sgpr_count 2
  .amdhsa_user_sgpr_kernarg_segment_ptr 1
  .amdhsa_system_sgpr_workgroup_id_x 1
  .amdhsa_float_denorm_mode_32 3
.end_amdhsa_kernel
"""


U_STRIDE = 4608
H_COPY = 4160
H_BASE = 4 * U_STRIDE
CONV_LDS = H_BASE + 4 * 2 * H_COPY


def gen_conv(a):
    name = "conv_kernel"
    kernel_begin(a, name, 256)
    a(f"""
    s_load_dwordx4 s[4:7], s[0:1], {KA_K}
    s_load_dwordx4 s[8:11], s[0:1], {KA_SK}
    s_load_dwordx2 s[12:13], s[0:1], {KA_D}
    s_load_dwordx2 s[14:15], s[0:1], {KA_WS}
    s_and_b32 s16, s2, 7
    s_lshl_b32 s16, s16, 7
    s_lshr_b32 s17, s2, 3
    s_lshl_b32 s17, s17, 2
    s_add_u32 s16, s16, s17                 ; s16 = d0
    v_lshrrev_b32 v1, 6, v0
    v_and_b32 v2, 63, v0                    ; v2 = lane
    v_readfirstlane_b32 s17, v1             ; s17 = wave
    s_lshl_b32 s18, s16, 3                  ; d0*8
    s_lshl_b32 s19, s16, 1                  ; d0*2
    s_waitcnt lgkmcnt(0)
    s_load_dwordx8 s[36:43], s[8:9], s18    ; shift_k[d0..d0+3][0..3]
    s_load_dwordx2 s[60:61], s[12:13], s19  ; ssm_D[d0..d0+3]
    """)
    srd(a, 20, 4, 4 * MB)
    srd(a, 24, 6, 4 * MB)
    srd(a, 28, 10, 4 * MB)
    srd(a, 32, 14, 4 * MB, off=WS_Z if WS_Z else None)
    a(f"""
    s_add_u32 s62, s16, s17
    s_lshl_b32 s62, s62, 12
    v_lshlrev_b32 v3, 4, v2
    """)
    HR = 100
    for i in range(4):
        a(f"buffer_load_dwordx4 {vr(HR + 8 * i, 4)}, v3, s[28:31], s62 offen offset:{1024 * i} {NTI}")
        a(f"buffer_load_dword {vr(HR + 8 * i + 4)}, v3, s[28:31], s62 offen offset:{1024 * i + 16} {NTI}")
    a(f"""
    v_lshlrev_b32 v4, 12, v0
    v_add_u32 v4, s19, v4
    v_subrev_u32 v7, {3 * 2048}, v4
    v_mov_b32 v6, 0x40000000
    v_cmp_eq_u32 vcc, 0, v2
    s_nop 1
    v_cndmask_b32 v5, v6, v4, vcc
    v_cndmask_b32 v7, v6, v7, vcc
    v_cmp_eq_u32 vcc, 0, v0
    s_nop 1
    v_cndmask_b32 v7, v7, v6, vcc
    s_mov_b32 s64, 0
    s_mov_b32 s65, {1 * MB}
    s_mov_b32 s66, {2 * MB}
    s_mov_b32 s67, {3 * MB}
    s_mov_b32 s68, 0
    s_mov_b32 s69, {1 * MB - 6144}
    s_mov_b32 s70, {2 * MB - 6144}
    s_mov_b32 s71, {3 * MB - 6144}
    s_mov_b32 s76, 4096
    s_mov_b32 s77, {1 * MB - 2048}
    s_mov_b32 s78, {2 * MB - 2048}
    s_mov_b32 s79, {3 * MB - 2048}
    """)
    RAW = [140, 156]

    def issue_q(q):
        b = RAW[q & 1]
        hv = "v7" if q == 0 else "v5"
        a(f"buffer_load_dwordx2 {vr(b + 0, 2)}, v4, s[20:23], s{64 + q} offen {NTI}")
        a(f"buffer_load_dwordx2 {vr(b + 2, 2)}, v4, s[20:23], s{64 + q} offen offset:2048 {NTI}")
        a(f"buffer_load_dwordx2 {vr(b + 4, 2)}, v4, s[24:27], s{64 + q} offen {NTI}")
        a(f"buffer_load_dwordx2 {vr(b + 6, 2)}, v4, s[24:27], s{64 + q} offen offset:2048 {NTI}")
        a(f"buffer_load_dwordx2 {vr(b + 8, 2)}, {hv}, s[20:23], s{68 + q} offen")
        a(f"buffer_load_dwordx2 {vr(b + 10, 2)}, {hv}, s[20:23], s{68 + q} offen offset:2048")
        a(f"buffer_load_dwordx2 {vr(b + 12, 2)}, {hv}, s[20:23], s{76 + q} offen")

    issue_q(0)
    a("s_barrier")
    issue_q(1)
    a("s_waitcnt lgkmcnt(0)")
    for j in range(4):
        for c in range(4):
            src = 36 + 2 * c + (j >> 1)
            dst = 44 + 4 * j + c
            if j & 1:
                a(f"s_and_b32 s{dst}, s{src}, 0xffff0000")
            else:
                a(f"s_lshl_b32 s{dst}, s{src}, 16")
    a(f"""
    s_cmp_ge_u32 s17, 2
    s_cselect_b32 s63, s61, s60
    s_lshl_b32 s72, s63, 16
    s_and_b32 s63, s63, 0xffff0000
    s_bitcmp1_b32 s17, 0
    s_cselect_b32 s63, s63, s72
    """)
    a(f"""
    s_mul_i32 s72, s17, {U_STRIDE}
    s_mul_i32 s73, s17, {2 * H_COPY}
    s_add_u32 s73, s73, {H_BASE}
    v_mov_b32 v8, 0
    v_mov_b32 v9, 0
    v_mov_b32 v10, 0
    v_mov_b32 v11, 0
    v_lshlrev_b32 v12, 3, v2
    v_add_u32 v12, s72, v12
    ds_write_b64 v12, v[8:9] offset:4096
    v_add_u32 v13, s73, v3
    s_waitcnt vmcnt(14)
    """)
    a(f"""
    v_readfirstlane_b32 s74, v{HR}
    v_and_b32 v14, 1, v2
    v_lshlrev_b32 v15, 4, v14
    v_add_u32 v15, s73, v15
    s_lshl_b32 s74, s74, 16
    v_mul_u32_u24 v16, 1, v14
    ds_write_b128 v15, v[8:11]
    v_mov_b32 v17, s74
    v_cmp_eq_u32 vcc, 1, v14
    v_mov_b32 v20, 0
    v_mov_b32 v21, 0
    v_mov_b32 v22, 0
    v_cndmask_b32 v23, 0, v17, vcc
    ds_write_b128 v15, v[20:23] offset:{H_COPY}
    """)
    for i in range(4):
        b = HR + 8 * i
        a(f"ds_write_b128 v13, {vr(b, 4)} offset:{32 + 1024 * i}")
        t = 24 + 4 * (i & 1)
        for d in range(4):
            a(f"v_alignbit_b32 v{t + d}, v{b + d + 1}, v{b + d}, 16")
        a(f"ds_write_b128 v13, {vr(t, 4)} offset:{H_COPY + 32 + 1024 * i}")
    a(f"""
    v_and_b32 v14, 15, v2                   ; a / i
    v_lshrrev_b32 v15, 4, v2                ; kq / q
    v_lshlrev_b32 v16, 4, v15
    v_lshl_add_u32 v16, v14, 1, v16         ; + 2a
    v_and_b32 v17, 1, v14
    v_cmp_eq_u32 vcc, 1, v17
    v_add_u32 v18, 2, v16
    v_add_u32 v19, {H_COPY}, v16
    v_cndmask_b32 v16, v19, v18, vcc
    v_add_u32 v16, s73, v16
    s_waitcnt lgkmcnt(0)
    """)
    for j in range(64):
        if j and j % 16 == 0:
            a("v_add_u32 v16, 1024, v16")
        o = (j % 16) * 16
        a(f"ds_read2_b32 {ar(4 * j, 2)}, v16 offset0:{o} offset1:{o + 1}")
        a(f"ds_read2_b32 {ar(4 * j + 2, 2)}, v16 offset0:{o + 2} offset1:{o + 3}")
    a(f"""
    v_lshlrev_b32 v17, 4, v15
    v_lshlrev_b32 v18, 5, v14
    v_sub_u32 v17, v17, v18
    v_add_u32 v17, 480, v17
    v_add_u32 v17, s72, v17
    """)
    a(f"""
    v_lshlrev_b32 v19, 3, v15
    v_add_u32 v19, v19, v18
    v_sub_u32 v18, {4088 - 3584}, v19
    v_add_u32 v18, s72, v18
    """)
    a(f"""
    v_lshlrev_b32 v19, 2, v0
    v_sub_u32 v19, {4092 - 3072}, v19
    """)
    a(f"""
    v_lshlrev_b32 v20, 15, v14              ; 2i*16384
    v_lshrrev_b32 v21, 1, v15
    v_lshlrev_b32 v21, 14, v21
    v_add_u32 v20, v20, v21
    v_and_b32 v21, 1, v15
    v_lshl_add_u32 v20, v21, 3, v20
    s_add_u32 s74, s16, s17
    s_lshl_b32 s74, s74, 4
    v_add_u32 v20, s74, v20
    """)
    ACC = 32
    for r in range(32):
        a(f"v_mov_b32 v{ACC + r}, 0")
    BF = [64, 68, 72, 76]
    KF = 176
    VF = 196
    KS = 204
    PK = 212

    def compute_q(q):
        b = RAW[q & 1]
        for d in range(2):
            a(f"v_mov_b32_dpp v{b + 12 + d}, v{b + 2 + d} wave_shr:1 row_mask:0xf bank_mask:0xf")
        for d in range(2):
            a(f"v_mov_b32_dpp v{b + 10 + d}, v{b + 0 + d} wave_shr:1 row_mask:0xf bank_mask:0xf")
        a("s_nop 0")
        for d in range(2):
            a(f"v_mov_b32_dpp v{b + 8 + d}, v{b + 12 + d} wave_shr:1 row_mask:0xf bank_mask:0xf")
        src = [b + 8, b + 10, b + 12, b + 0, b + 2]
        for r in [3, 4, 2, 1, 0]:
            for p in range(2):
                a(f"v_lshlrev_b32 v{KF + 4 * r + 2 * p}, 16, v{src[r] + p}")
                a(f"v_and_b32 v{KF + 4 * r + 2 * p + 1}, 0xffff0000, v{src[r] + p}")
        for r in range(2):
            for p in range(2):
                a(f"v_lshlrev_b32 v{VF + 4 * r + 2 * p}, 16, v{b + 4 + 2 * r + p}")
                a(f"v_and_b32 v{VF + 4 * r + 2 * p + 1}, 0xffff0000, v{b + 4 + 2 * r + p}")
        for j in range(4):
            for r in range(2):
                for p in range(2):
                    kreg = vr(KF + 4 * (3 + r - j) + 2 * p, 2)
                    w = sr(44 + 4 * j + 2 * p, 2)
                    d = vr(KS + 4 * r + 2 * p, 2)
                    if j == 0:
                        a(f"v_pk_mul_f32 {d}, {kreg}, {w}")
                    else:
                        a(f"v_pk_fma_f32 {d}, {kreg}, {w}, {d}")
        for r in range(2):
            for p in range(2):
                d = vr(KS + 4 * r + 2 * p, 2)
                a(f"v_pk_mul_f32 {d}, {d}, {vr(VF + 4 * r + 2 * p, 2)}")
        for c in range(4):
            a(f"v_cvt_pk_bf16_f32 v{PK + c}, v{KS + 4 + c}, v{KS + c}")
        for c in range(4):
            a(f"ds_write_b32 v19, v{PK + c} offset:{3072 - 1024 * q + c * U_STRIDE}")

    def mfma_e(e):
        seq = [(jp) for jp in range(8)]
        def rd(jp):
            a(f"ds_read_b128 {vr(BF[jp & 3], 4)}, v17 offset:{3584 - 512 * e + 64 * jp}")
        for jp in range(3):
            rd(jp)
        for jp in seq:
            if jp + 3 < 8:
                rd(jp + 3)
                a("s_waitcnt lgkmcnt(3)")
            else:
                a(f"s_waitcnt lgkmcnt({7 - jp})")
            for m in range(8 - e):
                acc = vr(ACC + 4 * (e + m), 4)
                a(f"v_mfma_f32_16x16x32_bf16 {acc}, {ar(4 * (jp + 8 * m), 4)}, {vr(BF[jp & 3], 4)}, {acc}")

    def epilogue_c(c):
        t = 80 + 8 * (c & 1)
        a(f"ds_read_b64 {vr(t, 2)}, v18 offset:{3584 - 512 * c}")
        a("s_waitcnt lgkmcnt(0)")
        a(f"v_and_b32 v{t + 2}, 0xffff0000, v{t + 1}")
        a(f"v_lshlrev_b32 v{t + 3}, 16, v{t + 1}")
        a(f"v_and_b32 v{t + 4}, 0xffff0000, v{t}")
        a(f"v_lshlrev_b32 v{t + 5}, 16, v{t}")
        for r in range(4):
            a(f"v_fma_f32 v{t + 2 + r}, v{t + 2 + r}, s63, v{ACC + 4 * c + r}")
        a(f"v_cvt_pk_bf16_f32 v{t}, v{t + 2}, v{t + 3}")
        a(f"v_cvt_pk_bf16_f32 v{t + 1}, v{t + 4}, v{t + 5}")
        a(f"s_mov_b32 s75, {c * 32 * 16384}")
        a(f"buffer_store_dwordx2 {vr(t, 2)}, v20, s[32:35], s75 offen {STZ}")

    stamp(a, 2)
    stores = 0
    for q in range(4):
        if q == 0:
            a("s_waitcnt vmcnt(7)")
        elif q == 1:
            a("s_waitcnt vmcnt(7)")
        elif q == 2:
            a("s_waitcnt vmcnt(9)")
        else:
            a("s_waitcnt vmcnt(4)")
        stamp(a, 3 + q)
        compute_q(q)
        if q + 2 < 4:
            issue_q(q + 2)
        a("s_waitcnt lgkmcnt(0)")
        a("s_barrier")
        mfma_e(2 * q)
        if q > 0:
            epilogue_c(2 * q - 2)
            epilogue_c(2 * q - 1)
        mfma_e(2 * q + 1)
    a("s_nop 7")
    epilogue_c(6)
    epilogue_c(7)
    stamp(a, 7)
    stamp_flush(a, 0, 10)
    kernel_end(a, name)
    return name, descriptor(name, 256, 256, 96), (256, 256, CONV_LDS)


Z_BASE = CONV_LDS
CONV2_LDS = Z_BASE + 16384 + 16


def gen_conv2(a):
    name = "conv_kernel"
    kernel_begin(a, name, 256)
    a(f"""
    s_load_dwordx4 s[4:7], s[0:1], {KA_K}
    s_load_dwordx4 s[8:11], s[0:1], {KA_SK}
    s_load_dwordx2 s[12:13], s[0:1], {KA_D}
    s_load_dwordx2 s[14:15], s[0:1], {KA_WS}
    s_and_b32 s16, s2, 7
    s_lshl_b32 s16, s16, 7
    s_lshr_b32 s17, s2, 3
    s_lshl_b32 s17, s17, 2
    s_add_u32 s16, s16, s17                 ; s16 = d0
    v_lshrrev_b32 v1, 6, v0
    v_and_b32 v2, 63, v0                    ; v2 = lane
    v_readfirstlane_b32 s17, v1             ; s17 = wave
    s_lshl_b32 s18, s16, 3                  ; d0*8
    s_lshl_b32 s19, s16, 1                  ; d0*2
    s_cmp_ge_u32 s17, 4
    s_cbranch_scc1 L_conv_prod
    """)
    a(f"""
    s_add_u32 s62, s16, s17
    s_lshl_b32 s62, s62, 12
    v_lshlrev_b32 v3, 4, v2
    s_waitcnt lgkmcnt(0)
    s_load_dwordx2 s[60:61], s[12:13], s19  ; ssm_D[d0..d0+3]
    """)
    srd(a, 28, 10, 4 * MB)
    HR = 64
    for i in range(4):
        a(f"buffer_load_dwordx4 {vr(HR + 8 * i, 4)}, v3, s[28:31], s62 offen offset:{1024 * i} {NTI}")
    a(f"""
    s_mul_i32 s72, s17, {U_STRIDE}
    s_mul_i32 s73, s17, {2 * H_COPY}
    s_add_u32 s73, s73, {H_BASE}
    v_mov_b32 v8, 0
    v_mov_b32 v9, 0
    v_mov_b32 v10, 0
    v_mov_b32 v11, 0
    v_lshlrev_b32 v12, 3, v2
    v_add_u32 v12, s72, v12
    ds_write_b64 v12, v[8:9] offset:4096
    v_mov_b32 v13, {Z_BASE + 16384}
    ds_write_b128 v13, v[8:11]
    s_waitcnt lgkmcnt(0)
    s_barrier
    v_add_u32 v13, s73, v3
    v_and_b32 v14, 15, v2                   ; a / i
    v_lshrrev_b32 v15, 4, v2                ; kq / q
    v_lshlrev_b32 v16, 4, v15
    v_lshl_add_u32 v16, v14, 1, v16
    v_and_b32 v17, 1, v14
    v_cmp_eq_u32 vcc, 1, v17
    v_add_u32 v18, 2, v16
    v_add_u32 v19, {H_COPY}, v16
    v_cndmask_b32 v16, v19, v18, vcc
    v_add_u32 v16, s73, v16
    v_add_u32 v21, 1024, v16
    v_add_u32 v22, 2048, v16
    v_add_u32 v23, 3072, v16
    v_lshlrev_b32 v17, 4, v15
    v_lshlrev_b32 v18, 5, v14
    v_sub_u32 v17, v17, v18
    v_add_u32 v17, 480, v17
    v_add_u32 v17, s72, v17
    v_lshlrev_b32 v19, 3, v15
    v_add_u32 v19, v19, v18
    v_sub_u32 v18, {4088 - 3584}, v19
    v_add_u32 v18, s72, v18
    v_lshrrev_b32 v19, 1, v15
    v_lshlrev_b32 v19, 2, v19
    v_add_u32 v19, s17, v19                 ; slot = (q>>1)*4 + w
    v_and_b32 v20, 7, v14
    v_xor_b32 v19, v19, v20
    v_lshlrev_b32 v19, 4, v19
    v_lshl_add_u32 v19, v14, 7, v19
    v_and_b32 v20, 1, v15
    v_lshl_add_u32 v19, v20, 3, v19
    v_add_u32 v19, {Z_BASE}, v19
    v_and_b32 v24, 1, v2
    v_lshlrev_b32 v25, 4, v24
    v_add_u32 v25, s73, v25
    ds_write_b128 v25, v[8:11]
    s_waitcnt lgkmcnt(0)
    s_cmp_ge_u32 s17, 2
    s_cselect_b32 s63, s61, s60
    s_lshl_b32 s74, s63, 16
    s_and_b32 s63, s63, 0xffff0000
    s_bitcmp1_b32 s17, 0
    s_cselect_b32 s63, s63, s74             ; D (f32)
    """)
    ACC = 32
    for r in range(32):
        a(f"v_mov_b32 v{ACC + r}, 0")
    a("s_waitcnt vmcnt(0)")
    stamp(a, 2)
    for i in range(4):
        a(f"v_readfirstlane_b32 s{64 + i}, v{HR + 8 * i}")
    a(f"""
    v_cmp_eq_u32 vcc, 1, v24
    s_lshl_b32 s74, s64, 16
    v_mov_b32 v26, s74
    v_mov_b32 v{HR + 4}, s65
    v_mov_b32 v{HR + 12}, s66
    v_mov_b32 v{HR + 20}, s67
    v_cndmask_b32 v11, 0, v26, vcc
    ds_write_b128 v25, v[8:11] offset:{H_COPY}
    """)
    for i in range(4):
        b = HR + 8 * i
        a(f"ds_write_b128 v13, {vr(b, 4)} offset:{32 + 1024 * i}")
        a(f"v_mov_b32_dpp v{b + 4}, v{b} wave_shl:1 row_mask:0xf bank_mask:0xf")
    for i in range(4):
        b = HR + 8 * i
        t = 96 + 4 * i
        for d in range(4):
            a(f"v_alignbit_b32 v{t + d}, v{b + d + 1}, v{b + d}, 16")
        a(f"ds_write_b128 v13, {vr(t, 4)} offset:{H_COPY + 32 + 1024 * i}")
    a("s_waitcnt lgkmcnt(0)")
    HV = ["v16", "v21", "v22", "v23"]
    slot_of = {}

    def load_A(m, grp):
        slot_of[m] = grp
        for jp in range(8):
            j = jp + 8 * m
            o = (j % 16) * 16
            r = 32 * grp + 4 * jp
            a(f"ds_read2_b32 {ar(r, 2)}, {HV[j // 16]} offset0:{o} offset1:{o + 1}")
            a(f"ds_read2_b32 {ar(r + 2, 2)}, {HV[j // 16]} offset0:{o + 2} offset1:{o + 3}")

    BFB = 64
    CNT = Z_BASE + 16384

    def mfma_phase(steps, extra_reads=()):
        flat = [(e, jp, [m for m in ms if e + m <= 7]) for e, ms in steps for jp in range(8)]
        n = len(flat)
        D = 7
        for x in extra_reads:
            a(x)

        def rd(i):
            e, jp, _ = flat[i]
            a(f"ds_read_b128 {vr(BFB + 4 * (i & 7), 4)}, v17 offset:{3584 - 512 * e + 64 * jp}")
        for i in range(min(D, n)):
            rd(i)
        for i, (e, jp, ms) in enumerate(flat):
            if i + D < n:
                rd(i + D)
                a(f"s_waitcnt lgkmcnt({D})")
            else:
                a(f"s_waitcnt lgkmcnt({n - 1 - i})")
            for m in ms:
                acc = vr(ACC + 4 * (e + m), 4)
                a(f"v_mfma_f32_16x16x32_bf16 {acc}, {ar(32 * slot_of[m] + 4 * jp, 4)}, {vr(BFB + 4 * (i & 7), 4)}, {acc}")

    def kv_reads(cs):
        return [f"ds_read_b64 {vr(96 + 8 * n, 2)}, v18 offset:{3584 - 512 * c}" for n, c in enumerate(cs)]

    def epilogue(cs):
        for n, c in enumerate(cs):
            t = 96 + 8 * n
            a(f"v_and_b32 v{t + 2}, 0xffff0000, v{t + 1}")
            a(f"v_lshlrev_b32 v{t + 3}, 16, v{t + 1}")
            a(f"v_and_b32 v{t + 4}, 0xffff0000, v{t}")
            a(f"v_lshlrev_b32 v{t + 5}, 16, v{t}")
        for n, c in enumerate(cs):
            t = 96 + 8 * n
            for r in range(4):
                a(f"v_fma_f32 v{t + 2 + r}, v{t + 2 + r}, s63, v{ACC + 4 * c + r}")
            a(f"v_cvt_pk_bf16_f32 v{t}, v{t + 2}, v{t + 3}")
            a(f"v_cvt_pk_bf16_f32 v{t + 1}, v{t + 4}, v{t + 5}")
            a(f"ds_write_b64 v19, {vr(t, 2)} offset:{2048 * c}")
        a("s_waitcnt lgkmcnt(0)")

    def wait_q(q):
        a.label(f"L_conv_w{q}")
        a(f"""
        ds_read_b32 v27, v26 offset:{4 * q}
        s_waitcnt lgkmcnt(0)
        v_readfirstlane_b32 s75, v27
        s_cmp_ge_u32 s75, 4
        s_cbranch_scc1 L_conv_g{q}
        s_sleep 1
        s_branch L_conv_w{q}
        """)
        a.label(f"L_conv_g{q}")
        stamp(a, 4 + q)

    a(f"v_mov_b32 v26, {CNT}")
    for m in (4, 5, 6, 7):
        load_A(m, m - 4)
    a("s_waitcnt lgkmcnt(0)")
    stamp(a, 3)
    wait_q(0)
    mfma_phase([(0, [4, 5, 6, 7]), (1, [4, 5, 6])])
    load_A(0, 3)
    load_A(1, 2)
    mfma_phase([(0, [0, 1]), (1, [0, 1])])
    wait_q(1)
    mfma_phase([(2, [4, 5, 0, 1]), (3, [4, 0, 1])], kv_reads([0, 1]))
    load_A(2, 1)
    load_A(3, 0)
    epilogue([0, 1])
    mfma_phase([(e, [2, 3]) for e in range(4)])
    wait_q(2)
    mfma_phase([(4, [0, 1, 2, 3]), (5, [0, 1, 2])], kv_reads([2, 3, 4]))
    epilogue([2, 3, 4])
    wait_q(3)
    mfma_phase([(6, [0, 1]), (7, [0])], kv_reads([5, 6, 7]))
    epilogue([5, 6, 7])
    a("s_branch L_conv_fin")
    a.label("L_conv_prod")
    a(f"""
    v_and_b32 v3, 255, v0                   ; t
    s_lshr_b32 s62, s2, 3
    s_lshl_b32 s62, s62, 17
    s_and_b32 s63, s2, 7
    s_lshl_b32 s63, s63, 8
    s_add_u32 s62, s62, s63
    s_and_b32 s63, s17, 1
    s_lshl_b32 s63, s63, 7
    s_add_u32 s62, s62, s63
    v_lshlrev_b32 v8, 11, v2
    s_waitcnt lgkmcnt(0)
    s_load_dwordx8 s[36:43], s[8:9], s18    ; shift_k[d0..d0+3][0..3]
    s_cmp_ge_u32 s17, 6
    s_cselect_b32 s28, s6, s4
    s_cselect_b32 s29, s7, s5
    s_mov_b32 s30, {4 * MB}
    s_mov_b32 s31, 0x20000
    """)
    if opt("cpf", 1):
        a(f"buffer_load_dword v9, v8, s[28:31], s62 offen {opt('cpfnt', '-').replace('-', '')}")
    srd(a, 20, 4, 4 * MB)
    srd(a, 24, 6, 4 * MB)
    a(f"""
    v_lshlrev_b32 v4, 12, v3
    v_add_u32 v4, s19, v4
    v_subrev_u32 v7, {3 * 2048}, v4
    v_mov_b32 v6, 0x40000000
    v_cmp_eq_u32 vcc, 0, v2
    s_nop 1
    v_cndmask_b32 v5, v6, v4, vcc
    v_cndmask_b32 v7, v6, v7, vcc
    v_cmp_eq_u32 vcc, 0, v3
    s_nop 1
    v_cndmask_b32 v7, v7, v6, vcc
    s_mov_b32 s64, 0
    s_mov_b32 s65, {1 * MB}
    s_mov_b32 s66, {2 * MB}
    s_mov_b32 s67, {3 * MB}
    s_mov_b32 s68, 0
    s_mov_b32 s69, {1 * MB - 6144}
    s_mov_b32 s70, {2 * MB - 6144}
    s_mov_b32 s71, {3 * MB - 6144}
    s_mov_b32 s76, 4096
    s_mov_b32 s77, {1 * MB - 2048}
    s_mov_b32 s78, {2 * MB - 2048}
    s_mov_b32 s79, {3 * MB - 2048}
    """)
    RAW = [32, 48]
    NTN = opt("ntn", "").replace("-", "")

    def issue_k(q):
        b = RAW[q & 1]
        hv = "v7" if q == 0 else "v5"
        a(f"buffer_load_dwordx2 {vr(b + 0, 2)}, v4, s[20:23], s{64 + q} offen {NTN}")
        a(f"buffer_load_dwordx2 {vr(b + 8, 2)}, {hv}, s[20:23], s{68 + q} offen")
        a(f"buffer_load_dwordx2 {vr(b + 10, 2)}, {hv}, s[20:23], s{68 + q} offen offset:2048")
        a(f"buffer_load_dwordx2 {vr(b + 12, 2)}, {hv}, s[20:23], s{76 + q} offen")
        a(f"buffer_load_dwordx2 {vr(b + 2, 2)}, v4, s[20:23], s{64 + q} offen offset:2048 {NTN}")

    def issue_v(q):
        b = RAW[q & 1]
        a(f"buffer_load_dwordx2 {vr(b + 4, 2)}, v4, s[24:27], s{64 + q} offen {NTN}")
        a(f"buffer_load_dwordx2 {vr(b + 6, 2)}, v4, s[24:27], s{64 + q} offen offset:2048 {NTN}")

    a("s_barrier")
    issue_k(0)
    issue_v(0)
    stamp(a, 2)
    a("s_waitcnt lgkmcnt(0)")
    for j in range(4):
        for c in range(4):
            src = 36 + 2 * c + (j >> 1)
            dst = 44 + 4 * j + c
            if j & 1:
                a(f"s_and_b32 s{dst}, s{src}, 0xffff0000")
            else:
                a(f"s_lshl_b32 s{dst}, s{src}, 16")
    a(f"""
    v_lshlrev_b32 v19, 2, v3
    v_sub_u32 v19, {4092 - 3072}, v19
    """)
    stamp(a, 3)
    KF = 64
    VF = 84
    KS = 92
    PK = 100

    def compute_q(q):
        b = RAW[q & 1]
        for d in range(2):
            a(f"v_mov_b32_dpp v{b + 12 + d}, v{b + 2 + d} wave_shr:1 row_mask:0xf bank_mask:0xf")
        for d in range(2):
            a(f"v_mov_b32_dpp v{b + 10 + d}, v{b + 0 + d} wave_shr:1 row_mask:0xf bank_mask:0xf")
        a("s_nop 0")
        for d in range(2):
            a(f"v_mov_b32_dpp v{b + 8 + d}, v{b + 12 + d} wave_shr:1 row_mask:0xf bank_mask:0xf")
        src = [b + 8, b + 10, b + 12, b + 0, b + 2]
        for r in [3, 4, 2, 1, 0]:
            for p in range(2):
                a(f"v_lshlrev_b32 v{KF + 4 * r + 2 * p}, 16, v{src[r] + p}")
                a(f"v_and_b32 v{KF + 4 * r + 2 * p + 1}, 0xffff0000, v{src[r] + p}")
        for r in range(2):
            for p in range(2):
                a(f"v_lshlrev_b32 v{VF + 4 * r + 2 * p}, 16, v{b + 4 + 2 * r + p}")
                a(f"v_and_b32 v{VF + 4 * r + 2 * p + 1}, 0xffff0000, v{b + 4 + 2 * r + p}")
        for j in range(4):
            for r in range(2):
                for p in range(2):
                    kreg = vr(KF + 4 * (3 + r - j) + 2 * p, 2)
                    w = sr(44 + 4 * j + 2 * p, 2)
                    d = vr(KS + 4 * r + 2 * p, 2)
                    if j == 0:
                        a(f"v_pk_mul_f32 {d}, {kreg}, {w}")
                    else:
                        a(f"v_pk_fma_f32 {d}, {kreg}, {w}, {d}")
        for r in range(2):
            for p in range(2):
                d = vr(KS + 4 * r + 2 * p, 2)
                a(f"v_pk_mul_f32 {d}, {d}, {vr(VF + 4 * r + 2 * p, 2)}")
        for c in range(4):
            a(f"v_cvt_pk_bf16_f32 v{PK + c}, v{KS + 4 + c}, v{KS + c}")
        for c in range(4):
            a(f"ds_write_b32 v19, v{PK + c} offset:{3072 - 1024 * q + c * U_STRIDE}")

    a(f"v_mov_b32 v20, {Z_BASE + 16384}")
    a("v_mov_b32 v21, 1")
    for q in range(4):
        if q < 3:
            issue_k(q + 1)
        a(f"s_waitcnt vmcnt({5 if q < 3 else 0})")
        stamp(a, 4 + q)
        compute_q(q)
        a("s_waitcnt lgkmcnt(0)")
        a("s_mov_b64 exec, 1")
        a(f"ds_add_u32 v20, v21 offset:{4 * q}")
        a("s_mov_b64 exec, -1")
        if q < 3:
            issue_v(q + 1)
    a.label("L_conv_fin")
    srd(a, 32, 14, 4 * MB)
    a(f"""
    v_lshlrev_b32 v3, 4, v0
    v_add_u32 v3, {Z_BASE}, v3
    v_lshrrev_b32 v4, 3, v0                 ; B (r = 0)
    v_xor_b32 v5, v0, v4
    v_and_b32 v5, 7, v5
    v_lshlrev_b32 v4, 15, v4                ; 2B*16384
    v_lshrrev_b32 v6, 2, v5
    v_lshl_add_u32 v4, v6, 14, v4
    v_and_b32 v5, 3, v5
    v_lshl_add_u32 v4, v5, 4, v4
    s_lshl_b32 s18, s16, 4
    s_add_u32 s19, s18, {2 * MB}
    s_barrier
    ds_read_b128 v[8:11], v3
    ds_read_b128 v[12:15], v3 offset:8192
    s_waitcnt lgkmcnt(1)
    buffer_store_dwordx4 v[8:11], v4, s[32:35], s18 offen {STZ}
    s_waitcnt lgkmcnt(0)
    buffer_store_dwordx4 v[12:15], v4, s[32:35], s19 offen {STZ}
    s_cmp_lg_u32 s17, 0
    s_cbranch_scc1 L_conv_nozero
    """)
    srd(a, 36, 14, 256 * 1024, off=28 * MB)
    a("""
    v_mov_b32 v16, 0
    v_mov_b32 v17, 0
    v_mov_b32 v18, 0
    v_mov_b32 v19, 0
    v_lshlrev_b32 v3, 4, v0
    s_lshl_b32 s18, s2, 10
    buffer_store_dwordx4 v[16:19], v3, s[36:39], s18 offen
    """)
    a.label("L_conv_nozero")
    stamp_flush(a, 0, 10, lw=3)
    kernel_end(a, name)
    return name, descriptor(name, 128, 128, 96), (256, 512, CONV2_LDS)


LN_LDS = 16384 + 512


def bf16_round(a, v, tmp=None):
    a(f"v_cvt_pk_bf16_f32 {v}, {v}, {v}")
    a(f"v_and_b32 {v}, 0xffff0000, {v}")


def pf1(a):
    pf = opt("pf1nt", "").replace("-", "")
    a(f"""
    s_load_dwordx4 s[28:31], s[0:1], {KA_WG}
    v_and_b32 v122, 7, v2
    v_min_u32 v122, 6, v122
    v_lshlrev_b32 v122, 7, v122
    v_mul_u32_u24 v123, 7168, v4
    v_add_u32 v122, v122, v123
    s_lshr_b32 s36, s2, 3
    s_lshl_b32 s36, s36, 5
    s_and_b32 s37, s17, 1
    s_lshl_b32 s37, s37, 4
    s_add_u32 s36, s36, s37
    s_mul_i32 s36, s36, 7168
    s_add_u32 s37, s2, {opt('pf1x', 0)}
    s_and_b32 s37, s37, 7
    s_mul_i32 s37, s37, 896
    s_add_u32 s36, s36, s37
    s_add_u32 s37, s36, {8 * 7168}
    s_waitcnt lgkmcnt(0)
    s_cmp_ge_u32 s17, 2
    s_cselect_b32 s32, s30, s28
    s_cselect_b32 s33, s31, s29
    s_mov_b32 s34, {1024 * 3584 * 2}
    s_mov_b32 s35, 0x20000
    """)
    b2b = opt("b2b", "").replace("-", " ").replace("+", " ")
    a(f"buffer_load_dword v120, v122, s[32:35], s36 offen {pf}")
    if opt("b2bm", 0) == 1:
        a(f"buffer_load_dword v124, v122, s[32:35], s36 offen {b2b}")
    a(f"buffer_load_dword v121, v122, s[32:35], s37 offen {pf}")
    if opt("b2bm", 0) == 2:
        a(f"buffer_load_dword v124, v122, s[32:35], s36 offen {b2b}")
    if opt("b2bm", 0):
        a(f"buffer_load_dword v125, v122, s[32:35], s37 offen {b2b}")


def gen_ln(a):
    name = "ln_kernel"
    kernel_begin(a, name, 256)
    a(f"""
    s_load_dwordx2 s[4:5], s[0:1], {KA_Q}
    s_load_dwordx2 s[6:7], s[0:1], {KA_WS}
    v_lshrrev_b32 v1, 6, v0
    v_and_b32 v2, 63, v0                    ; lane
    v_readfirstlane_b32 s17, v1             ; wave
    v_and_b32 v3, 7, v2                     ; r
    v_lshrrev_b32 v4, 3, v2                 ; o
    s_waitcnt lgkmcnt(0)
    """)
    srd(a, 8, 4, 4 * MB)
    srd(a, 12, 6, 4 * MB)
    srd(a, 20, 6, 4 * MB, off=WS_H)
    srd(a, 24, 6, 4 * MB, off=WS_LN)
    a(f"""
    s_lshl_b32 s18, s2, 14
    s_lshl_b32 s19, s17, 12
    s_add_u32 s18, s18, s19
    v_lshlrev_b32 v5, 4, v2
    s_mov_b32 m0, s19
    s_nop 0
    buffer_load_dwordx4 v5, s[12:15], s18 offen lds
    buffer_load_dwordx4 v5, s[12:15], s18 offen offset:1024 lds
    buffer_load_dwordx4 v5, s[12:15], s18 offen offset:2048 lds
    buffer_load_dwordx4 v5, s[12:15], s18 offen offset:3072 lds
    """)
    a(f"""
    v_lshlrev_b32 v6, 11, v3
    v_lshl_add_u32 v6, v4, 4, v6
    s_lshl_b32 s18, s2, 14
    s_lshl_b32 s19, s17, 9
    s_add_u32 s18, s18, s19
    """)
    QR = 16
    for it in range(4):
        a(f"buffer_load_dwordx4 {vr(QR + 4 * it, 4)}, v6, s[8:11], s18 offen offset:{128 * it} {NTI}")
    if opt('pf1', 1) == 1:
        pf1(a)
    a(f"""
    v_lshrrev_b32 v7, 4, v2
    v_lshlrev_b32 v7, 8, v7                 ; (l>>4)*256
    v_bfe_u32 v8, v2, 1, 1
    v_lshl_add_u32 v7, v8, 7, v7
    v_bfe_u32 v8, v2, 2, 2
    v_lshl_add_u32 v7, v8, 4, v7
    v_and_b32 v8, 1, v2
    v_lshl_add_u32 v7, v8, 3, v7
    s_lshl_b32 s19, s17, 12
    v_add_u32 v7, s19, v7
    """)
    a(f"""
    v_lshlrev_b32 v9, 5, v3
    v_add_u32 v9, 16384, v9
    s_lshl_b32 s19, s17, 3
    v_add_u32 v10, s19, v9
    """)
    XF = 32
    ZR = 64
    ZF = 80
    a(f"s_waitcnt vmcnt({(4 if opt('b2bm', 0) else 2) if opt('pf1', 1) == 1 else 0})")
    stamp(a, 2)
    for it in range(4):
        for half in range(2):
            a(f"ds_read_b64_tr_b16 {vr(ZR + 4 * it + 2 * half, 2)}, v7 offset:{it * 1024 + half * 64}")
    for i in range(16):
        a(f"v_lshlrev_b32 v{XF + 2 * i}, 16, v{QR + i}")
        a(f"v_and_b32 v{XF + 2 * i + 1}, 0xffff0000, v{QR + i}")

    def stats(src, rnd):
        a(f"v_pk_add_f32 v[112:113], {vr(src, 2)}, {vr(src + 2, 2)}")
        a(f"v_pk_mul_f32 v[114:115], {vr(src, 2)}, {vr(src, 2)}")
        a(f"v_pk_fma_f32 v[114:115], {vr(src + 2, 2)}, {vr(src + 2, 2)}, v[114:115]")
        for i in range(2, 16):
            a(f"v_pk_add_f32 v[112:113], v[112:113], {vr(src + 2 * i, 2)}")
            a(f"v_pk_fma_f32 v[114:115], {vr(src + 2 * i, 2)}, {vr(src + 2 * i, 2)}, v[114:115]")
        a(f"""
        v_add_f32 v12, v112, v113
        v_add_f32 v13, v114, v115
        s_nop 1
        v_add_f32_dpp v12, v12, v12 row_ror:8 row_mask:0xf bank_mask:0xf
        v_add_f32_dpp v13, v13, v13 row_ror:8 row_mask:0xf bank_mask:0xf
        v_mov_b32 v14, v12
        v_mov_b32 v15, v13
        s_nop 1
        v_permlane16_swap_b32 v12, v14
        v_permlane16_swap_b32 v13, v15
        s_nop 1
        v_add_f32 v12, v12, v14
        v_add_f32 v13, v13, v15
        v_mov_b32 v14, v12
        v_mov_b32 v15, v13
        s_nop 1
        v_permlane32_swap_b32 v12, v14
        v_permlane32_swap_b32 v13, v15
        s_nop 1
        v_add_f32 v12, v12, v14
        v_add_f32 v13, v13, v15
        ds_write_b64 v10, v[12:13] offset:{256 * rnd}
        s_waitcnt lgkmcnt(0)
        s_barrier
        ds_read_b128 v[112:115], v9 offset:{256 * rnd}
        ds_read_b128 v[116:119], v9 offset:{256 * rnd + 16}
        s_waitcnt lgkmcnt(0)
        v_pk_add_f32 v[112:113], v[112:113], v[114:115]
        v_pk_add_f32 v[116:117], v[116:117], v[118:119]
        v_pk_add_f32 v[112:113], v[112:113], v[116:117]
        v_mul_f32 v12, {hex(f32bits(1.0 / 1024))}, v112      ; mean
        v_mul_f32 v13, {hex(f32bits(1.0 / 1024))}, v113      ; E[x^2]
        v_fma_f32 v13, -v12, v12, v13                        ; var
        v_max_f32 v13, 0, v13
        """)
        bf16_round(a, "v12")
        bf16_round(a, "v13")
        a(f"v_add_f32 v13, {hex(f32bits(1e-5))}, v13")
        bf16_round(a, "v13")
        a("v_sqrt_f32 v13, v13")
        a("s_nop 0")
        bf16_round(a, "v13")
        a("v_rcp_f32 v13, v13")
        a("s_nop 0")

    stats(XF, 0)
    stamp(a, 3)
    for i in range(16):
        a(f"v_lshlrev_b32 v{ZF + 2 * i}, 16, v{ZR + i}")
        a(f"v_and_b32 v{ZF + 2 * i + 1}, 0xffff0000, v{ZR + i}")
    a("v_mul_f32 v14, v12, v13")
    a("v_sub_f32 v14, 0, v14")
    a("v_mov_b32 v15, v14")
    a("v_mov_b32 v12, v13")
    for i in range(16):
        x = vr(XF + 2 * i, 2)
        z = vr(ZF + 2 * i, 2)
        a(f"v_pk_fma_f32 v[112:113], {x}, v[12:13], v[14:15]")
        a(f"v_pk_fma_f32 {z}, v[112:113], {z}, {x}")
        a(f"v_cvt_pk_bf16_f32 v{QR + i}, v{ZF + 2 * i}, v{ZF + 2 * i + 1}")
    a(f"""
    v_lshlrev_b32 v6, 9, v4
    v_lshl_add_u32 v6, v3, 4, v6
    s_lshr_b32 s18, s2, 2
    s_lshl_b32 s18, s18, 16
    s_and_b32 s19, s2, 3
    s_lshl_b32 s19, s19, 7
    s_add_u32 s18, s18, s19
    s_lshl_b32 s19, s17, 14
    s_add_u32 s18, s18, s19
    """)
    for it in range(4):
        a(f"buffer_store_dwordx4 {vr(QR + 4 * it, 4)}, v6, s[20:23], s18 offen {STL}")
        if it < 3:
            a("s_add_u32 s18, s18, 4096")
    for i in range(16):
        a(f"v_lshlrev_b32 v{XF + 2 * i}, 16, v{QR + i}")
        a(f"v_and_b32 v{XF + 2 * i + 1}, 0xffff0000, v{QR + i}")
    stats(XF, 1)
    stamp(a, 4)
    a("v_mul_f32 v14, v12, v13")
    a("v_sub_f32 v14, 0, v14")
    a("v_mov_b32 v15, v14")
    a("v_mov_b32 v12, v13")
    for i in range(16):
        x = vr(XF + 2 * i, 2)
        a(f"v_pk_fma_f32 {x}, {x}, v[12:13], v[14:15]")
        a(f"v_cvt_pk_bf16_f32 v{ZR + i}, v{XF + 2 * i}, v{XF + 2 * i + 1}")
    a(f"""
    v_lshrrev_b32 v6, 1, v4
    v_lshlrev_b32 v6, 11, v6
    v_and_b32 v7, 1, v4
    v_lshl_add_u32 v6, v7, 9, v6
    v_lshl_add_u32 v6, v3, 4, v6
    s_lshr_b32 s18, s2, 3
    s_lshl_b32 s18, s18, 17
    s_bfe_u32 s19, s2, 0x10002
    s_lshl_b32 s19, s19, 10
    s_add_u32 s18, s18, s19
    s_and_b32 s19, s2, 3
    s_lshl_b32 s19, s19, 7
    s_add_u32 s18, s18, s19
    s_lshl_b32 s19, s17, 15
    s_add_u32 s18, s18, s19
    """)
    for it in range(4):
        a(f"buffer_store_dwordx4 {vr(ZR + 4 * it, 4)}, v6, s[24:27], s18 offen {STL}")
        if it < 3:
            a("s_add_u32 s18, s18, 8192")
    if opt('pf1', 1) == 2:
        pf1(a)
    if opt('rt1', ''):
        f = opt('rt1', '').replace("-", "").replace("+", " ")
        a(f"buffer_load_dword v120, v122, s[32:35], s36 offen {f}")
        a(f"buffer_load_dword v121, v122, s[32:35], s37 offen {f}")
    stamp(a, 5)
    stamp_flush(a, 1, 8)
    kernel_end(a, name)
    return name, descriptor(name, 128, 0, 40), (256, 256, LN_LDS)


def gemm_loop(a, tag, NST, DEPTH, RING, STAGE, KADV, dma_items, wread_ops, mfmas, addr_update, AF, init_acc,
              pro_limit=None):
    UN = DEPTH // 4
    assert NST % UN == 0
    LDS = STAGE * RING
    nd = len(dma_items)
    base, rem = divmod(nd, 4)
    split = [base + (1 if i < rem else 0) for i in range(4)]

    def w_item(st, i):
        ins = list(dma_items[i])
        if i == nd - 1:
            ins += [f"s_add_u32 s34, s34, {KADV}", f"s_add_u32 s35, s35, {STAGE}",
                    f"s_cmp_ge_u32 s35, {LDS}", "s_cselect_b32 s35, s33, s35"]
        return (("W", st), ins)

    def a_items(idx):
        b = AF + 8 * (idx % DEPTH)
        return [(("A", idx), [f"buffer_load_dwordx4 {ar(b, 4)}, v15, s[28:31], s36 offen {NTA}"]),
                (("A", idx), [f"buffer_load_dwordx4 {ar(b + 4, 4)}, v15, s[28:31], s36 offen offset:1024 {NTA}",
                              "s_add_u32 s36, s36, 2048"])]

    def items_at(g):
        out = []
        ai = g - 1 + DEPTH
        A = a_items(ai) if ai >= 0 else []
        ph = (g + 1) % 4
        st = (g + 1) // 4 - 1 + RING
        lo = sum(split[:ph])
        W = [w_item(st, i) for i in range(lo, lo + split[ph])] if st >= 0 else []
        while A or W:
            if A:
                out.append(A.pop(0))
            if W:
                out.append(W.pop(0))
        return out

    order = []

    def cnt_after(t):
        idx = max(i for i, x in enumerate(order) if x == t)
        return len(order) - 1 - idx

    def emit_ins(ins):
        for x in ins:
            a(x)
            if " m0," in x:
                a("s_nop 0")

    a("s_mov_b32 s34, 0")
    a("s_mov_b32 s35, s33")
    a("s_mov_b32 s36, 0")
    backlog = []
    for g in range(-4 * RING - DEPTH, 0):
        backlog += items_at(g)
    npro = len(backlog) if pro_limit is None else pro_limit
    for t, ins in backlog[:npro]:
        emit_ins(ins)
        order.append(t)
    backlog = backlog[npro:]
    init_acc()
    stamp(a, 2)
    a(f"s_waitcnt vmcnt({cnt_after(('W', 0))})")
    a("s_barrier")
    stamp(a, 3)
    a("s_mov_b32 s37, 0")
    for op in addr_update():
        emit_ins(op)
    a(f"s_mov_b32 s37, {STAGE}")
    for op in wread_ops(0, 0):
        emit_ins(op)

    def body(it, waits, emit, backlog):
        for us in range(UN):
            st = it * UN + us
            for j in range(4):
                g = 4 * st + j
                buf = g & 1
                wv = cnt_after(("A", g))
                if j == 3:
                    assert order.count(("W", st + 1)) == nd
                    wv = min(wv, cnt_after(("W", st + 1)))
                k = 4 * us + j
                waits[k] = min(waits.get(k, 63), wv)
                fill = []
                if j == 3:
                    fill += addr_update()
                    fill += wread_ops(buf ^ 1, 0)
                    fill.append([f"s_add_u32 s37, s37, {STAGE}", f"s_cmp_ge_u32 s37, {LDS}", "s_cselect_b32 s37, 0, s37"])
                else:
                    fill += wread_ops(buf ^ 1, j + 1)
                mine = items_at(g)
                if backlog is not None:
                    n = len(mine)
                    backlog += mine
                    left = 4 * UN - k
                    take = n + -(-(len(backlog) - n) // left)
                    mine = backlog[:take]
                    del backlog[:take]
                vm = [ins for _, ins in mine]
                order.extend(t for t, _ in mine)
                if emit:
                    a(f"s_waitcnt vmcnt({waits[k]}) lgkmcnt(0)")
                    if j == 3:
                        a("s_barrier")
                    mf = mfmas(buf, AF + 8 * (g % DEPTH))
                    n = len(mf)
                    slots = [[] for _ in range(n)]
                    per = max(2, -(-len(fill) // n))
                    for i, op in enumerate(fill):
                        slots[min(i // per, n - 1)].append(op)
                    for i, op in enumerate(vm):
                        slots[min(n - 1, ((2 * i + 1) * n) // (2 * len(vm)))].append(op)
                    for i, m in enumerate(mf):
                        a(m)
                        for op in slots[i]:
                            emit_ins(op)

    first = 0
    if pro_limit is not None:
        body(0, {}, True, backlog)
        assert not backlog
        first = 1
    waits = {}
    saved = list(order)
    for it in range(first, NST // UN):
        body(it, waits, False, None)
    assert max(waits.values()) <= 63
    order[:] = saved
    a(f"s_mov_b32 s38, {NST // UN - first}")
    a.raw(".p2align 6")
    a.label(f"L_{tag}_loop")
    body(first, waits, True, None)
    a("s_sub_u32 s38, s38, 1")
    a("s_cmp_lg_u32 s38, 0")
    a(f"s_cbranch_scc1 L_{tag}_loop")
    stamp(a, 4)


G1_UPOFF = 14336 + 128
G1_STAGE = G1_UPOFF + 14336
G1_RING = opt('r1', 5)


def pf2(a):
    pf = opt("pf2nt", "").replace("-", "")
    n = opt("pf2n", 4)
    a(f"""
    s_load_dwordx2 s[46:47], s[0:1], {KA_WD}
    v_lshrrev_b32 v6, 3, v2
    v_lshlrev_b32 v6, 11, v6
    v_and_b32 v7, 7, v2
    v_lshl_add_u32 v6, v7, 7, v6
    s_lshr_b32 s23, s2, 3
    s_lshl_b32 s23, s23, 14
    s_add_u32 s32, s2, {opt('pf2x', 0)}
    s_and_b32 s32, s32, 1
    s_lshl_b32 s32, s32, 10
    s_add_u32 s23, s23, s32
    s_lshl_b32 s32, s17, 19
    s_add_u32 s23, s23, s32
    s_waitcnt lgkmcnt(0)
    """)
    srd(a, 48, 46, 3584 * 1024 * 2)
    for i in range(n):
        a(f"buffer_load_dword v{8 + i}, v6, s[48:51], s23 offen {pf}")
        a(f"s_add_u32 s23, s23, {1024 * 2048}")


def gen_gemm1(a, DEPTH=opt('d1', 16)):
    name = "gemm1_kernel"
    kernel_begin(a, name, 256)
    a(f"""
    s_load_dwordx4 s[4:7], s[0:1], {KA_WG}
    s_load_dwordx2 s[8:9], s[0:1], {KA_WS}
    v_lshrrev_b32 v1, 6, v0
    v_and_b32 v2, 63, v0
    v_readfirstlane_b32 s17, v1             ; wave
    s_lshr_b32 s18, s2, 5                   ; mt
    s_and_b32 s19, s2, 7
    s_lshl_b32 s19, s19, 2
    s_bfe_u32 s20, s2, 0x20003
    s_add_u32 s19, s19, s20                 ; nt
    s_waitcnt lgkmcnt(0)
    s_cmp_ge_u32 s17, 2
    s_cselect_b32 s24, s6, s4
    s_cselect_b32 s25, s7, s5
    s_mov_b32 s26, {1024 * 3584 * 2}
    s_mov_b32 s27, 0x20000
    s_lshl_b32 s20, s18, 2
    s_add_u32 s20, s20, s17                 ; m64 block
    s_lshl_b32 s21, s20, 17
    s_add_u32 s21, s21, {WS_LN}
    s_add_u32 s28, s8, s21
    s_addc_u32 s29, s9, 0
    s_mov_b32 s30, 131072
    s_mov_b32 s31, 0x20000
    """)
    srd(a, 40, 8, 2048 * 3584 * 2, off=WS_HH)
    ACC = 32
    a(f"""
    s_mul_i32 s21, s19, 224
    s_and_b32 s22, s17, 1
    s_mul_i32 s23, s22, {32 * 7168}
    s_add_u32 s21, s21, s23
    s_mov_b32 s23, {(1 << 20) // 14 + 1}
    s_movk_i32 s32, 7168
    """)
    for i in range(7):
        a(f"""
        v_add_u32 v3, {64 * i}, v2
        v_mul_lo_u32 v4, v3, s23
        v_lshrrev_b32 v4, 20, v4
        v_mul_u32_u24 v5, 14, v4
        v_sub_u32 v5, v3, v5
        v_mul_lo_u32 v4, v4, s32
        v_lshl_add_u32 v4, v5, 4, v4
        v_add_u32 v4, s21, v4
        v_subrev_u32 v{8 + i}, {1024 * (i % 4)}, v4
        """)
    a(f"""
    s_lshr_b32 s33, s17, 1
    s_mul_i32 s33, s33, {G1_UPOFF}
    s_mul_i32 s22, s22, 7168
    s_add_u32 s33, s33, s22
    v_lshlrev_b32 v15, 4, v2
    v_bfe_u32 v3, v2, 4, 1
    v_mul_u32_u24 v16, {G1_UPOFF}, v3
    v_lshrrev_b32 v3, 5, v2
    v_lshlrev_b32 v3, 3, v3
    v_bfe_u32 v4, v2, 2, 2
    v_add_u32 v3, v3, v4
    v_mul_u32_u24 v3, 224, v3
    v_add_u32 v16, v16, v3
    v_and_b32 v3, 1, v2
    v_lshl_add_u32 v16, v3, 4, v16
    v_bfe_u32 v3, v2, 1, 1
    v_lshl_add_u32 v16, v3, 3, v16
    """)
    WF = [0, 28]
    AF = 56
    dma = [[f"buffer_load_dwordx4 v{8 + i}, s[24:27], s34 offen offset:{1024 * (i & 3)} {NTW1} lds"] for i in range(7)]
    dma[0].insert(0, "s_mov_b32 m0, s35")
    dma[4].insert(0, "s_add_u32 m0, s35, 4096")

    def wread_ops(buf, sub):
        return [[f"ds_read_b64_tr_b16 {ar(WF[buf] + 4 * t + 2 * rd, 2)}, v17 offset:{(16 * sub + 4 * rd) * 224 + 32 * t}"]
                for t in range(7) for rd in range(2)]

    def mfmas(buf, af):
        out = []
        for t in range(7):
            for mb in range(2):
                acc = vr(ACC + 16 * (2 * t + mb), 16)
                out.append(f"v_mfma_f32_32x32x16_bf16 {acc}, {ar(WF[buf] + 4 * t, 4)}, {ar(af + 4 * mb, 4)}, {acc}")
        return out

    def addr_update():
        return [["v_add_u32 v17, s37, v16"]]

    def init_acc():
        for r in range(224):
            a(f"v_mov_b32 v{ACC + r}, 0")

    gemm_loop(a, "g1", 16, DEPTH, G1_RING, G1_STAGE, 64 * 7168, dma, wread_ops, mfmas, addr_update, AF, init_acc,
              pro_limit=(opt('p1', 0) or None))
    c = 0.7978845608028654
    k0 = -2.0 * c * 1.4426950408889634
    k1 = k0 * 0.044715
    a(f"""
    s_mov_b32 s44, {hex(f32bits(k1))}
    s_mov_b32 s45, {hex(f32bits(k1))}
    v_mov_b32 v4, {hex(f32bits(k0))}
    v_mov_b32 v5, {hex(f32bits(k0))}
    s_lshl_b32 s21, s20, 1
    s_mul_i32 s21, s21, {224 * 1024}
    s_mul_i32 s22, s19, {7 * 1024}
    s_add_u32 s21, s21, s22
    s_add_u32 s22, s21, {224 * 1024}
    s_nop 7
    """)
    if opt('pf2', 1) == 1:
        pf2(a)
    T = 16
    for t in range(7):
        for mb in range(2):
            C = ACC + 16 * (2 * t + mb)
            g = [vr(C + 2 * p, 2) for p in range(4)]
            u = [vr(C + 8 + 2 * p, 2) for p in range(4)]
            tt = [vr(T + 2 * p, 2) for p in range(4)]
            for p in range(4):
                a(f"v_pk_mul_f32 {tt[p]}, {g[p]}, {g[p]}")
            for p in range(4):
                a(f"v_pk_fma_f32 {tt[p]}, {tt[p]}, s[44:45], v[4:5]")
            for p in range(4):
                a(f"v_pk_mul_f32 {tt[p]}, {tt[p]}, {g[p]}")
            for i in range(8):
                a(f"v_exp_f32 v{T + i}, v{T + i}")
            for p in range(4):
                a(f"v_pk_mul_f32 {u[p]}, {u[p]}, {g[p]}")
            for p in range(4):
                a(f"v_pk_add_f32 {tt[p]}, {tt[p]}, 1.0 op_sel_hi:[1,0]")
            for i in range(8):
                a(f"v_rcp_f32 v{T + i}, v{T + i}")
            a("s_nop 0")
            for p in range(4):
                a(f"v_pk_mul_f32 {u[p]}, {u[p]}, {tt[p]}")
            for p in range(4):
                a(f"v_cvt_pk_bf16_f32 v{C + p}, v{C + 8 + 2 * p}, v{C + 9 + 2 * p}")
            so = "s21" if mb == 0 else "s22"
            if t < 4:
                a(f"buffer_store_dwordx4 {vr(C, 4)}, v15, s[40:43], {so} offen offset:{1024 * t} {STH}")
            else:
                if t == 4:
                    a(f"s_add_u32 {so}, {so}, 4096")
                a(f"buffer_store_dwordx4 {vr(C, 4)}, v15, s[40:43], {so} offen offset:{1024 * (t - 4)} {STH}")
    if opt('pf2', 1) == 2:
        pf2(a)
    if opt('rt2', ''):
        f = opt('rt2', '').replace("-", "").replace("+", " ")
        for i in range(opt("pf2n", 4)):
            a(f"s_sub_u32 s23, s23, {1024 * 2048}")
            a(f"buffer_load_dword v{8 + i}, v6, s[48:51], s23 offen {f}")
    stamp(a, 5)
    stamp_flush(a, 2, 8)
    kernel_end(a, name)
    return name, descriptor(name, 256, AF + 8 * DEPTH, 64), (256, 256, G1_STAGE * G1_RING)


G2_STAGE = 16384
G2_RING = opt('r2', 5)


def gen_gemm2(a, DEPTH=opt('d2', 16)):
    name = "gemm2_kernel"
    kernel_begin(a, name, 256)
    a(f"""
    s_load_dwordx4 s[4:7], s[0:1], {KA_WD}
    s_load_dwordx2 s[8:9], s[0:1], {KA_WS}
    v_lshrrev_b32 v1, 6, v0
    v_and_b32 v2, 63, v0
    v_readfirstlane_b32 s17, v1             ; wave
    s_bfe_u32 s18, s2, 0x20001
    s_lshl_b32 s18, s18, 2
    s_lshr_b32 s20, s2, 6
    s_add_u32 s18, s18, s20                 ; mt
    s_and_b32 s19, s2, 1
    s_lshl_b32 s19, s19, 3
    s_bfe_u32 s20, s2, 0x30003
    s_add_u32 s20, s20, {opt('g2rot', 0)}
    s_and_b32 s20, s20, 7
    s_add_u32 s19, s19, s20                 ; nt
    s_lshl_b32 s20, s18, 2
    s_add_u32 s20, s20, s17
    s_mul_i32 s21, s20, {224 * 1024}
    s_add_u32 s21, s21, {WS_HH}
    s_waitcnt lgkmcnt(0)
    s_add_u32 s28, s8, s21
    s_addc_u32 s29, s9, 0
    s_mov_b32 s30, {224 * 1024}
    s_mov_b32 s31, 0x20000
    """)
    srd(a, 24, 4, 3584 * 1024 * 2)
    srd(a, 40, 6, 4 * MB)
    srd(a, 44, 8, 4 * MB, off=WS_H)
    ACC = 32
    HR = 64
    a(f"""
    v_lshrrev_b32 v3, 3, v2
    v_lshlrev_b32 v3, 11, v3
    v_bfe_u32 v4, v2, 4, 1
    v_lshlrev_b32 v4, 2, v4
    v_and_b32 v5, 7, v2
    v_xor_b32 v4, v4, v5
    v_lshl_add_u32 v3, v4, 4, v3
    s_lshl_b32 s21, s19, 7
    s_lshl_b32 s22, s17, 16
    s_add_u32 s21, s21, s22
    v_add_u32 v8, s21, v3
    v_add_u32 v9, {16384 - 1024}, v8
    v_add_u32 v10, {16384 - 1024}, v9
    v_add_u32 v11, {16384 - 1024}, v10
    s_lshl_b32 s33, s17, 12
    v_lshlrev_b32 v15, 4, v2
    """)
    a(f"""
    s_lshl_b32 s21, s20, 16
    s_lshl_b32 s22, s19, 12
    s_add_u32 s21, s21, s22
    """)
    for i in range(4):
        a(f"buffer_load_dwordx4 {vr(HR + 4 * i, 4)}, v15, s[44:47], s21 offen offset:{1024 * i}")
    a(f"""
    v_lshrrev_b32 v3, 5, v2
    v_lshlrev_b32 v3, 3, v3
    v_bfe_u32 v4, v2, 2, 2
    v_add_u32 v3, v3, v4
    v_lshlrev_b32 v16, 7, v3
    v_bfe_u32 v3, v2, 4, 1
    v_lshl_add_u32 v16, v3, 5, v16
    v_and_b32 v3, 1, v2
    v_lshl_add_u32 v16, v3, 4, v16
    v_bfe_u32 v3, v2, 1, 1
    v_lshl_add_u32 v16, v3, 3, v16
    v_bfe_u32 v3, v2, 3, 1
    v_lshl_add_u32 v16, v3, 6, v16
    v_xor_b32 v17, 64, v16
    """)
    WF = [0, 16]
    AF = 32
    dma = [[f"buffer_load_dwordx4 v{8 + i}, s[24:27], s34 offen offset:{1024 * i} {NTW2} lds"] for i in range(4)]
    dma[0].insert(0, "s_mov_b32 m0, s35")

    def wread_ops(buf, sub):
        return [[f"ds_read_b64_tr_b16 {ar(WF[buf] + 8 * kk + 4 * t + 2 * rd, 2)}, v{18 + t} offset:{(32 * sub + 16 * kk + 4 * rd) * 128}"]
                for kk in range(2) for t in range(2) for rd in range(2)]

    def mfmas(buf, af):
        out = []
        for kk in range(2):
            for t in range(2):
                acc = vr(ACC + 16 * t, 16)
                out.append(f"v_mfma_f32_32x32x16_bf16 {acc}, {ar(WF[buf] + 8 * kk + 4 * t, 4)}, {ar(af + 4 * kk, 4)}, {acc}")
        return out

    def addr_update():
        return [["v_add_u32 v18, s37, v16", "v_add_u32 v19, s37, v17"]]

    def init_acc():
        for r in range(32):
            a(f"v_mov_b32 v{ACC + r}, 0")

    gemm_loop(a, "g2", 28, DEPTH, G2_RING, G2_STAGE, 128 * 2048, dma, wread_ops, mfmas, addr_update, AF, init_acc,
              pro_limit=(opt('p2', 0) or None))
    a(f"""
    v_and_b32 v3, 31, v2
    v_lshlrev_b32 v3, 11, v3
    v_lshrrev_b32 v4, 5, v2
    v_lshl_add_u32 v3, v4, 4, v3
    s_lshl_b32 s21, s20, 16
    s_lshl_b32 s22, s19, 7
    s_add_u32 s21, s21, s22
    s_nop 7
    s_nop 7
    """)
    for g in range(4):
        C = ACC + 8 * g
        for p in range(4):
            a(f"v_cvt_pk_bf16_f32 v20, v{C + 2 * p}, v{C + 2 * p + 1}")
            a(f"v_lshlrev_b32 v22, 16, v{HR + 4 * g + p}")
            a(f"v_and_b32 v23, 0xffff0000, v{HR + 4 * g + p}")
            a(f"v_and_b32 v21, 0xffff0000, v20")
            a(f"v_lshlrev_b32 v20, 16, v20")
            a(f"v_pk_add_f32 v[20:21], v[20:21], v[22:23]")
            a(f"v_cvt_pk_bf16_f32 v{HR + 4 * g + p}, v20, v21")
        a(f"buffer_store_dwordx4 {vr(HR + 4 * g, 4)}, v3, s[40:43], s21 offen offset:{32 * g}")
    stamp(a, 5)
    stamp_flush(a, 3, 8)
    kernel_end(a, name)
    return name, descriptor(name, 80, AF + 8 * DEPTH, 64), (256, 256, G2_STAGE * G2_RING)


def gen_enc(a):
    kA, iA, kB, iB, mult = [int(x) for x in opt("enc", "").split(":")]
    name = "enc_kernel"
    a.raw(f".globl {name}")
    a.raw(".p2align 8")
    a.raw(f".type {name},@function")
    a.label(name)
    a(f"""
    s_cmp_ge_u32 s2, 1
    s_cbranch_scc1 L_enc_end
    s_memrealtime s[10:11]
    s_load_dwordx2 s[4:5], s[0:1], {KA_WS}
    s_waitcnt lgkmcnt(0)
    s_add_u32 s4, s4, {PROF_BASE}
    s_addc_u32 s5, s5, 0
    s_mov_b32 s8, {kA * MB + 4 * iA}
    s_mov_b32 s9, {(kB % 9) * MB + 4 * iB}
    s_load_dword s6, s[4:5], s8
    s_load_dword s7, s[4:5], s9
    s_waitcnt lgkmcnt(0)
    """)
    if kB == 9:
        a("s_mov_b32 s7, s10")
    a(f"""
    s_sub_u32 s6, s7, s6
    s_min_u32 s6, s6, {opt("encmax", 10000)}
    s_mul_i32 s6, s6, {mult}
    s_lshr_b32 s6, s6, {opt("encsh", 0)}
    """)
    a.label("L_enc_loop")
    a("""
    s_memrealtime s[12:13]
    s_waitcnt lgkmcnt(0)
    s_sub_u32 s12, s12, s10
    s_cmp_lt_u32 s12, s6
    s_cbranch_scc1 L_enc_loop
    """)
    a.label("L_enc_end")
    a("s_endpgm")
    return name, descriptor(name, 8, 0, 32), (1, 64, 0)


HEADER = open("cdna_kernels/" + NAME + ".s.ref").read().split("; Override launch")[0]


def main():
    out = sys.argv[1] if len(sys.argv) > 1 else f"cdna_kernels/{NAME}.s"
    global PROF
    PROF = "--prof" in sys.argv
    a = Asm()
    ks = [gen_conv2(a) if opt('conv', 2) == 2 else gen_conv(a), gen_ln(a), gen_gemm1(a), gen_gemm2(a)]
    if opt("enc", ""):
        ks.append(gen_enc(a))
    s = HEADER
    for name, _, (g, b, lds) in ks:
        s += f"; @launch kernel={name} grid=({g},1,1) block=({b},1,1) lds={lds}\n"
    s += '.amdgcn_target "amdgcn-amd-amdhsa--gfx950"\n.text\n'
    s += a.text()
    s += '.section .rodata,"a"\n'
    for name, d, _ in ks:
        s += ".p2align 6\n" + d
    open(out, "w").write(s)


if __name__ == "__main__":
    main()
```

```python
import sys
import gen
from gen import *

WS_FL = 28 * MB
WS_X = 30 * MB
OOB = 0x40000000

G1_RING = opt('r1', 3)
G2_RING = opt('r2', 3)
G2_STAGE = 32768
LNB = 131072
FUSED_LDS = LNB + 16384 + 512
SC = "sc1"


class Pipe:
    def __init__(s, a, tag, NST, DEPTH, RING, STAGE, KADV, dma_items, wread_ops, mfmas, addr_update, AF,
                 extra_peel=None, extra_loop=None, loop_top=None):
        s.__dict__.update(locals())
        s.UN = DEPTH // 4
        assert NST % s.UN == 0
        s.LDS = STAGE * RING
        s.nd = len(dma_items)
        base, rem = divmod(s.nd, 4)
        s.split = [base + (1 if i < rem else 0) for i in range(4)]
        s.order = []
        pro = []
        for g in range(-4 * RING - DEPTH, 0):
            pro += s.items_at(g)
        s.pro_w = [x for x in pro if x[0][0] == "W"]
        s.pro_a = [x for x in pro if x[0][0] == "A"]

    def w_item(s, st, i):
        ins = list(s.dma_items[i])
        if i == s.nd - 1:
            ins += [f"s_add_u32 s34, s34, {s.KADV}", f"s_add_u32 s35, s35, {s.STAGE}",
                    f"s_cmp_ge_u32 s35, {s.LDS}", "s_cselect_b32 s35, s33, s35"]
        return (("W", st), ins)

    def a_items(s, idx):
        b = s.AF + 8 * (idx % s.DEPTH)
        return [(("A", idx), [f"buffer_load_dwordx4 {ar(b, 4)}, v15, s[28:31], s36 offen {SC}"]),
                (("A", idx), [f"buffer_load_dwordx4 {ar(b + 4, 4)}, v15, s[28:31], s36 offen offset:1024 {SC}",
                              "s_add_u32 s36, s36, 2048"])]

    def items_at(s, g):
        out = []
        ai = g - 1 + s.DEPTH
        A = s.a_items(ai) if ai >= 0 else []
        ph = (g + 1) % 4
        st = (g + 1) // 4 - 1 + s.RING
        lo = sum(s.split[:ph])
        W = [s.w_item(st, i) for i in range(lo, lo + s.split[ph])] if st >= 0 else []
        while A or W:
            if A:
                out.append(A.pop(0))
            if W:
                out.append(W.pop(0))
        return out

    def emit_ins(s, ins):
        for x in ins:
            s.a(x)
            if " m0," in x:
                s.a("s_nop 0")

    def issue_w(s, n):
        for t, ins in s.pro_w[:n]:
            s.emit_ins(ins)
            s.order.append(t)
        del s.pro_w[:n]

    def cnt_after(s, t):
        idx = max(i for i, x in enumerate(s.order) if x == t)
        return len(s.order) - 1 - idx

    def run(s, pro_a_limit, stamp_i):
        a = s.a
        assert not s.pro_w
        for t, ins in s.pro_a[:pro_a_limit]:
            s.emit_ins(ins)
            s.order.append(t)
        backlog = s.pro_a[pro_a_limit:]
        a(f"s_waitcnt vmcnt({s.cnt_after(('W', 0))})")
        a("s_barrier")
        a("s_mov_b32 s37, 0")
        for op in s.addr_update():
            s.emit_ins(op)
        a(f"s_mov_b32 s37, {s.STAGE}")
        for op in s.wread_ops(0, 0):
            s.emit_ins(op)
        s.body(0, {}, True, backlog)
        assert not backlog
        waits = {}
        saved = list(s.order)
        for it in range(1, s.NST // s.UN):
            s.body(it, waits, False, None)
        assert max(waits.values()) <= 63
        s.order[:] = saved
        stamp(a, stamp_i)
        a(f"s_mov_b32 s38, {s.NST // s.UN - 1}")
        a.raw(".p2align 6")
        a.label(f"L_{s.tag}_loop")
        s.body(1, waits, True, None)
        a("s_sub_u32 s38, s38, 1")
        a("s_cmp_lg_u32 s38, 0")
        a(f"s_cbranch_scc1 L_{s.tag}_loop")

    def body(s, it, waits, emit, backlog):
        a = s.a
        for us in range(s.UN):
            st = it * s.UN + us
            for j in range(4):
                g = 4 * st + j
                buf = g & 1
                wv = s.cnt_after(("A", g))
                if j == 3:
                    assert s.order.count(("W", st + 1)) == s.nd
                    wv = min(wv, s.cnt_after(("W", st + 1)))
                k = 4 * us + j
                waits[k] = min(waits.get(k, 63), wv)
                fill = []
                if j == 3:
                    fill += s.addr_update()
                    fill += s.wread_ops(buf ^ 1, 0)
                    fill.append([f"s_add_u32 s37, s37, {s.STAGE}", f"s_cmp_ge_u32 s37, {s.LDS}",
                                 "s_cselect_b32 s37, 0, s37"])
                else:
                    fill += s.wread_ops(buf ^ 1, j + 1)
                mine = s.items_at(g)
                if backlog is not None:
                    W = [x for x in mine if x[0][0] == "W"]
                    backlog += [x for x in mine if x[0][0] == "A"]
                    left = 4 * s.UN - k
                    take = 2 + 2 * (-(-(len(backlog) - 2) // (2 * left)))
                    A = backlog[:take]
                    del backlog[:take]
                    mine = []
                    while A or W:
                        if A:
                            mine.append(A.pop(0))
                        if W:
                            mine.append(W.pop(0))
                ex = (s.extra_peel if backlog is not None else s.extra_loop) or {}
                if k in ex:
                    mine.append((("P", g), ex[k]))
                vm = [ins for _, ins in mine]
                s.order.extend(t for t, _ in mine)
                if emit:
                    a(f"s_waitcnt vmcnt({waits[k]}) lgkmcnt(0)")
                    if j == 3:
                        a("s_barrier")
                    mf = s.mfmas(buf, s.AF + 8 * (g % s.DEPTH), g == 0)
                    n = len(mf)
                    slots = [[] for _ in range(n)]
                    per = max(2, -(-len(fill) // n))
                    for i, op in enumerate(fill):
                        slots[min(i // per, n - 1)].append(op)
                    for i, op in enumerate(vm):
                        slots[min(n - 1, ((2 * i + 1) * n) // (2 * len(vm)))].append(op)
                    for i, m in enumerate(mf):
                        a(m)
                        for op in slots[i]:
                            s.emit_ins(op)


def poll(a, tag, vaddr, vtmp):
    a("s_mov_b32 s39, 0x8000")
    a.label(f"L_poll_{tag}")
    a(f"""
    buffer_load_dword {vtmp}, {vaddr}, s[48:51], 0 offen sc1
    s_waitcnt vmcnt(0)
    v_cmp_eq_u32 vcc, 0, {vtmp}
    s_nop 1
    s_cmp_eq_u64 vcc, 0
    s_cbranch_scc1 L_polled_{tag}
    s_sleep 1
    s_sub_u32 s39, s39, 1
    s_cmp_lg_u32 s39, 0
    s_cbranch_scc1 L_poll_{tag}
    """)
    a.label(f"L_polled_{tag}")


def signal(a, soff):
    a(f"""
    v_mov_b32 v6, 0
    v_mov_b32 v7, 1
    s_mov_b64 exec, 1
    buffer_store_dword v7, v6, s[48:51], {soff} offen sc1
    s_mov_b64 exec, -1
    """)


def gen_fused(a):
    name = "fused_kernel"
    D1 = opt('d1', 8)
    D2 = opt('d2', 8)
    kernel_begin(a, name, 256)
    R_, O_, T6, T7, T8, RD, WR = 200, 201, 203, 204, 205, 206, 207
    M_, S_ = 208, 209
    QR, XF, ZR, ZF, TM = 32, 48, 80, 96, 128
    a(f"""
    s_load_dwordx2 s[4:5], s[0:1], {KA_Q}
    s_load_dwordx2 s[6:7], s[0:1], {KA_WS}
    s_load_dwordx4 s[60:63], s[0:1], {KA_WG}
    s_load_dwordx4 s[64:67], s[0:1], {KA_WD}
    v_lshrrev_b32 v1, 6, v0
    v_and_b32 v2, 63, v0                    ; lane
    v_readfirstlane_b32 s17, v1             ; wave
    v_and_b32 v{R_}, 7, v2
    v_lshrrev_b32 v{O_}, 3, v2
    v_lshlrev_b32 v15, 4, v2                ; lane*16
    v_lshlrev_b32 v{T6}, 11, v{R_}
    v_lshl_add_u32 v{T6}, v{O_}, 4, v{T6}
    s_lshl_b32 s18, s2, 14
    s_lshl_b32 s19, s17, 12
    s_add_u32 s21, s18, s19                 ; z offset
    s_add_u32 m0, s19, {LNB}
    s_lshl_b32 s19, s17, 9
    s_add_u32 s22, s18, s19                 ; q offset
    s_waitcnt lgkmcnt(0)
    """)
    srd(a, 12, 6, 4 * MB)
    for i in range(4):
        a(f"buffer_load_dwordx4 v15, s[12:15], s21 offen offset:{1024 * i} lds")
    srd(a, 8, 4, 4 * MB)
    for it in range(4):
        a(f"buffer_load_dwordx4 {vr(QR + 4 * it, 4)}, v{T6}, s[8:11], s22 offen offset:{128 * it}")
    a(f"""
    s_lshr_b32 s18, s2, 5                   ; mt
    s_and_b32 s19, s2, 7
    s_lshl_b32 s19, s19, 2
    s_bfe_u32 s20, s2, 0x20003
    s_add_u32 s19, s19, s20                 ; nt
    s_cmp_ge_u32 s17, 2
    s_cselect_b32 s24, s62, s60
    s_cselect_b32 s25, s63, s61
    s_mov_b32 s26, {1024 * 3584 * 2}
    s_mov_b32 s27, 0x20000
    v_and_b32 v18, 7, v2
    v_lshlrev_b32 v19, 7, v18
    v_lshl_add_u32 v19, v{O_}, 11, v19      ; P2 pattern: (l>>3)*2048 + (l&7)*128
    v_min_u32 v18, 6, v18
    v_lshlrev_b32 v18, 7, v18
    v_mul_u32_u24 v3, 7168, v{O_}
    v_add_u32 v18, v18, v3                  ; P1 pattern
    s_lshr_b32 s21, s2, 3
    s_lshl_b32 s21, s21, 4
    s_and_b32 s22, s17, 1
    s_lshl_b32 s23, s22, 3
    s_add_u32 s21, s21, s23
    s_mul_i32 s21, s21, 7168
    s_and_b32 s23, s2, 7
    s_mul_i32 s23, s23, 896
    s_add_u32 s68, s21, s23
    """)
    npf = 0
    if opt("pfa", 1):
        a("buffer_load_dword v20, v18, s[24:27], s68 offen")
        npf = 1
    a(f"s_add_u32 s68, s68, {512 * 7168}")
    srd(a, 20, 6, 4 * MB, off=WS_H)
    srd(a, 44, 6, 4 * MB, off=WS_LN)
    srd(a, 48, 6, 256 * 1024, off=WS_FL)
    srd(a, 52, 64, 3584 * 1024 * 2)
    srd(a, 40, 6, 2048 * 3584 * 2, off=WS_HH)
    a(f"""
    s_lshl_b32 s16, s18, 2
    s_add_u32 s16, s16, s17                 ; m64 block
    s_lshl_b32 s32, s16, 17
    s_add_u32 s32, s32, {WS_LN}
    s_add_u32 s28, s6, s32
    s_addc_u32 s29, s7, 0
    s_mov_b32 s30, 131072
    s_mov_b32 s31, 0x20000
    s_mul_i32 s32, s19, 224
    s_and_b32 s33, s17, 1
    s_mul_i32 s34, s33, {32 * 7168}
    s_add_u32 s32, s32, s34
    s_mov_b32 s34, {(1 << 20) // 14 + 1}
    s_movk_i32 s35, 7168
    """)
    for i in range(7):
        a(f"""
        v_add_u32 v3, {64 * i}, v2
        v_mul_lo_u32 v4, v3, s34
        v_lshrrev_b32 v4, 20, v4
        v_mul_u32_u24 v5, 14, v4
        v_sub_u32 v5, v3, v5
        v_mul_lo_u32 v4, v4, s35
        v_lshl_add_u32 v4, v5, 4, v4
        v_add_u32 v4, s32, v4
        v_subrev_u32 v{8 + i}, {1024 * (i % 4)}, v4
        """)
    a(f"""
    s_mul_i32 s34, s33, 7168
    s_lshr_b32 s33, s17, 1
    s_mul_i32 s33, s33, {G1_UPOFF}
    s_add_u32 s33, s33, s34
    v_bfe_u32 v3, v2, 4, 1
    v_mul_u32_u24 v16, {G1_UPOFF}, v3
    v_lshrrev_b32 v3, 5, v2
    v_lshlrev_b32 v3, 3, v3
    v_bfe_u32 v4, v2, 2, 2
    v_add_u32 v3, v3, v4
    v_mul_u32_u24 v3, 224, v3
    v_add_u32 v16, v16, v3
    v_and_b32 v3, 1, v2
    v_lshl_add_u32 v16, v3, 4, v16
    v_bfe_u32 v3, v2, 1, 1
    v_lshl_add_u32 v16, v3, 3, v16
    s_mov_b32 s34, 0
    s_mov_b32 s35, s33
    s_mov_b32 s36, 0
    """)
    a(f"""
    s_bfe_u32 s70, s2, 0x10002              ; kh
    s_bfe_u32 s71, s2, 0x10001
    s_lshl_b32 s71, s71, 3
    s_lshr_b32 s72, s2, 5
    s_add_u32 s71, s71, s72                 ; mt2
    s_and_b32 s72, s2, 1
    s_lshl_b32 s73, s72, 10
    s_lshl_b32 s72, s72, 2
    s_bfe_u32 s74, s2, 0x20003
    s_add_u32 s72, s72, s74                 ; nt2
    s_mul_i32 s74, s70, 1792
    s_lshl_b32 s75, s17, 8
    s_add_u32 s74, s74, s75
    s_lshr_b32 s75, s2, 3
    s_lshl_b32 s75, s75, 3
    s_add_u32 s74, s74, s75
    s_lshl_b32 s74, s74, 11
    s_add_u32 s74, s74, s73
    s_add_u32 s75, s74, {1024 * 2048}       ; round 1
    s_cmp_eq_u32 s17, 3
    s_cselect_b32 s75, {OOB}, s75
    """)
    ACC = 32
    WF = [0, 28]
    AF = 56
    dma = [[f"buffer_load_dwordx4 v{8 + i}, s[24:27], s34 offen offset:{1024 * (i & 3)} lds"] for i in range(7)]
    dma[0].insert(0, "s_mov_b32 m0, s35")
    dma[4].insert(0, "s_add_u32 m0, s35, 4096")

    def wread1(buf, sub):
        return [[f"ds_read_b64_tr_b16 {ar(WF[buf] + 4 * t + 2 * rd, 2)}, v17 offset:{(16 * sub + 4 * rd) * 224 + 32 * t}"]
                for t in range(7) for rd in range(2)]

    def mfmas1(buf, af, first):
        out = []
        for t in range(7):
            for mb in range(2):
                acc = vr(ACC + 16 * (2 * t + mb), 16)
                out.append(f"v_mfma_f32_32x32x16_bf16 {acc}, {ar(WF[buf] + 4 * t, 4)}, {ar(af + 4 * mb, 4)}, {'0' if first else acc}")
        return out

    nit1 = 16 // (D1 // 4)
    pa, pb = opt("p2a", nit1 // 2), opt("p2b", nit1 // 2 - 1)
    p1 = Pipe(a, "g1", 16, D1, G1_RING, G1_STAGE, 64 * 7168, dma, wread1, mfmas1,
              lambda: [["v_add_u32 v17, s37, v16"]], AF,
              extra_peel={D1 - 2: ["buffer_load_dword v20, v18, s[24:27], s68 offen"]} if opt("pfb", 1) else None,
              extra_loop={1: [f"s_cmp_eq_u32 s38, {pa}", f"s_cselect_b32 s39, s74, {OOB}",
                              f"s_cmp_eq_u32 s38, {pb}", "s_cselect_b32 s39, s75, s39",
                              "buffer_load_dword v20, v19, s[52:55], s39 offen"]} if opt("pfc", 1) else None)
    a(f"""
    v_lshrrev_b32 v{T7}, 4, v2
    v_lshlrev_b32 v{T7}, 8, v{T7}
    v_bfe_u32 v{T8}, v2, 1, 1
    v_lshl_add_u32 v{T7}, v{T8}, 7, v{T7}
    v_bfe_u32 v{T8}, v2, 2, 2
    v_lshl_add_u32 v{T7}, v{T8}, 4, v{T7}
    v_and_b32 v{T8}, 1, v2
    v_lshl_add_u32 v{T7}, v{T8}, 3, v{T7}
    s_lshl_b32 s76, s17, 12
    s_add_u32 s76, s76, {LNB}
    v_add_u32 v{T7}, s76, v{T7}
    v_lshlrev_b32 v{RD}, 5, v{R_}
    v_add_u32 v{RD}, {LNB + 16384}, v{RD}
    s_lshl_b32 s76, s17, 3
    v_add_u32 v{WR}, s76, v{RD}
    s_waitcnt vmcnt({npf})
    """)
    stamp(a, 2)
    for it in range(4):
        for half in range(2):
            a(f"ds_read_b64_tr_b16 {vr(ZR + 4 * it + 2 * half, 2)}, v{T7} offset:{it * 1024 + half * 64}")
    for i in range(16):
        a(f"v_lshlrev_b32 v{XF + 2 * i}, 16, v{QR + i}")
        a(f"v_and_b32 v{XF + 2 * i + 1}, 0xffff0000, v{QR + i}")

    def stats(src, rnd):
        s0, s1 = vr(TM, 2), vr(TM + 2, 2)
        a(f"v_pk_add_f32 {s0}, {vr(src, 2)}, {vr(src + 2, 2)}")
        a(f"v_pk_mul_f32 {s1}, {vr(src, 2)}, {vr(src, 2)}")
        a(f"v_pk_fma_f32 {s1}, {vr(src + 2, 2)}, {vr(src + 2, 2)}, {s1}")
        for i in range(2, 16):
            a(f"v_pk_add_f32 {s0}, {s0}, {vr(src + 2 * i, 2)}")
            a(f"v_pk_fma_f32 {s1}, {vr(src + 2 * i, 2)}, {vr(src + 2 * i, 2)}, {s1}")
        m, s, m2, s2 = f"v{M_}", f"v{S_}", f"v{M_ + 2}", f"v{M_ + 3}"
        a(f"""
        v_add_f32 {m}, v{TM}, v{TM + 1}
        v_add_f32 {s}, v{TM + 2}, v{TM + 3}
        s_nop 1
        v_add_f32_dpp {m}, {m}, {m} row_ror:8 row_mask:0xf bank_mask:0xf
        v_add_f32_dpp {s}, {s}, {s} row_ror:8 row_mask:0xf bank_mask:0xf
        v_mov_b32 {m2}, {m}
        v_mov_b32 {s2}, {s}
        s_nop 1
        v_permlane16_swap_b32 {m}, {m2}
        v_permlane16_swap_b32 {s}, {s2}
        s_nop 1
        v_add_f32 {m}, {m}, {m2}
        v_add_f32 {s}, {s}, {s2}
        v_mov_b32 {m2}, {m}
        v_mov_b32 {s2}, {s}
        s_nop 1
        v_permlane32_swap_b32 {m}, {m2}
        v_permlane32_swap_b32 {s}, {s2}
        s_nop 1
        v_add_f32 {m}, {m}, {m2}
        v_add_f32 {s}, {s}, {s2}
        ds_write_b64 v{WR}, {vr(M_, 2)} offset:{256 * rnd}
        s_waitcnt lgkmcnt(0)
        s_barrier
        ds_read_b128 {vr(TM, 4)}, v{RD} offset:{256 * rnd}
        ds_read_b128 {vr(TM + 4, 4)}, v{RD} offset:{256 * rnd + 16}
        s_waitcnt lgkmcnt(0)
        v_pk_add_f32 {s0}, {s0}, {s1}
        v_pk_add_f32 {vr(TM + 4, 2)}, {vr(TM + 4, 2)}, {vr(TM + 6, 2)}
        v_pk_add_f32 {s0}, {s0}, {vr(TM + 4, 2)}
        v_mul_f32 {m}, {hex(f32bits(1.0 / 1024))}, v{TM}
        v_mul_f32 {s}, {hex(f32bits(1.0 / 1024))}, v{TM + 1}
        v_fma_f32 {s}, -{m}, {m}, {s}
        v_max_f32 {s}, 0, {s}
        """)
        bf16_round(a, m)
        bf16_round(a, s)
        a(f"v_add_f32 {s}, {hex(f32bits(1e-5))}, {s}")
        bf16_round(a, s)
        a(f"v_sqrt_f32 {s}, {s}")
        a("s_nop 0")
        bf16_round(a, s)
        a(f"v_rcp_f32 {s}, {s}")
        a("s_nop 0")
        a(f"v_mul_f32 {m2}, {m}, {s}")
        a(f"v_sub_f32 {m2}, 0, {m2}")
        a(f"v_mov_b32 {s2}, {m2}")
        a(f"v_mov_b32 {m}, {s}")

    stats(XF, 0)
    p1.issue_w(7)
    for i in range(16):
        a(f"v_lshlrev_b32 v{ZF + 2 * i}, 16, v{ZR + i}")
        a(f"v_and_b32 v{ZF + 2 * i + 1}, 0xffff0000, v{ZR + i}")
    for i in range(16):
        x = vr(XF + 2 * i, 2)
        z = vr(ZF + 2 * i, 2)
        a(f"v_pk_fma_f32 {vr(TM, 2)}, {x}, {vr(M_, 2)}, {vr(M_ + 2, 2)}")
        a(f"v_pk_fma_f32 {z}, {vr(TM, 2)}, {z}, {x}")
        a(f"v_cvt_pk_bf16_f32 v{QR + i}, v{ZF + 2 * i}, v{ZF + 2 * i + 1}")
    a(f"""
    v_lshlrev_b32 v{T6}, 9, v{O_}
    v_lshl_add_u32 v{T6}, v{R_}, 4, v{T6}
    s_lshr_b32 s76, s2, 2
    s_lshl_b32 s76, s76, 16
    s_and_b32 s77, s2, 3
    s_lshl_b32 s77, s77, 7
    s_add_u32 s76, s76, s77
    s_lshl_b32 s77, s17, 14
    s_add_u32 s76, s76, s77
    """)
    for it in range(4):
        a(f"buffer_store_dwordx4 {vr(QR + 4 * it, 4)}, v{T6}, s[20:23], s76 offen sc1")
        if it < 3:
            a("s_add_u32 s76, s76, 4096")
    for i in range(16):
        a(f"v_lshlrev_b32 v{XF + 2 * i}, 16, v{QR + i}")
        a(f"v_and_b32 v{XF + 2 * i + 1}, 0xffff0000, v{QR + i}")
    p1.issue_w(opt("w1early", 0))
    stats(XF, 1)
    for i in range(16):
        x = vr(XF + 2 * i, 2)
        a(f"v_pk_fma_f32 {x}, {x}, {vr(M_, 2)}, {vr(M_ + 2, 2)}")
        a(f"v_cvt_pk_bf16_f32 v{ZR + i}, v{XF + 2 * i}, v{XF + 2 * i + 1}")
    a(f"""
    v_lshrrev_b32 v{T6}, 1, v{O_}
    v_lshlrev_b32 v{T6}, 11, v{T6}
    v_and_b32 v{T7}, 1, v{O_}
    v_lshl_add_u32 v{T6}, v{T7}, 9, v{T6}
    v_lshl_add_u32 v{T6}, v{R_}, 4, v{T6}
    s_lshr_b32 s76, s2, 3
    s_lshl_b32 s76, s76, 17
    s_bfe_u32 s77, s2, 0x10002
    s_lshl_b32 s77, s77, 10
    s_add_u32 s76, s76, s77
    s_and_b32 s77, s2, 3
    s_lshl_b32 s77, s77, 7
    s_add_u32 s76, s76, s77
    s_lshl_b32 s77, s17, 15
    s_add_u32 s76, s76, s77
    """)
    for it in range(4):
        a(f"buffer_store_dwordx4 {vr(ZR + 4 * it, 4)}, v{T6}, s[44:47], s76 offen sc1")
        if it < 3:
            a("s_add_u32 s76, s76, 8192")
    a(f"""
    s_lshl_b32 s76, s16, 3
    v_add_u32 v21, s76, v{R_}
    v_lshlrev_b32 v21, 10, v21
    s_lshl_b32 s77, s2, 10
    s_waitcnt vmcnt(0)
    s_barrier
    s_cmp_lg_u32 s17, 0
    s_cbranch_scc1 L_nosig1
    """)
    signal(a, "s77")
    a.label("L_nosig1")
    stamp(a, 3)
    p1.issue_w(len(p1.pro_w))
    poll(a, "f1", "v21", "v22")
    stamp(a, 4)
    p1.run(opt("a1", 6), 5)
    stamp(a, 6)
    a(f"""
    s_waitcnt vmcnt(0) lgkmcnt(0)
    s_barrier
    v_lshrrev_b32 v3, 4, v2
    v_lshlrev_b32 v4, 2, v3
    v_and_b32 v5, 15, v2
    v_xor_b32 v4, v4, v5
    v_lshlrev_b32 v4, 4, v4
    v_lshl_add_u32 v4, v3, 11, v4
    s_lshl_b32 s76, s72, 8
    s_lshl_b32 s77, s17, 16
    s_add_u32 s76, s76, s77
    v_add_u32 v8, s76, v4
    v_add_u32 v9, {8192 - 1024}, v8
    v_add_u32 v10, {8192 - 1024}, v9
    v_add_u32 v11, {8192 - 1024}, v10
    v_add_u32 v12, 32768, v8
    v_add_u32 v13, 32768, v9
    v_add_u32 v14, 32768, v10
    v_add_u32 v3, 32768, v11
    s_lshl_b32 s33, s17, 13
    s_mul_i32 s34, s70, {1792 * 2048}
    s_add_u32 s54, s34, {1792 * 2048}
    s_mov_b32 s35, s33
    s_mov_b32 s36, 0
    """)
    dv = [8, 9, 10, 11, 12, 13, 14, 3]
    dma2 = [[f"buffer_load_dwordx4 v{dv[i]}, s[52:55], s34 offen offset:{1024 * (i & 3)} lds"] for i in range(8)]
    dma2[0].insert(0, "s_mov_b32 m0, s35")
    dma2[4].insert(0, "s_add_u32 m0, s35, 4096")
    WF2 = [0, 32]
    AF2 = 64

    def wread2(buf, sub):
        return [[f"ds_read_b64_tr_b16 {ar(WF2[buf] + 16 * kk + 4 * t + 2 * rd, 2)}, v{25 + t} offset:{(32 * sub + 16 * kk + 4 * rd) * 256}"]
                for kk in range(2) for t in range(4) for rd in range(2)]

    def mfmas2(buf, af, first):
        out = []
        for kk in range(2):
            for t in range(4):
                acc = vr(ACC + 16 * t, 16)
                c = "0" if (first and kk == 0) else acc
                out.append(f"v_mfma_f32_32x32x16_bf16 {acc}, {ar(WF2[buf] + 16 * kk + 4 * t, 4)}, {ar(af + 4 * kk, 4)}, {c}")
        return out

    def addr2():
        return [["v_add_u32 v25, s37, v24", "v_xor_b32 v26, 64, v25"], ["v_xor_b32 v27, 128, v25", "v_xor_b32 v28, 192, v25"]]

    p2 = Pipe(a, "g2", 14, D2, G2_RING, G2_STAGE, 128 * 2048, dma2, wread2, mfmas2, addr2, AF2)
    c = 0.7978845608028654
    k0 = -2.0 * c * 1.4426950408889634
    k1 = k0 * 0.044715
    a(f"""
    s_mov_b32 s44, {hex(f32bits(k1))}
    s_mov_b32 s45, {hex(f32bits(k1))}
    v_mov_b32 v4, {hex(f32bits(k0))}
    v_mov_b32 v5, {hex(f32bits(k0))}
    s_lshl_b32 s76, s16, 1
    s_mul_i32 s76, s76, {224 * 1024}
    s_mul_i32 s77, s19, {7 * 1024}
    s_add_u32 s76, s76, s77
    s_add_u32 s77, s76, {224 * 1024}
    """)
    T = 16
    for t in range(7):
        for mb in range(2):
            C = ACC + 16 * (2 * t + mb)
            g = [vr(C + 2 * p, 2) for p in range(4)]
            u = [vr(C + 8 + 2 * p, 2) for p in range(4)]
            tt = [vr(T + 2 * p, 2) for p in range(4)]
            for p in range(4):
                a(f"v_pk_mul_f32 {tt[p]}, {g[p]}, {g[p]}")
            for p in range(4):
                a(f"v_pk_fma_f32 {tt[p]}, {tt[p]}, s[44:45], v[4:5]")
            for p in range(4):
                a(f"v_pk_mul_f32 {tt[p]}, {tt[p]}, {g[p]}")
            for i in range(8):
                a(f"v_exp_f32 v{T + i}, v{T + i}")
            for p in range(4):
                a(f"v_pk_mul_f32 {u[p]}, {u[p]}, {g[p]}")
            for p in range(4):
                a(f"v_pk_add_f32 {tt[p]}, {tt[p]}, 1.0 op_sel_hi:[1,0]")
            for i in range(8):
                a(f"v_rcp_f32 v{T + i}, v{T + i}")
            a("s_nop 0")
            for p in range(4):
                a(f"v_pk_mul_f32 {u[p]}, {u[p]}, {tt[p]}")
            for p in range(4):
                a(f"v_cvt_pk_bf16_f32 v{C + p}, v{C + 8 + 2 * p}, v{C + 9 + 2 * p}")
            so = "s76" if mb == 0 else "s77"
            if t == 4:
                a(f"s_add_u32 {so}, {so}, 4096")
            a(f"buffer_store_dwordx4 {vr(C, 4)}, v15, s[40:43], {so} offen offset:{1024 * (t & 3)} sc1")
            if 2 * t + mb < 11:
                p2.issue_w(min(2, len(p2.pro_w)))
    p2.issue_w(len(p2.pro_w))
    a(f"""
    s_lshl_b32 s16, s71, 2
    s_add_u32 s16, s16, s17
    s_mul_i32 s76, s16, {224 * 1024}
    s_mul_i32 s77, s70, {112 * 1024}
    s_add_u32 s76, s76, s77
    s_add_u32 s76, s76, {WS_HH}
    s_add_u32 s28, s6, s76
    s_addc_u32 s29, s7, 0
    s_mov_b32 s30, {112 * 1024}
    v_lshrrev_b32 v4, 5, v2
    v_lshlrev_b32 v4, 3, v4
    v_bfe_u32 v5, v2, 2, 2                  ; rho
    v_add_u32 v4, v4, v5
    v_lshlrev_b32 v24, 8, v4
    v_lshl_add_u32 v24, v5, 6, v24
    v_bfe_u32 v4, v2, 4, 1
    v_lshl_add_u32 v24, v4, 5, v24
    v_and_b32 v4, 1, v2
    v_lshl_add_u32 v24, v4, 4, v24
    v_bfe_u32 v4, v2, 1, 1
    v_lshl_add_u32 v24, v4, 3, v24
    s_lshl_b32 s76, s70, 7
    v_xor_b32 v24, s76, v24
    s_lshr_b32 s76, s71, 1
    s_lshl_b32 s76, s76, 5
    s_lshl_b32 s77, s70, 2
    s_add_u32 s76, s76, s77
    s_lshl_b32 s76, s76, 10
    s_bfe_u32 s77, s16, 0x20001
    s_add_u32 s77, s77, 1
    s_lshl_b32 s77, s77, 6
    s_add_u32 s76, s76, s77
    v_lshlrev_b32 v21, 3, v5                ; 8*j
    v_and_b32 v4, 3, v2
    v_add_u32 v21, v21, v4
    v_lshlrev_b32 v21, 10, v21
    v_add_u32 v21, s76, v21
    s_lshl_b32 s77, s2, 10
    s_lshl_b32 s76, s17, 6
    s_add_u32 s77, s77, s76
    s_add_u32 s77, s77, 64
    s_waitcnt vmcnt(0)
    """)
    signal(a, "s77")
    stamp(a, 7)
    poll(a, "f2", "v21", "v22")
    stamp(a, 8)
    HR = 96
    a(f"""
    s_lshl_b32 s76, s16, 16
    s_lshl_b32 s78, s72, 13
    s_add_u32 s76, s76, s78
    s_lshl_b32 s78, s70, 12
    s_add_u32 s76, s76, s78
    """)
    res = [f"buffer_load_dwordx4 {vr(HR + 4 * i, 4)}, v15, s[20:23], s76 offen offset:{1024 * i} sc1" for i in range(4)]
    p2.extra_peel = {4 + i: [res[i]] for i in range(4)}
    p2.run(opt("a2", 8), 9)
    stamp(a, 10)
    srd(a, 56, 6, 8 * MB, off=WS_X)
    srd(a, 40, 66, 4 * MB)
    a(f"""
    s_lshl_b32 s76, s2, 2
    s_add_u32 s76, s76, s17
    s_lshl_b32 s76, s76, 13
    s_xor_b32 s78, s76, {4 << 15}           ; partner's
    s_add_u32 s79, s76, 4096
    s_add_u32 s77, s77, 256
    s_xor_b32 s39, s77, {4 << 10}
    v_mov_b32 v21, s39
    s_nop 7
    """)
    for i in range(8):
        a(f"buffer_store_dwordx4 {vr(ACC + 32 + 4 * i, 4)}, v15, s[56:59], {'s76' if i < 4 else 's79'} offen offset:{1024 * (i & 3)} sc1")
    a(f"""
    v_and_b32 v3, 31, v2
    v_lshlrev_b32 v3, 11, v3
    v_lshrrev_b32 v4, 5, v2
    v_lshl_add_u32 v3, v4, 4, v3
    s_lshl_b32 s76, s16, 16
    s_lshl_b32 s79, s72, 8
    s_add_u32 s76, s76, s79
    s_lshl_b32 s79, s70, 7
    s_add_u32 s76, s76, s79
    s_add_u32 s79, s78, 4096
    s_waitcnt vmcnt(0)
    """)
    signal(a, "s77")
    poll(a, "f3", "v21", "v22")
    stamp(a, 11)
    XR = 128
    for i in range(8):
        a(f"buffer_load_dwordx4 {vr(XR + 4 * i, 4)}, v15, s[56:59], {'s78' if i < 4 else 's79'} offen offset:{1024 * (i & 3)} sc1")
    for g in range(4):
        C = ACC + 8 * g
        a(f"s_waitcnt vmcnt({6 - 2 * g + g})")
        for p in range(4):
            a(f"v_pk_add_f32 {vr(C + 2 * p, 2)}, {vr(C + 2 * p, 2)}, {vr(XR + 8 * g + 2 * p, 2)}")
        for p in range(4):
            a(f"v_cvt_pk_bf16_f32 v20, v{C + 2 * p}, v{C + 2 * p + 1}")
            a(f"v_lshlrev_b32 v22, 16, v{HR + 4 * g + p}")
            a(f"v_and_b32 v23, 0xffff0000, v{HR + 4 * g + p}")
            a(f"v_and_b32 v21, 0xffff0000, v20")
            a(f"v_lshlrev_b32 v20, 16, v20")
            a(f"v_pk_add_f32 v[20:21], v[20:21], v[22:23]")
            a(f"v_cvt_pk_bf16_f32 v{HR + 4 * g + p}, v20, v21")
        a(f"buffer_store_dwordx4 {vr(HR + 4 * g, 4)}, v3, s[40:43], s76 offen offset:{32 * g}")
    stamp_flush(a, 1, 14)
    kernel_end(a, name)
    nag = max(AF + 8 * D1, AF2 + 8 * D2)
    return name, descriptor(name, 256, nag, 80), (256, 256, FUSED_LDS)


def main():
    out = sys.argv[1] if len(sys.argv) > 1 else f"cdna_kernels/{NAME}.s"
    gen.PROF = "--prof" in sys.argv
    a = Asm()
    ks = [gen_conv2(a), gen_fused(a)]
    if opt("enc", ""):
        ks.append(gen_enc(a))
    s = HEADER
    for name, _, (g, b, lds) in ks:
        s += f"; @launch kernel={name} grid=({g},1,1) block=({b},1,1) lds={lds}\n"
    s += '.amdgcn_target "amdgcn-amd-amdhsa--gfx950"\n.text\n'
    s += a.text()
    s += '.section .rodata,"a"\n'
    for name, d, _ in ks:
        s += ".p2align 6\n" + d
    open(out, "w").write(s)


if __name__ == "__main__":
    main()
```

```python
import sys
import gen
from gen import *

WS_FL = 28 * MB
WS_X = 30 * MB
OOB = 0x40000000
WS_KV = 40 * MB
T_BASE = Z_BASE

TT = opt('tt', 4)
G1_RING = TT + 1
G2_RING = 5
G2_STAGE = 32768
LNB = max(131072, G1_RING * 28800)
FUSED_LDS = 163840
SC = "sc1"


class Pipe:
    def __init__(s, a, tag, NST, DEPTH, RING, STAGE, KADV, dma_items, wread_ops, mfmas, addr_update, AF,
                 extra_peel=None, extra_loop=None, LA=None, slot0=0, order=None):
        s.__dict__.update(locals())
        s.UN = DEPTH // 4
        assert NST % s.UN == 0
        s.LDS = STAGE * RING
        s.nd = len(dma_items)
        base, rem = divmod(s.nd, 4)
        s.split = [base + (1 if i < rem else 0) for i in range(4)]
        s.order = order if order is not None else []
        s.LA = LA or RING
        s.valu_peel = []
        s.valu_n = 4
        s.post_pro = []
        s.force = {}
        s.pre_fill = {}
        pro = []
        for g in range(-4 * RING - DEPTH, 0):
            pro += s.items_at(g)
        s.pro_w = [x for x in pro if x[0][0] == "W"]
        s.pro_a = [x for x in pro if x[0][0] == "A"]

    def w_item(s, st, i):
        ins = list(s.dma_items[i])
        if i == s.nd - 1:
            ins += (s.KADV(st) if callable(s.KADV) else [f"s_add_u32 s34, s34, {s.KADV}"])
            ins += [f"s_add_u32 s35, s35, {s.STAGE}",
                    f"s_cmp_ge_u32 s35, {s.LDS}", "s_cselect_b32 s35, s33, s35"]
        return (("W", st), ins)

    def a_items(s, idx):
        b = s.AF + 8 * (idx % s.DEPTH)
        return [(("A", idx), [f"buffer_load_dwordx4 {ar(b, 4)}, v15, s[28:31], s36 offen {SC}"]),
                (("A", idx), [f"buffer_load_dwordx4 {ar(b + 4, 4)}, v15, s[28:31], s36 offen offset:1024 {SC}",
                              "s_add_u32 s36, s36, 2048"])]

    def items_at(s, g):
        out = []
        ai = g - 1 + s.DEPTH
        A = s.a_items(ai) if ai >= 0 else []
        ph = (g + 1) % 4
        st = (g + 1) // 4 - 1 + s.LA
        lo = sum(s.split[:ph])
        W = [s.w_item(st, i) for i in range(lo, lo + s.split[ph])] if st >= 0 else []
        while A or W:
            if A:
                out.append(A.pop(0))
            if W:
                out.append(W.pop(0))
        return out

    def emit_ins(s, ins):
        for x in ins:
            if x.endswith(":"):
                s.a.label(x[:-1])
                continue
            s.a(x)
            if " m0," in x:
                s.a("s_nop 0")

    def issue_w(s, n):
        for t, ins in s.pro_w[:n]:
            s.emit_ins(ins)
            s.order.append(t)
        del s.pro_w[:n]

    def cnt_after(s, t):
        idx = max(i for i, x in enumerate(s.order) if x == t)
        return len(s.order) - 1 - idx

    def run(s, pro_a_limit, stamp_i, tail=False, start_sync=True):
        a = s.a
        assert not s.pro_w
        for t, ins in s.pro_a[:pro_a_limit]:
            s.emit_ins(ins)
            s.order.append(t)
        backlog = s.pro_a[pro_a_limit:]
        for t, ins in s.post_pro:
            s.emit_ins(ins)
            s.order.append(t)
        if start_sync:
            a(f"s_waitcnt vmcnt({s.cnt_after(('W', 0))})")
            a("s_barrier")
        a(f"s_mov_b32 s37, {s.slot0 * s.STAGE}")
        for op in s.addr_update():
            s.emit_ins(op)
        a(f"s_mov_b32 s37, {((s.slot0 + 1) % s.RING) * s.STAGE}")
        for op in s.wread_ops(0, 0):
            s.emit_ins(op)
        s.body(0, {}, True, backlog)
        assert not backlog
        waits = {}
        saved = list(s.order)
        nit = s.NST // s.UN - (1 if tail else 0)
        for it in range(1, nit):
            s.body(it, waits, False, None)
        assert max(waits.values()) <= 63
        final = list(s.order)
        s.order[:] = saved
        stamp(a, stamp_i)
        a(f"s_mov_b32 s38, {nit - 1}")
        a.raw(".p2align 6")
        a.label(f"L_{s.tag}_loop")
        s.body(1, waits, True, None)
        a("s_sub_u32 s38, s38, 1")
        a("s_cmp_lg_u32 s38, 0")
        a(f"s_cbranch_scc1 L_{s.tag}_loop")
        s.order[:] = final

    def body(s, it, waits, emit, backlog):
        a = s.a
        for us in range(s.UN):
            st = it * s.UN + us
            for j in range(4):
                g = 4 * st + j
                buf = g & 1
                wv = s.cnt_after(("A", g))
                if j == 3:
                    assert s.order.count(("W", st + 1)) == s.nd
                    wv = min(wv, s.cnt_after(("W", st + 1)))
                k = 4 * us + j
                if backlog is not None and k in s.force:
                    wv = min(wv, s.cnt_after(s.force[k]))
                waits[k] = min(waits.get(k, 63), wv)
                fill = []
                if backlog is None:
                    fill += s.pre_fill.get(k, [])
                if j == 3:
                    fill += s.addr_update()
                    fill += s.wread_ops(buf ^ 1, 0)
                    fill.append([f"s_add_u32 s37, s37, {s.STAGE}", f"s_cmp_ge_u32 s37, {s.LDS}",
                                 "s_cselect_b32 s37, 0, s37"])
                else:
                    fill += s.wread_ops(buf ^ 1, j + 1)
                mine = s.items_at(g)
                if backlog is not None:
                    W = [x for x in mine if x[0][0] == "W"]
                    backlog += [x for x in mine if x[0][0] == "A"]
                    left = 4 * s.UN - k
                    take = 2 + 2 * (-(-(len(backlog) - 2) // (2 * left)))
                    A = backlog[:take]
                    del backlog[:take]
                    mine = []
                    while A or W:
                        if A:
                            mine.append(A.pop(0))
                        if W:
                            mine.append(W.pop(0))
                ex = (s.extra_peel if backlog is not None else s.extra_loop) or {}
                for e in ex.get(k, []):
                    mine.append((("P", g), e))
                vm = [ins for _, ins in mine]
                s.order.extend(t for t, _ in mine)
                if emit:
                    assert s.LA < s.RING
                    a(f"s_waitcnt vmcnt({waits[k]}) lgkmcnt(8)")
                    if j == 3:
                        a("s_barrier")
                    nds = 0
                    mf = s.mfmas(buf, s.AF + 8 * (g % s.DEPTH), g == 0)
                    n = len(mf)
                    slots = [[] for _ in range(n)]
                    di = 0
                    for op in fill:
                        if op[0].startswith("ds_"):
                            slots[min(di // 2, n - 1)].append(op)
                            di += 1
                        else:
                            slots[0 if di == 0 else n - 1].append(op)
                    for i, op in enumerate(vm):
                        slots[min(n - 1, ((2 * i + 1) * n) // (2 * len(vm)))].append(op)
                    for i, m in enumerate(mf):
                        if i == n // 2:
                            a(f"s_waitcnt lgkmcnt({nds})")
                        a(m)
                        for op in slots[i]:
                            s.emit_ins(op)
                            nds += sum(1 for x in op if x.startswith("ds_"))
                        if backlog is not None and s.valu_peel:
                            gaps_left = (s.valu_n - k) * n - i
                            for _ in range(-(-len(s.valu_peel) // gaps_left)):
                                a(s.valu_peel.pop(0))


def poll(a, tag, vaddr, vtmp, need="1", srdr="s[48:51]"):
    a("s_mov_b32 s39, 0x8000")
    a.label(f"L_poll_{tag}")
    a(f"""
    buffer_load_dword {vtmp}, {vaddr}, {srdr}, 0 offen sc1
    s_waitcnt vmcnt(0)
    v_cmp_gt_u32 vcc, {need}, {vtmp}
    s_nop 1
    s_cmp_eq_u64 vcc, 0
    s_cbranch_scc1 L_polled_{tag}
    s_sleep 1
    s_sub_u32 s39, s39, 1
    s_cmp_lg_u32 s39, 0
    s_cbranch_scc1 L_poll_{tag}
    """)
    a.label(f"L_polled_{tag}")


def signal_ins(soff, val=1):
    return ["v_mov_b32 v0, 0", f"v_mov_b32 v1, {val}", "s_mov_b64 exec, 1",
            f"buffer_store_dword v1, v0, s[48:51], {soff} offen sc1", "s_mov_b64 exec, -1"]


def signal(a, soff, val=1):
    for x in signal_ins(soff, val):
        a(x)


def gen_fused(a):
    name = NAME + "_kernel"
    PM = opt("pm", 0)
    _stamp = gen.stamp

    def stamp(a, i, mode=0):
        if mode == PM:
            _stamp(a, i)
    D1 = 4 * TT
    D2 = opt('d2', 8)
    kernel_begin(a, name, 256)
    R_, O_, T6, T7, T8, RD, WR = 200, 201, 203, 204, 205, 206, 207
    M_, S_ = 208, 209
    QR, XF, ZR, ZF, TM = 212, 128, 80, 96, 160
    ACC = 32
    WF = [0, 28]
    AF = 56
    R1 = G1_RING
    order = []

    def cnt(t):
        idx = max(i for i, x in enumerate(order) if x == t)
        n = len(order) - 1 - idx
        return min(n, 63)

    def slot1(st):
        return ((st - (15 - TT) + R1 - 1) % R1) * G1_STAGE

    def emit(ins):
        for x in ins:
            if x.endswith(":"):
                a.label(x[:-1])
                continue
            a(x)
            if " m0," in x:
                a("s_nop 0")

    def w_item(st, i):
        ins = []
        if i == 0:
            ins += [f"s_mov_b32 s34, {st * 64 * 7168}", f"s_add_u32 m0, s33, {slot1(st)}"]
        if i == 4:
            ins += [f"s_add_u32 m0, s33, {slot1(st) + 4096}"]
        ins.append(f"buffer_load_dwordx4 v{8 + i}, s[24:27], s34 offen offset:{1024 * (i & 3)} lds")
        return (("W", st), ins)

    def a_item(g, h):
        ins = []
        if h == 0 and g % 2 == 0:
            ins.append(f"s_mov_b32 s36, {g * 2048}")
        ins.append(f"buffer_load_dwordx4 {ar(AF + 8 * (g % D1) + 4 * h, 4)}, v15, s[28:31], s36 offen offset:{(g % 2) * 2048 + 1024 * h} {SC}")
        return (("A", g), ins)

    Wq = [(st, i) for st in range(16) for i in range(7)]
    Aq = [(g, h) for g in range(64) for h in range(2)]

    def issue(item):
        emit(item[1])
        order.append(item[0])

    def issue_w1(n):
        for _ in range(n):
            issue(w_item(*Wq.pop(0)))

    def wread1(buf, sub):
        return [f"ds_read_b64_tr_b16 {ar(WF[buf] + 4 * t + 2 * rd, 2)}, v17 offset:{(16 * sub + 4 * rd) * 224 + 32 * t}"
                for t in range(7) for rd in range(2)]

    def stats(src, rnd):
        s0, s1 = vr(TM, 2), vr(TM + 2, 2)
        a(f"v_pk_add_f32 {s0}, {vr(src, 2)}, {vr(src + 2, 2)}")
        a(f"v_pk_mul_f32 {s1}, {vr(src, 2)}, {vr(src, 2)}")
        a(f"v_pk_fma_f32 {s1}, {vr(src + 2, 2)}, {vr(src + 2, 2)}, {s1}")
        for i in range(2, 16):
            a(f"v_pk_add_f32 {s0}, {s0}, {vr(src + 2 * i, 2)}")
            a(f"v_pk_fma_f32 {s1}, {vr(src + 2 * i, 2)}, {vr(src + 2 * i, 2)}, {s1}")
        m, s, m2, s2 = f"v{M_}", f"v{S_}", f"v{M_ + 2}", f"v{M_ + 3}"
        a(f"""
        v_add_f32 {m}, v{TM}, v{TM + 1}
        v_add_f32 {s}, v{TM + 2}, v{TM + 3}
        s_nop 1
        v_add_f32_dpp {m}, {m}, {m} row_ror:8 row_mask:0xf bank_mask:0xf
        v_add_f32_dpp {s}, {s}, {s} row_ror:8 row_mask:0xf bank_mask:0xf
        v_mov_b32 {m2}, {m}
        v_mov_b32 {s2}, {s}
        s_nop 1
        v_permlane16_swap_b32 {m}, {m2}
        v_permlane16_swap_b32 {s}, {s2}
        s_nop 1
        v_add_f32 {m}, {m}, {m2}
        v_add_f32 {s}, {s}, {s2}
        v_mov_b32 {m2}, {m}
        v_mov_b32 {s2}, {s}
        s_nop 1
        v_permlane32_swap_b32 {m}, {m2}
        v_permlane32_swap_b32 {s}, {s2}
        s_nop 1
        v_add_f32 {m}, {m}, {m2}
        v_add_f32 {s}, {s}, {s2}
        ds_write_b64 v{WR}, {vr(M_, 2)} offset:{256 * rnd}
        s_waitcnt lgkmcnt(0)
        s_barrier
        ds_read_b128 {vr(TM, 4)}, v{RD} offset:{256 * rnd}
        ds_read_b128 {vr(TM + 4, 4)}, v{RD} offset:{256 * rnd + 16}
        s_waitcnt lgkmcnt(0)
        v_pk_add_f32 {s0}, {s0}, {s1}
        v_pk_add_f32 {vr(TM + 4, 2)}, {vr(TM + 4, 2)}, {vr(TM + 6, 2)}
        v_pk_add_f32 {s0}, {s0}, {vr(TM + 4, 2)}
        v_mul_f32 {m}, {hex(f32bits(1.0 / 1024))}, v{TM}
        v_mul_f32 {s}, {hex(f32bits(1.0 / 1024))}, v{TM + 1}
        v_fma_f32 {s}, -{m}, {m}, {s}
        v_max_f32 {s}, 0, {s}
        """)
        bf16_round(a, m)
        bf16_round(a, s)
        a(f"v_add_f32 {s}, {hex(f32bits(1e-5))}, {s}")
        bf16_round(a, s)
        a(f"v_sqrt_f32 {s}, {s}")
        a("s_nop 0")
        bf16_round(a, s)
        a(f"v_rcp_f32 {s}, {s}")
        a("s_nop 0")
        a(f"v_mul_f32 {m2}, {m}, {s}")
        a(f"v_sub_f32 {m2}, 0, {m2}")
        a(f"v_mov_b32 {s2}, {m2}")
        a(f"v_mov_b32 {m}, {s}")


    a(f"""
    s_load_dwordx2 s[4:5], s[0:1], {KA_Q}
    s_load_dwordx4 s[20:23], s[0:1], {KA_K}
    s_load_dwordx4 s[24:27], s[0:1], {KA_SK}
    s_load_dwordx2 s[28:29], s[0:1], {KA_D}
    s_load_dwordx4 s[60:63], s[0:1], {KA_WG}
    s_load_dwordx4 s[64:67], s[0:1], {KA_WD}
    s_load_dwordx2 s[30:31], s[0:1], {KA_DBG}
    s_load_dwordx2 s[6:7], s[0:1], {KA_WS}
    v_lshrrev_b32 v1, 6, v0
    v_and_b32 v2, 63, v0                    ; lane
    v_readfirstlane_b32 s17, v1             ; wave
    v_lshlrev_b32 v15, 4, v2                ; lane*16
    s_and_b32 s18, s2, 7                    ; x
    s_lshr_b32 s19, s2, 3                   ; idx
    s_lshl_b32 s16, s19, 17
    s_lshl_b32 s3, s18, 8
    s_add_u32 s16, s16, s3
    v_and_b32 v3, 31, v0                    ; cg
    v_lshrrev_b32 v4, 5, v0                 ; rb
    v_lshlrev_b32 v5, 14, v4
    v_lshl_add_u32 v5, v3, 3, v5
    v_add_u32 v5, s16, v5
    v_subrev_u32 v6, 6144, v5
    v_mov_b32 v7, {OOB}
    v_cmp_gt_u32 vcc, 2048, v5
    s_mov_b32 s98, 4096
    s_mov_b32 s99, 8192
    v_cndmask_b32 v6, v6, v7, vcc
    s_mov_b32 s100, 12288
    v_mov_b32 v8, 0
    v_mov_b32 v9, 0
    v_mov_b32 v10, 0
    v_mov_b32 v11, 0
    s_waitcnt lgkmcnt(0)
    """)
    srd(a, 8, 20, 4 * MB)
    srd(a, 12, 22, 4 * MB)
    srd(a, 48, 6, 256 * 1024, off=WS_FL)
    KR, VR = 32, 54
    so = ["0", "s98", "s99", "s100"]
    a(f"""
    s_lshl_b32 s101, s2, 10
    v_lshlrev_b32 v7, 10, v0
    s_cmp_lg_u32 s2, 0
    s_cselect_b32 s3, {OOB}, 640
    buffer_store_dwordx4 v[8:11], v7, s[48:51], s3 offen sc1
    v_and_b32 v7, 15, v2
    v_min_u32 v7, 8, v7
    v_lshlrev_b32 v7, 6, v7
    s_cmp_lg_u32 s17, 0
    s_cselect_b32 s3, {OOB}, s101
    buffer_store_dword v8, v7, s[48:51], s3 offen sc1
    """)
    for r in range(3):
        a(f"buffer_load_dwordx2 {vr(KR + 2 * r, 2)}, v6, s[8:11], {so[r >> 1]} offen offset:{2048 * (r & 1)}")
    for r in range(8):
        a(f"buffer_load_dwordx2 {vr(KR + 6 + 2 * r, 2)}, v5, s[8:11], {so[r >> 1]} offen offset:{2048 * (r & 1)}")
    srd(a, 8, 30, 256)
    for r in range(8):
        if r == 4:
            a(f"""
            s_cmp_lg_u32 s2, 0
            s_cbranch_scc1 L_nogo
            s_waitcnt vmcnt(16)
            s_lshl_b32 s3, s17, 2
            v_mov_b32 v1, 1
            s_mov_b64 exec, 1
            buffer_store_dword v1, v8, s[8:11], s3 offen sc1
            s_mov_b64 exec, -1
            """)
            a.label("L_nogo")
        a(f"buffer_load_dwordx2 {vr(VR + 2 * r, 2)}, v5, s[12:15], {so[r >> 1]} offen offset:{2048 * (r & 1)}")
    srd(a, 36, 24, 8192)
    TR = 72
    a(f"""
    v_lshlrev_b32 v7, 5, v3
    s_lshl_b32 s3, s18, 10
    buffer_load_dwordx4 {vr(TR, 4)}, v7, s[36:39], s3 offen
    buffer_load_dwordx4 {vr(TR + 4, 4)}, v7, s[36:39], s3 offen offset:16
    s_lshl_b32 s16, s18, 7
    s_lshl_b32 s3, s19, 2
    s_add_u32 s16, s16, s3                  ; d0
    s_lshl_b32 s3, s16, 1
    s_load_dwordx2 s[98:99], s[28:29], s3   ; ssm_D[d0..d0+3]
    s_add_u32 s100, s16, s17
    s_lshl_b32 s100, s100, 12               ; (d0+w)*4096
    """)
    srd(a, 32, 26, 4 * MB)
    HR = 228
    for i in range(4):
        a(f"buffer_load_dwordx4 {vr(HR + 4 * i, 4)}, v15, s[32:35], s100 offen offset:{1024 * i}")
    srd(a, 36, 4, 4 * MB)
    a(f"""
    v_and_b32 v{R_}, 7, v2
    v_lshrrev_b32 v{O_}, 3, v2
    v_lshlrev_b32 v{T6}, 11, v{R_}
    v_lshl_add_u32 v{T6}, v{O_}, 4, v{T6}
    s_lshl_b32 s3, s2, 14
    s_lshl_b32 s16, s17, 9
    s_add_u32 s3, s3, s16
    """)
    for it in range(4):
        a(f"buffer_load_dwordx4 {vr(QR + 4 * it, 4)}, v{T6}, s[36:39], s3 offen offset:{128 * it}")
    srd(a, 56, 6, 4 * MB, off=WS_KV)
    a(f"""
    v_sub_u32 v6, 7, v4
    v_and_b32 v7, 7, v3
    v_xor_b32 v6, v6, v7
    v_lshlrev_b32 v6, 4, v6
    v_lshl_add_u32 v6, v3, 9, v6
    v_add_u32 v6, {T_BASE}, v6
    v_lshlrev_b32 v7, 4, v0
    v_add_u32 v7, {T_BASE}, v7
    v_and_b32 v12, 7, v0
    v_xor_b32 v12, v12, v4
    v_lshlrev_b32 v12, 4, v12
    v_lshrrev_b32 v13, 3, v0
    v_lshl_add_u32 v12, v13, 12, v12
    s_lshl_b32 s3, s18, 19
    s_sub_u32 s16, 31, s19
    s_lshl_b32 s16, s16, 7
    s_add_u32 s3, s3, s16
    s_mul_i32 s76, s17, {U_STRIDE}
    s_mul_i32 s77, s17, {2 * H_COPY}
    s_add_u32 s77, s77, {H_BASE}
    v_lshlrev_b32 v13, 3, v2
    v_add_u32 v13, s76, v13
    ds_write_b64 v13, v[8:9] offset:4096
    v_and_b32 v14, 1, v2
    v_lshlrev_b32 v13, 4, v14
    v_add_u32 v13, s77, v13
    ds_write_b128 v13, v[8:11]
    s_waitcnt vmcnt(8)
    """)
    stamp(a, 2, 2)
    KF, VF, WT, KS = 80, 124, 156, 172
    for j in range(4):
        for c in range(4):
            src = TR + 2 * c + (j >> 1)
            if j & 1:
                a(f"v_and_b32 v{WT + 4 * j + c}, 0xffff0000, v{src}")
            else:
                a(f"v_lshlrev_b32 v{WT + 4 * j + c}, 16, v{src}")
    for r in range(11):
        for p in range(2):
            a(f"v_lshlrev_b32 v{KF + 4 * r + 2 * p}, 16, v{KR + 2 * r + p}")
            a(f"v_and_b32 v{KF + 4 * r + 2 * p + 1}, 0xffff0000, v{KR + 2 * r + p}")
    for r in range(8):
        for p in range(2):
            a(f"v_lshlrev_b32 v{VF + 4 * r + 2 * p}, 16, v{VR + 2 * r + p}")
            a(f"v_and_b32 v{VF + 4 * r + 2 * p + 1}, 0xffff0000, v{VR + 2 * r + p}")
    for r0 in range(0, 8, 2):
        for j in range(4):
            for r in (r0, r0 + 1):
                for p in range(2):
                    kreg = vr(KF + 4 * (3 + r - j) + 2 * p, 2)
                    w = vr(WT + 4 * j + 2 * p, 2)
                    d = vr(KS + 4 * (r - r0) + 2 * p, 2)
                    a(f"v_pk_mul_f32 {d}, {kreg}, {w}" if j == 0 else f"v_pk_fma_f32 {d}, {kreg}, {w}, {d}")
        for r in (r0, r0 + 1):
            for p in range(2):
                v_ = vr(VF + 4 * r + 2 * p, 2)
                a(f"v_pk_mul_f32 {v_}, {v_}, {vr(KS + 4 * (r - r0) + 2 * p, 2)}")
    for c in range(4):
        for i in range(4):
            a(f"v_cvt_pk_bf16_f32 v{32 + 4 * c + i}, v{VF + 4 * (7 - 2 * i) + c}, v{VF + 4 * (6 - 2 * i) + c}")
        a(f"ds_write_b128 v6, {vr(32 + 4 * c, 4)} offset:{128 * c}")
    a("s_waitcnt lgkmcnt(0)")
    a("s_barrier")
    for it in range(4):
        a(f"ds_read_b128 {vr(48 + 4 * it, 4)}, v7 offset:{4096 * it}")
    for it in range(4):
        a(f"s_waitcnt lgkmcnt({3 - it})")
        a(f"buffer_store_dwordx4 {vr(48 + 4 * it, 4)}, v12, s[56:59], s3 offen sc1")
        a(f"s_add_u32 s3, s3, {32 * 4096}")
    stamp(a, 3, 2)
    a(f"""
    v_and_b32 v21, 3, v2
    v_lshlrev_b32 v21, 2, v21
    buffer_load_dword v20, v21, s[8:11], 0 offen sc1
    s_cmp_ge_u32 s17, 2
    s_cselect_b32 s3, s99, s98
    s_lshl_b32 s16, s3, 16
    s_and_b32 s3, s3, 0xffff0000
    s_bitcmp1_b32 s17, 0
    s_cselect_b32 s3, s3, s16               ; D (f32)
    s_waitcnt vmcnt(9)
    """)
    for i in range(4):
        a(f"v_readfirstlane_b32 s{36 + i}, v{HR + 4 * i}")
    a(f"""
    v_cmp_eq_u32 vcc, 1, v14
    s_lshl_b32 s16, s36, 16
    v_mov_b32 v12, s16
    v_mov_b32 v{HR + 16}, s37
    v_mov_b32 v{HR + 17}, s38
    v_mov_b32 v{HR + 18}, s39
    v_cndmask_b32 v11, 0, v12, vcc
    ds_write_b128 v13, v[8:11] offset:{H_COPY}
    v_add_u32 v13, s77, v15
    """)
    for i in range(4):
        b = HR + 4 * i
        a(f"ds_write_b128 v13, {vr(b, 4)} offset:{32 + 1024 * i}")
        a(f"v_mov_b32_dpp v{HR + 16 + i}, v{b} wave_shl:1 row_mask:0xf bank_mask:0xf")
    for i in range(4):
        b = HR + 4 * i
        t = 96 + 4 * i
        for d in range(4):
            hi = b + d + 1 if d < 3 else HR + 16 + i
            a(f"v_alignbit_b32 v{t + d}, v{hi}, v{b + d}, 16")
        a(f"ds_write_b128 v13, {vr(t, 4)} offset:{H_COPY + 32 + 1024 * i}")
    a(f"""
    v_and_b32 v22, 15, v2                   ; a / i
    v_lshrrev_b32 v23, 4, v2                ; kq / q
    v_lshlrev_b32 v24, 4, v23
    v_lshl_add_u32 v24, v22, 1, v24
    v_and_b32 v25, 1, v22
    v_cmp_eq_u32 vcc, 1, v25
    v_add_u32 v26, 2, v24
    v_add_u32 v27, {H_COPY}, v24
    v_cndmask_b32 v24, v27, v26, vcc
    v_add_u32 v24, s77, v24
    v_add_u32 v28, 1024, v24
    v_add_u32 v29, 2048, v24
    v_add_u32 v30, 3072, v24
    s_add_u32 s101, s101, 640
    s_waitcnt lgkmcnt(0)
    """)
    HV = ["v24", "v28", "v29", "v30"]
    jorder = [jp + 8 * m for jp in range(8) for m in range(8)]

    def hankel(js):
        for j in js:
            o = (j % 16) * 16
            a(f"ds_read2_b32 {ar(4 * j, 2)}, {HV[j // 16]} offset0:{o} offset1:{o + 1}")
            a(f"ds_read2_b32 {ar(4 * j + 2, 2)}, {HV[j // 16]} offset0:{o + 2} offset1:{o + 3}")

    NH = opt("nh", 24)
    hankel(jorder[:NH])
    a(f"""
    s_waitcnt vmcnt(0)
    v_cmp_eq_u32 vcc, 0, v20
    s_nop 1
    s_cmp_lg_u64 vcc, 0
    s_cbranch_scc1 L_gate_slow
    """)
    a.label("L_gate_back")
    a("""
    s_barrier
    s_cmp_lg_u32 s17, 0
    s_cbranch_scc1 L_nosig0
    """)
    signal(a, "s101")
    a.label("L_nosig0")
    stamp(a, 2)
    stamp(a, 4, 2)
    hankel(jorder[NH:])
    a(f"""
    v_lshlrev_b32 v25, 4, v23
    v_lshlrev_b32 v26, 5, v22
    v_sub_u32 v25, v25, v26
    v_add_u32 v25, 480, v25
    v_add_u32 v25, s76, v25
    v_lshlrev_b32 v27, 3, v23
    v_add_u32 v27, v27, v26
    v_sub_u32 v26, {4088 - 3584}, v27
    v_add_u32 v26, s76, v26
    v_lshrrev_b32 v27, 1, v23
    v_lshlrev_b32 v27, 2, v27
    v_add_u32 v27, s17, v27
    v_and_b32 v28, 7, v22
    v_xor_b32 v27, v27, v28
    v_lshlrev_b32 v27, 4, v27
    v_lshl_add_u32 v27, v22, 7, v27
    v_and_b32 v28, 1, v23
    v_lshl_add_u32 v27, v28, 3, v27
    v_add_u32 v27, {Z_BASE}, v27
    v_and_b32 v21, 31, v2
    v_lshlrev_b32 v21, 3, v21
    v_add_u32 v21, s18, v21
    v_lshlrev_b32 v21, 10, v21
    v_add_u32 v21, 640, v21
    v_lshlrev_b32 v{RD}, 5, v{R_}
    v_add_u32 v{RD}, {LNB + 16384}, v{RD}
    s_lshl_b32 s16, s17, 3
    v_add_u32 v{WR}, s16, v{RD}
    s_mov_b32 s98, s76                      ; U base
    """)
    stamp(a, 5, 2)
    poll(a, "p1", "v21", "v20")
    stamp(a, 6, 2)
    a("s_mov_b32 m0, s98")
    a("s_nop 0")
    for i in (3, 2, 1, 0):
        a(f"buffer_load_dwordx4 v15, s[56:59], s100 offen offset:{1024 * i} sc1 lds")
    a(f"""
    s_lshr_b32 s18, s2, 5                   ; mt
    s_and_b32 s19, s2, 7
    s_lshl_b32 s19, s19, 2
    s_bfe_u32 s20, s2, 0x20003
    s_add_u32 s19, s19, s20                 ; nt
    s_cmp_ge_u32 s17, 2
    s_cselect_b32 s24, s62, s60
    s_cselect_b32 s25, s63, s61
    s_mov_b32 s26, {1024 * 3584 * 2}
    s_mov_b32 s27, 0x20000
    v_and_b32 v18, 7, v2
    v_lshlrev_b32 v19, 7, v18
    v_lshl_add_u32 v19, v{O_}, 11, v19      ; P2 pattern: (l>>3)*2048 + (l&7)*128
    v_min_u32 v18, 6, v18
    v_lshlrev_b32 v18, 7, v18
    v_mul_u32_u24 v3, 7168, v{O_}
    v_add_u32 v18, v18, v3                  ; P1 pattern
    s_lshr_b32 s21, s2, 3
    s_lshl_b32 s21, s21, 4
    s_and_b32 s22, s17, 1
    s_lshl_b32 s23, s22, 3
    s_add_u32 s21, s21, s23
    s_mul_i32 s21, s21, 7168
    s_and_b32 s23, s2, 7
    s_mul_i32 s23, s23, 896
    s_add_u32 s68, s21, s23
    """)
    srd(a, 20, 6, 4 * MB, off=WS_H)
    srd(a, 44, 6, 4 * MB, off=WS_LN)
    srd(a, 52, 64, 3584 * 1024 * 2)
    srd(a, 40, 6, 2048 * 3584 * 2, off=WS_HH)
    a(f"""
    s_lshl_b32 s16, s18, 2
    s_add_u32 s16, s16, s17                 ; m64 block
    s_lshl_b32 s32, s16, 17
    s_add_u32 s32, s32, {WS_LN}
    s_add_u32 s28, s6, s32
    s_addc_u32 s29, s7, 0
    s_mov_b32 s30, 131072
    s_mov_b32 s31, 0x20000
    s_mul_i32 s32, s19, 224
    s_and_b32 s33, s17, 1
    s_mul_i32 s34, s33, {32 * 7168}
    s_add_u32 s32, s32, s34
    s_mov_b32 s34, {(1 << 20) // 14 + 1}
    s_movk_i32 s35, 7168
    """)
    for i in range(7):
        a(f"""
        v_add_u32 v3, {64 * i}, v2
        v_mul_lo_u32 v4, v3, s34
        v_lshrrev_b32 v4, 20, v4
        v_mul_u32_u24 v5, 14, v4
        v_sub_u32 v5, v3, v5
        v_mul_lo_u32 v4, v4, s35
        v_lshl_add_u32 v4, v5, 4, v4
        v_add_u32 v4, s32, v4
        v_subrev_u32 v{8 + i}, {1024 * (i % 4)}, v4
        """)
    a(f"""
    s_mul_i32 s34, s33, 7168
    s_lshr_b32 s33, s17, 1
    s_mul_i32 s33, s33, {G1_UPOFF}
    s_add_u32 s33, s33, s34
    v_bfe_u32 v3, v2, 4, 1
    v_mul_u32_u24 v16, {G1_UPOFF}, v3
    v_lshrrev_b32 v3, 5, v2
    v_lshlrev_b32 v3, 3, v3
    v_bfe_u32 v4, v2, 2, 2
    v_add_u32 v3, v3, v4
    v_mul_u32_u24 v3, 224, v3
    v_add_u32 v16, v16, v3
    v_and_b32 v3, 1, v2
    v_lshl_add_u32 v16, v3, 4, v16
    v_bfe_u32 v3, v2, 1, 1
    v_lshl_add_u32 v16, v3, 3, v16
    s_mov_b32 s34, 0
    s_mov_b32 s35, s33
    s_mov_b32 s36, 0
    """)
    a(f"""
    s_bfe_u32 s70, s2, 0x10002              ; kh
    s_bfe_u32 s71, s2, 0x10001
    s_lshl_b32 s71, s71, 3
    s_lshr_b32 s72, s2, 5
    s_add_u32 s71, s71, s72                 ; mt2
    s_and_b32 s72, s2, 1
    s_lshl_b32 s73, s72, 10
    s_lshl_b32 s72, s72, 2
    s_bfe_u32 s74, s2, 0x20003
    s_add_u32 s72, s72, s74                 ; nt2
    s_mul_i32 s74, s70, 1792
    s_lshl_b32 s75, s17, 8
    s_add_u32 s74, s74, s75
    s_lshr_b32 s75, s2, 3
    s_lshl_b32 s75, s75, 3
    s_add_u32 s74, s74, s75
    s_lshl_b32 s74, s74, 11
    s_add_u32 s74, s74, s73
    s_add_u32 s75, s74, {1024 * 2048}       ; round 1
    s_cmp_eq_u32 s17, 3
    s_cselect_b32 s75, {OOB}, s75
    """)

    a("buffer_load_dword v20, v18, s[24:27], s68 offen")
    for i in range(16):
        a(f"v_lshlrev_b32 v{XF + 2 * i}, 16, v{QR + i}")
        a(f"v_and_b32 v{XF + 2 * i + 1}, 0xffff0000, v{QR + i}")
    stats(XF, 0)
    srd(a, 12, 6, 4 * MB)
    a(f"""
    s_lshl_b32 s76, s17, 6
    v_add_u32 v29, s76, v2                  ; tid
    v_lshrrev_b32 v30, 3, v29
    v_xor_b32 v31, v29, v30
    v_and_b32 v31, 7, v31
    v_lshlrev_b32 v31, 4, v31
    v_lshl_add_u32 v30, v30, 15, v31
    v_lshlrev_b32 v29, 4, v29
    v_add_u32 v29, {Z_BASE}, v29
    s_and_b32 s99, s2, 7
    s_lshl_b32 s99, s99, 5
    s_lshr_b32 s76, s2, 3
    s_add_u32 s99, s99, s76
    s_lshl_b32 s99, s99, 7                  ; cgG*128
    """)
    CA = 32
    BFB = 64
    flat = [(e, jp) for e in range(8) for jp in range(8)]
    DB = 7

    def rdB(i):
        e, jp = flat[i]
        a(f"ds_read_b128 {vr(BFB + 4 * (i & 7), 4)}, v25 offset:{3584 - 512 * e + 64 * jp}")

    def zepi(cs):
        for n, c in enumerate(cs):
            a(f"ds_read_b64 {vr(96 + 8 * n, 2)}, v26 offset:{3584 - 512 * c}")
        a("s_waitcnt lgkmcnt(0)")
        for n, c in enumerate(cs):
            t = 96 + 8 * n
            a(f"v_and_b32 v{t + 2}, 0xffff0000, v{t + 1}")
            a(f"v_lshlrev_b32 v{t + 3}, 16, v{t + 1}")
            a(f"v_and_b32 v{t + 4}, 0xffff0000, v{t}")
            a(f"v_lshlrev_b32 v{t + 5}, 16, v{t}")
        for n, c in enumerate(cs):
            t = 96 + 8 * n
            for r in range(4):
                a(f"v_fma_f32 v{t + 2 + r}, v{t + 2 + r}, s3, v{CA + 4 * c + r}")
            a(f"v_cvt_pk_bf16_f32 v{t}, v{t + 2}, v{t + 3}")
            a(f"v_cvt_pk_bf16_f32 v{t + 1}, v{t + 4}, v{t + 5}")
            a(f"ds_write_b64 v27, {vr(t, 2)} offset:{2048 * c}")
        a("s_waitcnt lgkmcnt(0)")
        a("s_barrier")
        h = cs[0] // 2
        for i in range(2):
            a(f"ds_read_b128 {vr(96 + 4 * i, 4)}, v29 offset:{4096 * (h + i)}")
        for i in range(2):
            a(f"s_waitcnt lgkmcnt({1 - i})")
            a(f"buffer_store_dwordx4 {vr(96 + 4 * i, 4)}, v30, s[12:15], s99 offen sc1")
            a(f"s_add_u32 s99, s99, {32 * 32768}")

    a("s_waitcnt vmcnt(1)")
    stamp(a, 7, 2)
    a(f"s_add_u32 s68, s68, {512 * 7168}")
    for i in range(DB):
        rdB(i)
    for i, (e, jp) in enumerate(flat):
        if i + DB < 64:
            rdB(i + DB)
            a(f"s_waitcnt lgkmcnt({DB})")
        else:
            a(f"s_waitcnt lgkmcnt({63 - i})")
        for m in range(8 - e):
            acc = vr(CA + 4 * (e + m), 4)
            c0 = "0" if i == 0 else acc
            a(f"v_mfma_f32_16x16x32_bf16 {acc}, {ar(4 * (jp + 8 * m), 4)}, {vr(BFB + 4 * (i & 7), 4)}, {c0}")
        if 10 <= i < 24:
            issue_w1(1)
        if i == 26:
            a("buffer_load_dword v20, v18, s[24:27], s68 offen")
        if i == 35:
            zepi([0, 1, 2, 3])
    a("s_nop 7")
    stamp(a, 8, 2)
    zepi([4, 5, 6, 7])
    a(f"""
    v_lshrrev_b32 v21, 1, v2
    v_lshlrev_b32 v21, 3, v21
    v_and_b32 v22, 1, v2
    v_add_u32 v21, v21, v22
    s_lshl_b32 s76, s17, 1
    v_add_u32 v21, s76, v21
    v_lshlrev_b32 v21, 10, v21
    v_add_u32 v21, 648, v21
    v_lshrrev_b32 v22, 2, v2
    v_lshlrev_b32 v22, 7, v22
    v_and_b32 v23, 3, v2
    v_lshl_add_u32 v22, v23, 4, v22
    v_add_u32 v23, {2048 - 1024}, v22
    v_add_u32 v24, {2048 - 1024}, v23
    v_add_u32 v25, {2048 - 1024}, v24
    s_lshr_b32 s99, s2, 1
    s_lshl_b32 s99, s99, 15
    s_and_b32 s76, s2, 1
    s_lshl_b32 s76, s76, 6
    s_add_u32 s99, s99, s76
    s_lshl_b32 s76, s17, 13
    s_add_u32 s99, s99, s76
    v_lshrrev_b32 v{T7}, 4, v2
    v_lshlrev_b32 v{T7}, 8, v{T7}
    v_bfe_u32 v{T8}, v2, 1, 1
    v_lshl_add_u32 v{T7}, v{T8}, 7, v{T7}
    v_bfe_u32 v{T8}, v2, 2, 2
    v_lshl_add_u32 v{T7}, v{T8}, 4, v{T7}
    v_and_b32 v{T8}, 1, v2
    v_lshl_add_u32 v{T7}, v{T8}, 3, v{T7}
    s_lshl_b32 s76, s17, 12
    s_add_u32 s76, s76, {LNB}
    v_add_u32 v{T7}, s76, v{T7}
    s_mov_b32 m0, s76
    s_add_u32 s101, s101, 8
    s_waitcnt vmcnt(0)
    s_barrier
    s_cmp_lg_u32 s17, 0
    s_cbranch_scc1 L_nosigz
    """)
    signal(a, "s101")
    a.label("L_nosigz")
    stamp(a, 9, 2)
    poll(a, "pz", "v21", "v20")
    stamp(a, 10, 2)
    for i in range(4):
        a(f"buffer_load_dwordx4 v{22 + i}, s[12:15], s99 offen offset:{1024 * i} sc1 lds")
    for it in range(4):
        a(f"s_waitcnt vmcnt({3 - it})")
        for half in range(2):
            a(f"ds_read_b64_tr_b16 {vr(ZR + 4 * it + 2 * half, 2)}, v{T7} offset:{it * 1024 + half * 64}")
    a("s_waitcnt lgkmcnt(0)")
    stamp(a, 11, 2)
    for i in range(16):
        a(f"v_lshlrev_b32 v{ZF + 2 * i}, 16, v{ZR + i}")
        a(f"v_and_b32 v{ZF + 2 * i + 1}, 0xffff0000, v{ZR + i}")
    for i in range(16):
        x = vr(XF + 2 * i, 2)
        z = vr(ZF + 2 * i, 2)
        a(f"v_pk_fma_f32 {vr(TM, 2)}, {x}, {vr(M_, 2)}, {vr(M_ + 2, 2)}")
        a(f"v_pk_fma_f32 {z}, {vr(TM, 2)}, {z}, {x}")
        a(f"v_cvt_pk_bf16_f32 v{QR + i}, v{ZF + 2 * i}, v{ZF + 2 * i + 1}")
    a(f"""
    v_lshlrev_b32 v{T6}, 9, v{O_}
    v_lshl_add_u32 v{T6}, v{R_}, 4, v{T6}
    s_lshr_b32 s76, s2, 2
    s_lshl_b32 s76, s76, 16
    s_and_b32 s77, s2, 3
    s_lshl_b32 s77, s77, 7
    s_add_u32 s76, s76, s77
    s_lshl_b32 s77, s17, 14
    s_add_u32 s76, s76, s77
    """)
    for it in range(4):
        a(f"buffer_store_dwordx4 {vr(QR + 4 * it, 4)}, v{T6}, s[20:23], s76 offen sc1")
        if it < 3:
            a("s_add_u32 s76, s76, 4096")
    for i in range(16):
        a(f"v_lshlrev_b32 v{XF + 2 * i}, 16, v{QR + i}")
        a(f"v_and_b32 v{XF + 2 * i + 1}, 0xffff0000, v{QR + i}")
    stats(XF, 1)
    for i in range(16):
        x = vr(XF + 2 * i, 2)
        a(f"v_pk_fma_f32 {x}, {x}, {vr(M_, 2)}, {vr(M_ + 2, 2)}")
        a(f"v_cvt_pk_bf16_f32 v{ZR + i}, v{XF + 2 * i}, v{XF + 2 * i + 1}")
    a(f"""
    v_lshrrev_b32 v{T6}, 1, v{O_}
    v_lshlrev_b32 v{T6}, 11, v{T6}
    v_and_b32 v{T7}, 1, v{O_}
    v_lshl_add_u32 v{T6}, v{T7}, 9, v{T6}
    v_lshl_add_u32 v{T6}, v{R_}, 4, v{T6}
    s_lshr_b32 s76, s2, 3
    s_lshl_b32 s76, s76, 17
    s_bfe_u32 s77, s2, 0x10002
    s_lshl_b32 s77, s77, 10
    s_add_u32 s76, s76, s77
    s_and_b32 s77, s2, 3
    s_lshl_b32 s77, s77, 7
    s_add_u32 s76, s76, s77
    s_lshl_b32 s77, s17, 15
    s_add_u32 s76, s76, s77
    """)
    for it in range(4):
        a(f"buffer_store_dwordx4 {vr(ZR + 4 * it, 4)}, v{T6}, s[44:47], s76 offen sc1")
        if it < 3:
            a("s_add_u32 s76, s76, 8192")
    a(f"""
    s_lshl_b32 s76, s16, 3
    v_add_u32 v21, s76, v{R_}
    v_lshlrev_b32 v21, 10, v21
    s_lshl_b32 s77, s2, 10
    s_waitcnt vmcnt(0)
    s_barrier
    s_cmp_lg_u32 s17, 0
    s_cbranch_scc1 L_nosig1
    """)
    signal(a, "s77")
    a.label("L_nosig1")
    stamp(a, 3)
    issue_w1(opt('w1pro', 2))
    poll(a, "f1", "v21", "v22")
    stamp(a, 4)
    c = 0.7978845608028654
    k0 = -2.0 * c * 1.4426950408889634
    k1 = k0 * 0.044715
    T = 22
    PK = opt("gpk", 0)

    def gelu(t, mb):
        o = []
        C = ACC + 16 * (2 * t + mb)
        if PK:
            g = [vr(C + 2 * p, 2) for p in range(4)]
            u = [vr(C + 8 + 2 * p, 2) for p in range(4)]
            tt = [vr(T + 2 * p, 2) for p in range(4)]
            o += [f"v_pk_mul_f32 {tt[p]}, {g[p]}, {g[p]}" for p in range(4)]
            o += [f"v_pk_fma_f32 {tt[p]}, {tt[p]}, s[44:45], v[30:31]" for p in range(4)]
            o += [f"v_pk_mul_f32 {tt[p]}, {tt[p]}, {g[p]}" for p in range(4)]
            o += [f"v_exp_f32 v{T + i}, v{T + i}" for i in range(8)]
            o += [f"v_pk_mul_f32 {u[p]}, {u[p]}, {g[p]}" for p in range(4)]
            o += [f"v_pk_add_f32 {tt[p]}, {tt[p]}, 1.0 op_sel_hi:[1,0]" for p in range(4)]
            o += [f"v_rcp_f32 v{T + i}, v{T + i}" for i in range(8)]
            o += [f"v_pk_mul_f32 {u[p]}, {u[p]}, {tt[p]}" for p in range(4)]
        else:
            o += [f"v_mul_f32 v{T + i}, v{C + i}, v{C + i}" for i in range(8)]
            o += [f"v_fma_f32 v{T + i}, v{T + i}, s44, v30" for i in range(8)]
            o += [f"v_mul_f32 v{T + i}, v{T + i}, v{C + i}" for i in range(8)]
            for i in range(8):
                o += [f"v_exp_f32 v{T + i}, v{T + i}", f"v_mul_f32 v{C + 8 + i}, v{C + 8 + i}, v{C + i}"]
            o += [f"v_add_f32 v{T + i}, 1.0, v{T + i}" for i in range(8)]
            o += [f"v_rcp_f32 v{T + i}, v{T + i}" for i in range(8)]
            o += [f"v_mul_f32 v{C + 8 + i}, v{C + 8 + i}, v{T + i}" for i in range(8)]
        o += [f"v_cvt_pk_bf16_f32 v{C + p}, v{C + 8 + 2 * p}, v{C + 9 + 2 * p}" for p in range(4)]
        so = "s46" if mb == 0 else "s47"
        o.append(f"buffer_store_dwordx4 {vr(C, 4)}, v15, s[40:43], {so} offen sc1")
        o.append(f"s_add_u32 {so}, {so}, 16384")
        return o

    a(f"""
    s_mov_b32 s44, {hex(f32bits(k1))}
    s_mov_b32 s45, {hex(f32bits(k1))}
    v_mov_b32 v30, {hex(f32bits(k0))}
    v_mov_b32 v31, {hex(f32bits(k0))}
    s_lshl_b32 s46, s16, 1
    s_mul_i32 s46, s46, {224 * 1024}
    s_lshr_b32 s47, s19, 4
    s_mul_i32 s47, s47, {112 * 1024}
    s_add_u32 s46, s46, s47
    s_and_b32 s47, s19, 15
    s_lshl_b32 s47, s47, 10
    s_add_u32 s46, s46, s47
    s_add_u32 s47, s46, {224 * 1024}
    """)
    for _ in range(opt("a1", 6)):
        issue(a_item(*Aq.pop(0)))
    a("s_barrier")
    a(f"v_add_u32 v17, {slot1(0)}, v16")
    emit(wread1(0, 0))
    a("s_lshr_b32 s69, s2, 6")
    G0 = 4 * (16 - TT)
    for g in range(G0):
        st, j = divmod(g, 4)
        buf = g & 1
        wv = cnt(("A", g))
        if j == 3:
            assert order.count(("W", st + 1)) == 7
            wv = min(wv, cnt(("W", st + 1)))
        a(f"s_waitcnt vmcnt({wv}) lgkmcnt(0)")
        fill = []
        if j == 3:
            a("s_barrier")
            if g < G0 - 1:
                fill.append(f"v_add_u32 v17, {slot1(st + 1)}, v16")
                fill += wread1(buf ^ 1, 0)
        else:
            fill += wread1(buf ^ 1, j + 1)
        left = G0 - g
        budget = -(-(len(Wq) + len(Aq) - 2) // left)
        vm = []
        while len(vm) < budget:
            okA = Aq and Aq[0][0] - D1 + 1 <= g
            okW = Wq and 4 * (Wq[0][0] - R1) + 3 <= g
            if not okA and not okW:
                break
            needA = Aq[0][0] + 0.5 * Aq[0][1] if okA else 1e9
            needW = 4 * (Wq[0][0] - 1) + 3 - (7 - Wq[0][1]) * 4 / 7 if okW else 1e9
            vm.append(a_item(*Aq.pop(0)) if needA <= needW else w_item(*Wq.pop(0)))
        if j == 1 and st < 4 and False:
            vm.append((("P", g), [f"s_cmp_eq_u32 s69, {st}", f"s_cselect_b32 s39, s68, {OOB}",
                                  "buffer_load_dword v20, v18, s[24:27], s39 offen"]))
        if j == 1 and 4 <= st < 12 and opt("p2t", 0) > 9:
            vm.append((("P", g), [f"s_cmp_eq_u32 s69, {st % 4}", f"s_cselect_b32 s39, {'s74' if st < 8 else 's75'}, {OOB}",
                                  "buffer_load_dword v20, v19, s[52:55], s39 offen"]))
        slots = [[] for _ in range(14)]
        for i, x in enumerate(fill):
            slots[min(i // 2, 13)].append([x])
        for i, it in enumerate(vm):
            slots[min(13, ((2 * i + 1) * 14) // (2 * len(vm)))].append(it[1])
            order.append(it[0])
        for t in range(7):
            for mb in range(2):
                acc = vr(ACC + 16 * (2 * t + mb), 16)
                a(f"v_mfma_f32_32x32x16_bf16 {acc}, {ar(WF[buf] + 4 * t, 4)}, {ar(AF + 8 * (g % D1) + 4 * mb, 4)}, {'0' if g == 0 else acc}")
                for op in slots[2 * t + mb]:
                    emit(op)
        if g == 7:
            stamp(a, 5)
    assert not Wq and len(Aq) == 2, (len(Wq), len(Aq))
    stamp(a, 6)
    dv = [8, 9, 10, 11, 12, 13, 14, 3]
    dma2 = [[f"buffer_load_dwordx4 v{dv[i]}, s[52:55], s34 offen offset:{1024 * (i & 3)} lds"] for i in range(8)]
    dma2[0].insert(0, "s_mov_b32 m0, s35")
    dma2[4].insert(0, "s_add_u32 m0, s35, 4096")
    WF2 = [0, 32]
    AF2 = 184

    def wread2(buf, sub):
        return [[f"ds_read_b64_tr_b16 {ar(WF2[buf] + 16 * kk + 4 * t + 2 * rd, 2)}, v{4 + t} offset:{(32 * sub + 16 * kk + 4 * rd) * 256}"]
                for kk in range(2) for t in range(4) for rd in range(2)]

    def mfmas2(buf, af, first):
        out = []
        for kk in range(2):
            for t in range(4):
                acc = vr(ACC + 16 * t, 16)
                c = "0" if (first and kk == 0) else acc
                out.append(f"v_mfma_f32_32x32x16_bf16 {acc}, {ar(WF2[buf] + 16 * kk + 4 * t, 4)}, {ar(af + 4 * kk, 4)}, {c}")
        return out

    def addr2():
        return [["v_add_u32 v4, s37, v16", "v_xor_b32 v5, 64, v4"], ["v_xor_b32 v6, 128, v4", "v_xor_b32 v7, 192, v4"]]

    def kadv2(st):
        if st % 2 == 0:
            return [f"s_add_u32 s34, s34, {896 * 2048}"]
        return [f"s_sub_u32 s34, s34, {880 * 2048}", "s_cmp_eq_u32 s34, s32", f"s_cselect_b32 s34, {OOB}, s34"]

    class P2(Pipe):
        def w_item(s, st, i):
            t, ins = Pipe.w_item(s, st, i)
            return (("W", st), ins)

    setup2 = f"""
    v_lshrrev_b32 v3, 4, v2
    v_lshlrev_b32 v17, 2, v3
    v_and_b32 v8, 15, v2
    v_xor_b32 v17, v17, v8
    v_lshlrev_b32 v17, 4, v17
    v_lshl_add_u32 v17, v3, 11, v17
    s_lshl_b32 s76, s72, 8
    s_mul_i32 s77, s17, {224 * 2048}
    s_add_u32 s76, s76, s77
    v_add_u32 v8, s76, v17
    v_add_u32 v9, {8192 - 1024}, v8
    v_add_u32 v10, {8192 - 1024}, v9
    v_add_u32 v11, {8192 - 1024}, v10
    v_add_u32 v12, {112 * 2048}, v8
    v_add_u32 v13, {112 * 2048}, v9
    v_add_u32 v14, {112 * 2048}, v10
    v_add_u32 v3, {112 * 2048}, v11
    s_lshl_b32 s33, s17, 13
    s_mul_i32 s34, s70, {1792 * 2048}
    s_add_u32 s32, s34, {112 * 2048}
    s_add_u32 s35, s33, {4 * G2_STAGE}
    s_mov_b32 s36, 0
    s_lshl_b32 s16, s71, 2
    s_add_u32 s16, s16, s17
    s_mul_i32 s76, s16, {224 * 1024}
    s_mul_i32 s77, s70, {112 * 1024}
    s_add_u32 s76, s76, s77
    s_add_u32 s76, s76, {WS_HH}
    s_add_u32 s28, s6, s76 | s_addc_u32 s29, s7, 0
    s_mov_b32 s30, {112 * 1024}
    s_lshr_b32 s76, s71, 1
    s_lshl_b32 s76, s76, 5
    s_lshl_b32 s77, s70, 2
    s_add_u32 s76, s76, s77
    s_lshl_b32 s76, s76, 10
    s_bfe_u32 s77, s16, 0x20001
    s_add_u32 s77, s77, 1
    s_lshl_b32 s77, s77, 6
    s_add_u32 s76, s76, s77
    v_bfe_u32 v18, v2, 2, 2
    v_lshlrev_b32 v21, 3, v18
    v_and_b32 v17, 3, v2
    v_add_u32 v21, v21, v17
    v_lshlrev_b32 v21, 10, v21
    v_add_u32 v21, s76, v21
    s_lshl_b32 s77, s2, 10
    s_lshl_b32 s76, s17, 6
    s_add_u32 s77, s77, s76
    s_add_u32 s77, s77, 64
    v_lshrrev_b32 v17, 5, v2
    v_lshlrev_b32 v17, 3, v17
    v_add_u32 v17, v17, v18
    v_lshlrev_b32 v16, 8, v17
    v_lshl_add_u32 v16, v18, 6, v16
    v_bfe_u32 v17, v2, 4, 1
    v_lshl_add_u32 v16, v17, 5, v16
    v_and_b32 v17, 1, v2
    v_lshl_add_u32 v16, v17, 4, v16
    v_bfe_u32 v17, v2, 1, 1
    v_lshl_add_u32 v16, v17, 3, v16
    s_lshl_b32 s76, s70, 7
    v_xor_b32 v16, s76, v16
    s_lshl_b32 s79, s16, 16
    s_lshl_b32 s78, s72, 13
    s_add_u32 s79, s79, s78
    s_lshl_b32 s78, s70, 12
    s_add_u32 s79, s79, s78
    """
    setup2 = [[y.strip() for y in x.split("|")] for x in setup2.strip().split("\n")]
    order2 = []
    p2 = Pipe(a, "g2", 14, D2, G2_RING, G2_STAGE, kadv2, dma2, wread2, mfmas2, addr2, AF2, LA=opt("la2", 3), slot0=4, order=order2)
    fl = ["buffer_load_dword v20, v21, s[48:51], 0 offen sc1"]
    st0 = 16 - TT
    while Aq:
        issue(a_item(*Aq.pop(0)))
    for i in range(TT):
        a(f"v_add_u32 v{4 + i}, {slot1(st0 + i)}, v16")
    steps = [(t, g) for t in range(7) for g in range(G0, 64)]
    NR, DD = 14, opt("tdist", 6)

    def rd(i):
        t, g = steps[i]
        sti, sub = divmod(g - G0, 4)
        if t == 0 and sub == 0 and sti > 0:
            a(f"s_waitcnt vmcnt({cnt(('W', st0 + sti))})")
            a("s_barrier")
        return [f"ds_read_b64_tr_b16 {ar(4 * (i % NR) + 2 * r, 2)}, v{4 + sti} offset:{(16 * sub + 4 * r) * 224 + 32 * t}"
                for r in range(2)]

    def track(tag):
        order.append(tag)
        order2.append(tag)

    def put(op):
        if op[0] == "WAIT":
            a(f"s_waitcnt vmcnt({cnt(op[1])})")
        elif op[0] == "VM":
            emit(op[2])
            track(op[1])
        else:
            emit(op)

    def gelu_ops(t):
        ops = []
        for mb in range(2):
            ins = gelu(t, mb)
            ops += [[x] for x in ins[:-2]]
            ops.append(("VM", ("S", 2 * t + mb), ins[-2:]))
        return ops

    def merge(base, extra):
        out = list(base)
        for i, e in reversed(list(enumerate(extra))):
            out.insert(((2 * i + 1) * len(base)) // (2 * len(extra)), e)
        return out

    def w2(n):
        r = [("VM", ("W2",) + t[1:], ins) for t, ins in p2.pro_w[:n]]
        del p2.pro_w[:n]
        return r

    for i in range(DD):
        emit(rd(i))
    per_tile = 4 * TT
    pend = []
    for i, (t, g) in enumerate(steps):
        k = i % per_tile
        if k == 0:
            assert not pend
            stamp(a, 2 + t, 1)
            if t == 0:
                pend = list(setup2)
            else:
                pend = gelu_ops(t - 1)
            if t == opt("p2t", 0):
                pend = merge(pend, [("VM", ("P", 1), ["buffer_load_dword v20, v19, s[52:55], s74 offen"])])
            if t == opt("p2t", 0) + 1:
                pend = merge(pend, [("VM", ("P", 2), ["buffer_load_dword v20, v19, s[52:55], s75 offen"])])
            if t == 4:
                pend = [("WAIT", ("S", 3)), ("VM", ("F", 1), signal_ins("s77", 2))] + pend
            if t == 5:
                pend = [("WAIT", ("S", 5)), ("VM", ("F", 1), signal_ins("s77", 3))] + merge(pend, w2(8))
            if t == 6:
                acts = [("VM", ("A2",) + tg[1:], ins) for tg, ins in p2.pro_a]
                p2.pro_a = []
                h = len(pend) // 2
                pend = ([("VM", ("F", 9), fl)] + pend[:h] +
                        [("WAIT", ("F", 9)), ["v_cmp_gt_u32 vcc, 2, v20", "s_nop 0", "s_cmp_lg_u64 vcc, 0",
                                              "s_cbranch_scc1 L_g2_slow0", "L_g2_back0:"],
                         ("VM", ("F", 2), signal_ins("s77", 5))] + merge(pend[h:], acts))
            wts = [2 if ("v_exp" in str(x) or "v_rcp" in str(x)) else 1 for x in pend]
            tot, done = sum(wts), 0
        nxt = rd(i + DD) if i + DD < len(steps) else []
        left = min(DD, len(steps) - 1 - i)
        w = f"lgkmcnt({2 * (left - 1) if nxt else 2 * left})"
        if t == 0:
            w = f"vmcnt({cnt(('A', g))}) " + w
        a("s_waitcnt " + w)
        for mb in range(2):
            acc = vr(ACC + 16 * (2 * t + mb), 16)
            a(f"v_mfma_f32_32x32x16_bf16 {acc}, {ar(4 * (i % NR), 4)}, {ar(AF + 8 * (g % D1) + 4 * mb, 4)}, {acc}")
            if nxt:
                a(nxt[mb])
            gap = 2 * k + mb
            if pend and gap >= 4:
                target = tot * (gap - 3) / (2 * per_tile - 4)
                while pend and done < target:
                    put(pend.pop(0))
                    done += wts.pop(0)
    assert not pend
    stamp(a, 7)
    stamp(a, 9, 1)
    order2[:] = [(("W",) + t[1:]) if t[0] == "W2" else (("A",) + t[1:]) if t[0] == "A2" else t for t in order2]
    a(f"s_waitcnt vmcnt({p2.cnt_after(('W', 0))})")
    a("s_barrier")
    p2.issue_w(len(p2.pro_w))
    stamp(a, 8)
    HR = 96
    g6 = [gelu(6, mb) for mb in range(2)]
    p2.valu_peel = g6[0][:-2] + g6[1][:-2]
    p2.valu_n = 3
    res = [f"buffer_load_dwordx4 {vr(HR + 4 * i, 4)}, v15, s[20:23], s79 offen offset:{1024 * i} sc1" for i in range(4)]
    p2.extra_peel = {0: [fl], 3: [g6[0][-2:], g6[1][-2:]], 4: [[res[0]], [res[1]]], 5: [[res[2]], [res[3]]], 7: [signal_ins("s77", 7)]}
    p2.force = {7: ("P", 3)}
    p2.extra_loop = {0: [fl]}
    p2.pre_fill = {0: [["s_sub_u32 s76, 9, s38", "s_min_u32 s76, s76, 7", "v_cmp_gt_u32 vcc, s76, v20"], ["s_nop 0"],
                       ["s_cmp_lg_u64 vcc, 0", "s_cbranch_scc1 L_g2_slow", "L_g2_back:"]]}
    p2.run(0, [9, 10, 15][PM], start_sync=False)
    stamp(a, 11, 1)
    stamp(a, 10)
    srd(a, 56, 6, 8 * MB, off=WS_X)
    srd(a, 40, 66, 4 * MB)
    a(f"""
    s_lshl_b32 s76, s2, 2
    s_add_u32 s76, s76, s17
    s_lshl_b32 s76, s76, 13
    s_xor_b32 s78, s76, {4 << 15}           ; partner's
    s_add_u32 s79, s76, 4096
    s_add_u32 s77, s77, 256
    s_xor_b32 s39, s77, {4 << 10}
    v_mov_b32 v21, s39
    s_nop 7
    """)
    XB = opt("xbf16", 1)
    if XB:
        for i in range(4):
            for p in range(4):
                a(f"v_cvt_pk_bf16_f32 v{160 + 4 * i + p}, v{ACC + 32 + 8 * i + 2 * p}, v{ACC + 33 + 8 * i + 2 * p}")
            a(f"buffer_store_dwordx4 {vr(160 + 4 * i, 4)}, v15, s[56:59], s76 offen offset:{1024 * i} sc1")
    else:
        for i in range(8):
            a(f"buffer_store_dwordx4 {vr(ACC + 32 + 4 * i, 4)}, v15, s[56:59], {'s76' if i < 4 else 's79'} offen offset:{1024 * (i & 3)} sc1")
    a(f"""
    v_and_b32 v3, 31, v2
    v_lshlrev_b32 v3, 11, v3
    v_lshrrev_b32 v4, 5, v2
    v_lshl_add_u32 v3, v4, 4, v3
    s_lshl_b32 s76, s16, 16
    s_lshl_b32 s79, s72, 8
    s_add_u32 s76, s76, s79
    s_lshl_b32 s79, s70, 7
    s_add_u32 s76, s76, s79
    s_add_u32 s79, s78, 4096
    s_waitcnt vmcnt(0)
    """)
    signal(a, "s77")
    poll(a, "f3", "v21", "v22")
    stamp(a, 11)
    XR = 128
    if XB:
        for i in range(4):
            a(f"buffer_load_dwordx4 {vr(XR + 4 * i, 4)}, v15, s[56:59], s78 offen offset:{1024 * i} sc1")
        for g in range(4):
            C = ACC + 8 * g
            for p in range(4):
                a(f"v_lshlrev_b32 v22, 16, v{HR + 4 * g + p}")
                a(f"v_and_b32 v23, 0xffff0000, v{HR + 4 * g + p}")
                a(f"v_pk_add_f32 {vr(C + 2 * p, 2)}, {vr(C + 2 * p, 2)}, v[22:23]")
        for g in range(4):
            C = ACC + 8 * g
            a(f"s_waitcnt vmcnt(3)")
            for p in range(4):
                a(f"v_lshlrev_b32 v22, 16, v{XR + 4 * g + p}")
                a(f"v_and_b32 v23, 0xffff0000, v{XR + 4 * g + p}")
                a(f"v_pk_add_f32 v[20:21], {vr(C + 2 * p, 2)}, v[22:23]")
                a(f"v_cvt_pk_bf16_f32 v{HR + 4 * g + p}, v20, v21")
            a(f"buffer_store_dwordx4 {vr(HR + 4 * g, 4)}, v3, s[40:43], s76 offen offset:{32 * g}")
    else:
        for i in range(8):
            a(f"buffer_load_dwordx4 {vr(XR + 4 * i, 4)}, v15, s[56:59], {'s78' if i < 4 else 's79'} offen offset:{1024 * (i & 3)} sc1")
        for g in range(4):
            C = ACC + 8 * g
            a(f"s_waitcnt vmcnt({6 - 2 * g + g})")
            for p in range(4):
                a(f"v_pk_add_f32 {vr(C + 2 * p, 2)}, {vr(C + 2 * p, 2)}, {vr(XR + 8 * g + 2 * p, 2)}")
            for p in range(4):
                a(f"v_cvt_pk_bf16_f32 v20, v{C + 2 * p}, v{C + 2 * p + 1}")
                a(f"v_lshlrev_b32 v22, 16, v{HR + 4 * g + p}")
                a(f"v_and_b32 v23, 0xffff0000, v{HR + 4 * g + p}")
                a(f"v_and_b32 v21, 0xffff0000, v20")
                a(f"v_lshlrev_b32 v20, 16, v20")
                a(f"v_pk_add_f32 v[20:21], v[20:21], v[22:23]")
                a(f"v_cvt_pk_bf16_f32 v{HR + 4 * g + p}, v20, v21")
            a(f"buffer_store_dwordx4 {vr(HR + 4 * g, 4)}, v3, s[40:43], s76 offen offset:{32 * g}")
    stamp_flush(a, 0, 14)
    a("s_endpgm")
    a.label("L_g2_slow")
    poll(a, "f2s", "v21", "v20", need="s76")
    a("s_branch L_g2_back")
    a.label("L_gate_slow")
    poll(a, "gate", "v21", "v20", need="1", srdr="s[8:11]")
    a("s_branch L_gate_back")
    a.label("L_g2_slow0")
    poll(a, "f2s0", "v21", "v20", need="2")
    a("s_branch L_g2_back0")
    kernel_end(a, name)
    nag = 256
    return name, descriptor(name, 256, nag, 102), (256, 256, FUSED_LDS)


def main():
    out = sys.argv[1] if len(sys.argv) > 1 else f"cdna_kernels/{NAME}.s"
    gen.PROF = "--prof" in sys.argv
    a = Asm()
    ks = [gen_fused(a)]
    if opt("enc", ""):
        ks.append(gen_enc(a))
    s = HEADER
    for name, _, (g, b, lds) in ks:
        if len(ks) > 1:
            s += f"; @launch kernel={name} grid=({g},1,1) block=({b},1,1) lds={lds}\n"
        else:
            s += f"; @launch grid=({g},1,1) block=({b},1,1) lds={lds}\n"
    s += '.amdgcn_target "amdgcn-amd-amdhsa--gfx950"\n.text\n'
    s += a.text()
    s += '.section .rodata,"a"\n'
    for name, d, _ in ks:
        s += ".p2align 6\n" + d
    open(out, "w").write(s)


if __name__ == "__main__":
    main()
```

```python
import sys
import gen
from gen import *

WS_FL = 28 * MB
WS_X = 30 * MB
OOB = 0x40000000
WS_KV = 40 * MB
T_BASE = Z_BASE

TT = opt('tt', 4)
G1_RING = TT + 1
G2_RING = 5
G2_STAGE = 32768
LNB = max(131072, G1_RING * 28800)
FUSED_LDS = 163840
SC = "sc1"


class Pipe:
    def __init__(s, a, tag, NST, DEPTH, RING, STAGE, KADV, dma_items, wread_ops, mfmas, addr_update, AF,
                 extra_peel=None, extra_loop=None, LA=None, slot0=0, order=None):
        s.__dict__.update(locals())
        s.UN = DEPTH // 4
        assert NST % s.UN == 0
        s.LDS = STAGE * RING
        s.nd = len(dma_items)
        base, rem = divmod(s.nd, 4)
        s.split = [base + (1 if i < rem else 0) for i in range(4)]
        s.order = order if order is not None else []
        s.LA = LA or RING
        s.valu_peel = []
        s.valu_n = 4
        s.post_pro = []
        s.force = {}
        s.pre_fill = {}
        pro = []
        for g in range(-4 * RING - DEPTH, 0):
            pro += s.items_at(g)
        s.pro_w = [x for x in pro if x[0][0] == "W"]
        s.pro_a = [x for x in pro if x[0][0] == "A"]

    def w_item(s, st, i):
        ins = list(s.dma_items[i])
        if i == s.nd - 1:
            ins += (s.KADV(st) if callable(s.KADV) else [f"s_add_u32 s34, s34, {s.KADV}"])
            ins += [f"s_add_u32 s35, s35, {s.STAGE}",
                    f"s_cmp_ge_u32 s35, {s.LDS}", "s_cselect_b32 s35, s33, s35"]
        return (("W", st), ins)

    def a_items(s, idx):
        b = s.AF + 8 * (idx % s.DEPTH)
        return [(("A", idx), [f"buffer_load_dwordx4 {ar(b, 4)}, v15, s[28:31], s36 offen {SC}"]),
                (("A", idx), [f"buffer_load_dwordx4 {ar(b + 4, 4)}, v15, s[28:31], s36 offen offset:1024 {SC}",
                              "s_add_u32 s36, s36, 2048"])]

    def items_at(s, g):
        out = []
        ai = g - 1 + s.DEPTH
        A = s.a_items(ai) if ai >= 0 else []
        ph = (g + 1) % 4
        st = (g + 1) // 4 - 1 + s.LA
        lo = sum(s.split[:ph])
        W = [s.w_item(st, i) for i in range(lo, lo + s.split[ph])] if st >= 0 else []
        while A or W:
            if A:
                out.append(A.pop(0))
            if W:
                out.append(W.pop(0))
        return out

    def emit_ins(s, ins):
        for x in ins:
            if x.endswith(":"):
                s.a.label(x[:-1])
                continue
            s.a(x)
            if " m0," in x:
                s.a("s_nop 0")

    def issue_w(s, n):
        for t, ins in s.pro_w[:n]:
            s.emit_ins(ins)
            s.order.append(t)
        del s.pro_w[:n]

    def cnt_after(s, t):
        idx = max(i for i, x in enumerate(s.order) if x == t)
        return len(s.order) - 1 - idx

    def run(s, pro_a_limit, stamp_i, tail=False, start_sync=True):
        a = s.a
        assert not s.pro_w
        for t, ins in s.pro_a[:pro_a_limit]:
            s.emit_ins(ins)
            s.order.append(t)
        backlog = s.pro_a[pro_a_limit:]
        for t, ins in s.post_pro:
            s.emit_ins(ins)
            s.order.append(t)
        if start_sync:
            a(f"s_waitcnt vmcnt({s.cnt_after(('W', 0))})")
            a("s_barrier")
        a(f"s_mov_b32 s37, {s.slot0 * s.STAGE}")
        for op in s.addr_update():
            s.emit_ins(op)
        a(f"s_mov_b32 s37, {((s.slot0 + 1) % s.RING) * s.STAGE}")
        for op in s.wread_ops(0, 0):
            s.emit_ins(op)
        s.body(0, {}, True, backlog)
        assert not backlog
        waits = {}
        saved = list(s.order)
        nit = s.NST // s.UN - (1 if tail else 0)
        for it in range(1, nit):
            s.body(it, waits, False, None)
        assert max(waits.values()) <= 63
        final = list(s.order)
        s.order[:] = saved
        stamp(a, stamp_i)
        a(f"s_mov_b32 s38, {nit - 1}")
        a.raw(".p2align 6")
        a.label(f"L_{s.tag}_loop")
        s.body(1, waits, True, None)
        a("s_sub_u32 s38, s38, 1")
        a("s_cmp_lg_u32 s38, 0")
        a(f"s_cbranch_scc1 L_{s.tag}_loop")
        s.order[:] = final

    def body(s, it, waits, emit, backlog):
        a = s.a
        for us in range(s.UN):
            st = it * s.UN + us
            for j in range(4):
                g = 4 * st + j
                buf = g & 1
                wv = s.cnt_after(("A", g))
                if j == 3:
                    assert s.order.count(("W", st + 1)) == s.nd
                    wv = min(wv, s.cnt_after(("W", st + 1)))
                k = 4 * us + j
                if backlog is not None and k in s.force:
                    wv = min(wv, s.cnt_after(s.force[k]))
                waits[k] = min(waits.get(k, 63), wv)
                fill = []
                if backlog is None:
                    fill += s.pre_fill.get(k, [])
                if j == 3:
                    fill += s.addr_update()
                    fill += s.wread_ops(buf ^ 1, 0)
                    fill.append([f"s_add_u32 s37, s37, {s.STAGE}", f"s_cmp_ge_u32 s37, {s.LDS}",
                                 "s_cselect_b32 s37, 0, s37"])
                else:
                    fill += s.wread_ops(buf ^ 1, j + 1)
                mine = s.items_at(g)
                if backlog is not None:
                    W = [x for x in mine if x[0][0] == "W"]
                    backlog += [x for x in mine if x[0][0] == "A"]
                    left = 4 * s.UN - k
                    take = 2 + 2 * (-(-(len(backlog) - 2) // (2 * left)))
                    A = backlog[:take]
                    del backlog[:take]
                    mine = []
                    while A or W:
                        if A:
                            mine.append(A.pop(0))
                        if W:
                            mine.append(W.pop(0))
                ex = (s.extra_peel if backlog is not None else s.extra_loop) or {}
                for e in ex.get(k, []):
                    mine.append((("P", g), e))
                vm = [ins for _, ins in mine]
                s.order.extend(t for t, _ in mine)
                if emit:
                    assert s.LA < s.RING
                    a(f"s_waitcnt vmcnt({waits[k]}) lgkmcnt(8)")
                    if j == 3:
                        a("s_barrier")
                    nds = 0
                    mf = s.mfmas(buf, s.AF + 8 * (g % s.DEPTH), g == 0)
                    n = len(mf)
                    slots = [[] for _ in range(n)]
                    di = 0
                    for op in fill:
                        if op[0].startswith("ds_"):
                            slots[min(di // 2, n - 1)].append(op)
                            di += 1
                        else:
                            slots[0 if di == 0 else n - 1].append(op)
                    for i, op in enumerate(vm):
                        slots[min(n - 1, ((2 * i + 1) * n) // (2 * len(vm)))].append(op)
                    for i, m in enumerate(mf):
                        if i == n // 2:
                            a(f"s_waitcnt lgkmcnt({nds})")
                        a(m)
                        for op in slots[i]:
                            s.emit_ins(op)
                            nds += sum(1 for x in op if x.startswith("ds_"))
                        if backlog is not None and s.valu_peel:
                            gaps_left = (s.valu_n - k) * n - i
                            for _ in range(-(-len(s.valu_peel) // gaps_left)):
                                a(s.valu_peel.pop(0))


def poll(a, tag, vaddr, vtmp, need="1", srdr="s[48:51]"):
    a("s_mov_b32 s39, 0x8000")
    a.label(f"L_poll_{tag}")
    a(f"""
    buffer_load_dword {vtmp}, {vaddr}, {srdr}, 0 offen sc1
    s_waitcnt vmcnt(0)
    v_cmp_gt_u32 vcc, {need}, {vtmp}
    s_nop 1
    s_cmp_eq_u64 vcc, 0
    s_cbranch_scc1 L_polled_{tag}
    s_sleep 1
    s_sub_u32 s39, s39, 1
    s_cmp_lg_u32 s39, 0
    s_cbranch_scc1 L_poll_{tag}
    """)
    a.label(f"L_polled_{tag}")


def signal_ins(soff, val=1):
    return ["v_mov_b32 v0, 0", f"v_mov_b32 v1, {val}", "s_mov_b64 exec, 1",
            f"buffer_store_dword v1, v0, s[48:51], {soff} offen sc1", "s_mov_b64 exec, -1"]


def signal(a, soff, val=1):
    for x in signal_ins(soff, val):
        a(x)


def gen_fused(a):
    name = NAME + "_kernel"
    PM = opt("pm", 0)
    _stamp = gen.stamp

    def stamp(a, i, mode=0):
        if mode == PM:
            _stamp(a, i)
    D1 = 4 * TT
    D2 = opt('d2', 8)
    kernel_begin(a, name, 256)
    R_, O_, T6, T7, T8, RD, WR = 200, 201, 203, 204, 205, 206, 207
    M_, S_ = 208, 209
    QR, XF, ZR, ZF, TM = 212, 128, 80, 96, 160
    ACC = 32
    WF = [0, 28]
    AF = 56
    R1 = G1_RING
    order = []

    def cnt(t):
        idx = max(i for i, x in enumerate(order) if x == t)
        n = len(order) - 1 - idx
        return min(n, 63)

    def slot1(st):
        return ((st - (15 - TT) + R1 - 1) % R1) * G1_STAGE

    def emit(ins):
        for x in ins:
            if x.endswith(":"):
                a.label(x[:-1])
                continue
            a(x)
            if " m0," in x:
                a("s_nop 0")

    def w_item(st, i):
        ins = []
        if i == 0:
            ins += [f"s_mov_b32 s34, {st * 64 * 7168}", f"s_add_u32 m0, s33, {slot1(st)}"]
        if i == 4:
            ins += [f"s_add_u32 m0, s33, {slot1(st) + 4096}"]
        ins.append(f"buffer_load_dwordx4 v{8 + i}, s[24:27], s34 offen offset:{1024 * (i & 3)} lds")
        return (("W", st), ins)

    def a_item(g, h):
        ins = []
        if h == 0 and g % 2 == 0:
            ins.append(f"s_mov_b32 s36, {g * 2048}")
        ins.append(f"buffer_load_dwordx4 {ar(AF + 8 * (g % D1) + 4 * h, 4)}, v15, s[28:31], s36 offen offset:{(g % 2) * 2048 + 1024 * h} {SC}")
        return (("A", g), ins)

    Wq = [(st, i) for st in range(16) for i in range(7)]
    Aq = [(g, h) for g in range(64) for h in range(2)]

    def issue(item):
        emit(item[1])
        order.append(item[0])

    def issue_w1(n):
        for _ in range(n):
            issue(w_item(*Wq.pop(0)))

    def wread1(buf, sub):
        return [f"ds_read_b64_tr_b16 {ar(WF[buf] + 4 * t + 2 * rd, 2)}, v17 offset:{(16 * sub + 4 * rd) * 224 + 32 * t}"
                for t in range(7) for rd in range(2)]

    def stats(src, rnd):
        s0, s1 = vr(TM, 2), vr(TM + 2, 2)
        a(f"v_pk_add_f32 {s0}, {vr(src, 2)}, {vr(src + 2, 2)}")
        a(f"v_pk_mul_f32 {s1}, {vr(src, 2)}, {vr(src, 2)}")
        a(f"v_pk_fma_f32 {s1}, {vr(src + 2, 2)}, {vr(src + 2, 2)}, {s1}")
        for i in range(2, 16):
            a(f"v_pk_add_f32 {s0}, {s0}, {vr(src + 2 * i, 2)}")
            a(f"v_pk_fma_f32 {s1}, {vr(src + 2 * i, 2)}, {vr(src + 2 * i, 2)}, {s1}")
        m, s, m2, s2 = f"v{M_}", f"v{S_}", f"v{M_ + 2}", f"v{M_ + 3}"
        a(f"""
        v_add_f32 {m}, v{TM}, v{TM + 1}
        v_add_f32 {s}, v{TM + 2}, v{TM + 3}
        s_nop 1
        v_add_f32_dpp {m}, {m}, {m} row_ror:8 row_mask:0xf bank_mask:0xf
        v_add_f32_dpp {s}, {s}, {s} row_ror:8 row_mask:0xf bank_mask:0xf
        v_mov_b32 {m2}, {m}
        v_mov_b32 {s2}, {s}
        s_nop 1
        v_permlane16_swap_b32 {m}, {m2}
        v_permlane16_swap_b32 {s}, {s2}
        s_nop 1
        v_add_f32 {m}, {m}, {m2}
        v_add_f32 {s}, {s}, {s2}
        v_mov_b32 {m2}, {m}
        v_mov_b32 {s2}, {s}
        s_nop 1
        v_permlane32_swap_b32 {m}, {m2}
        v_permlane32_swap_b32 {s}, {s2}
        s_nop 1
        v_add_f32 {m}, {m}, {m2}
        v_add_f32 {s}, {s}, {s2}
        ds_write_b64 v{WR}, {vr(M_, 2)} offset:{256 * rnd}
        s_waitcnt lgkmcnt(0)
        s_barrier
        ds_read_b128 {vr(TM, 4)}, v{RD} offset:{256 * rnd}
        ds_read_b128 {vr(TM + 4, 4)}, v{RD} offset:{256 * rnd + 16}
        s_waitcnt lgkmcnt(0)
        v_pk_add_f32 {s0}, {s0}, {s1}
        v_pk_add_f32 {vr(TM + 4, 2)}, {vr(TM + 4, 2)}, {vr(TM + 6, 2)}
        v_pk_add_f32 {s0}, {s0}, {vr(TM + 4, 2)}
        v_mul_f32 {m}, {hex(f32bits(1.0 / 1024))}, v{TM}
        v_mul_f32 {s}, {hex(f32bits(1.0 / 1024))}, v{TM + 1}
        v_fma_f32 {s}, -{m}, {m}, {s}
        v_max_f32 {s}, 0, {s}
        """)
        bf16_round(a, m)
        bf16_round(a, s)
        a(f"v_add_f32 {s}, {hex(f32bits(1e-5))}, {s}")
        bf16_round(a, s)
        a(f"v_sqrt_f32 {s}, {s}")
        a("s_nop 0")
        bf16_round(a, s)
        a(f"v_rcp_f32 {s}, {s}")
        a("s_nop 0")
        a(f"v_mul_f32 {m2}, {m}, {s}")
        a(f"v_sub_f32 {m2}, 0, {m2}")
        a(f"v_mov_b32 {s2}, {m2}")
        a(f"v_mov_b32 {m}, {s}")


    Z0 = 180
    a(f"""
    s_load_dwordx2 s[4:5], s[0:1], {KA_Q}
    s_load_dwordx4 s[20:23], s[0:1], {KA_K}
    s_load_dwordx4 s[24:27], s[0:1], {KA_SK}
    s_load_dwordx2 s[28:29], s[0:1], {KA_D}
    s_load_dwordx4 s[60:63], s[0:1], {KA_WG}
    s_load_dwordx4 s[64:67], s[0:1], {KA_WD}
    s_load_dwordx2 s[30:31], s[0:1], {KA_DBG}
    s_load_dwordx2 s[6:7], s[0:1], {KA_WS}
    v_lshrrev_b32 v1, 6, v0
    v_and_b32 v2, 63, v0                    ; lane
    v_readfirstlane_b32 s17, v1             ; wave
    s_and_b32 s18, s2, 7                    ; x
    s_lshr_b32 s19, s2, 3                   ; idx
    """)
    if opt("cpf", 1):
        a("s_getpc_b64 s[8:9]")
        a.label("L_pc")
        a(f"""
        s_mov_b32 s10, L_code_end - L_pc
        s_mov_b32 s11, 0x20000
        v_lshlrev_b32 v3, 7, v0
        v_mov_b32 v4, {OOB}
        v_cmp_gt_u32 vcc, 16, v0
        s_lshl_b32 s3, s19, 11
        v_lshlrev_b32 v15, 4, v2
        v_cndmask_b32 v3, v4, v3, vcc
        buffer_load_dword v20, v3, s[8:11], s3 offen
        """)
    a(f"""
    v_lshlrev_b32 v15, 4, v2                ; lane*16
    s_lshl_b32 s16, s19, 17
    s_lshl_b32 s3, s18, 8
    s_add_u32 s16, s16, s3
    v_and_b32 v3, 31, v0                    ; cg
    v_lshrrev_b32 v4, 5, v0                 ; rb
    v_lshlrev_b32 v5, 14, v4
    v_lshl_add_u32 v5, v3, 3, v5
    v_add_u32 v5, s16, v5
    v_subrev_u32 v6, 6144, v5
    v_mov_b32 v7, {OOB}
    v_cmp_gt_u32 vcc, 2048, v5
    s_mov_b32 s98, 4096
    s_mov_b32 s99, 8192
    v_cndmask_b32 v6, v6, v7, vcc
    s_mov_b32 s100, 12288
    v_mov_b32 v{Z0}, 0
    v_mov_b32 v{Z0 + 1}, 0
    v_mov_b32 v{Z0 + 2}, 0
    v_mov_b32 v{Z0 + 3}, 0
    s_lshl_b32 s101, s2, 10
    v_lshlrev_b32 v7, 10, v0
    v_and_b32 v8, 15, v2
    v_min_u32 v8, 8, v8
    v_lshlrev_b32 v8, 6, v8
    v_and_b32 v{R_}, 7, v2
    v_lshrrev_b32 v{O_}, 3, v2
    v_lshlrev_b32 v{T6}, 11, v{R_}
    v_lshl_add_u32 v{T6}, v{O_}, 4, v{T6}
    s_lshl_b32 s3, s2, 14
    s_lshl_b32 s16, s17, 9
    s_add_u32 s3, s3, s16
    v_add_u32 v{T6}, s3, v{T6}              ; q offset
    v_and_b32 v21, 3, v2
    v_lshlrev_b32 v21, 2, v21
    v_sub_u32 v176, 7, v4
    v_and_b32 v177, 7, v3
    v_xor_b32 v176, v176, v177
    v_lshlrev_b32 v176, 4, v176
    v_lshl_add_u32 v176, v3, 9, v176
    v_add_u32 v176, {T_BASE}, v176
    v_lshlrev_b32 v177, 4, v0
    v_add_u32 v177, {T_BASE}, v177
    v_and_b32 v184, 7, v0
    v_xor_b32 v184, v184, v4
    v_lshlrev_b32 v184, 4, v184
    v_lshrrev_b32 v30, 3, v0
    v_lshl_add_u32 v184, v30, 12, v184
    v_xor_b32 v31, v0, v30
    v_and_b32 v31, 7, v31
    v_lshlrev_b32 v31, 4, v31
    v_lshl_add_u32 v30, v30, 15, v31
    s_lshl_b32 s3, s18, 19
    s_sub_u32 s16, 31, s19
    s_lshl_b32 s16, s16, 7
    s_add_u32 s78, s3, s16
    s_lshl_b32 s79, s18, 5
    s_add_u32 s79, s79, s19
    s_lshl_b32 s79, s79, 7
    s_mul_i32 s76, s17, {U_STRIDE}
    s_mul_i32 s77, s17, {2 * H_COPY}
    s_add_u32 s77, s77, {H_BASE}
    v_lshlrev_b32 v185, 3, v2
    v_add_u32 v185, s76, v185
    ds_write_b64 v185, {vr(Z0, 2)} offset:4096    ; zero padding of u
    v_and_b32 v186, 1, v2
    v_lshlrev_b32 v185, 4, v186
    v_add_u32 v185, s77, v185
    ds_write_b128 v185, {vr(Z0, 4)}
    v_add_u32 v190, s77, v15
    v_and_b32 v22, 15, v2                   ; a / i
    v_lshrrev_b32 v23, 4, v2                ; kq / q
    v_lshlrev_b32 v24, 4, v23
    v_lshl_add_u32 v24, v22, 1, v24
    v_and_b32 v25, 1, v22
    v_cmp_eq_u32 vcc, 1, v25
    v_add_u32 v26, 2, v24
    v_add_u32 v27, {H_COPY}, v24
    v_cndmask_b32 v24, v27, v26, vcc
    v_add_u32 v24, s77, v24
    v_add_u32 v187, 1024, v24
    v_add_u32 v188, 2048, v24
    v_add_u32 v189, 3072, v24
    v_and_b32 v178, 31, v2
    v_lshlrev_b32 v178, 3, v178
    v_add_u32 v178, s18, v178
    v_lshlrev_b32 v178, 10, v178
    v_add_u32 v178, 640, v178
    s_waitcnt lgkmcnt(0)
    """)
    stamp(a, 2, 3)
    srd(a, 48, 6, 256 * 1024, off=WS_FL)
    srd(a, 8, 20, 4 * MB)
    a(f"""
    s_cmp_lg_u32 s2, 0
    s_cselect_b32 s3, {OOB}, 648
    buffer_store_dwordx2 {vr(Z0, 2)}, v7, s[48:51], s3 offen sc1
    """)
    KR, VR = 32, 54
    so = ["0", "s98", "s99", "s100"]
    for r in range(3):
        a(f"buffer_load_dwordx2 {vr(KR + 2 * r, 2)}, v6, s[8:11], {so[r >> 1]} offen offset:{2048 * (r & 1)}")
    for r in range(8):
        a(f"buffer_load_dwordx2 {vr(KR + 6 + 2 * r, 2)}, v5, s[8:11], {so[r >> 1]} offen offset:{2048 * (r & 1)}")
    srd(a, 12, 22, 4 * MB)
    srd(a, 36, 24, 8192)
    srd(a, 8, 30, 256)
    TR = 72
    a(f"""
    v_lshlrev_b32 v7, 5, v3
    s_lshl_b32 s3, s18, 10
    buffer_load_dwordx4 {vr(TR, 4)}, v7, s[36:39], s3 offen
    buffer_load_dwordx4 {vr(TR + 4, 4)}, v7, s[36:39], s3 offen offset:16
    """)
    for r in range(8):
        a(f"buffer_load_dwordx2 {vr(VR + 2 * r, 2)}, v5, s[12:15], {so[r >> 1]} offen offset:{2048 * (r & 1)}")
    a(f"""
    s_lshl_b32 s16, s18, 7
    s_lshl_b32 s3, s19, 2
    s_add_u32 s16, s16, s3                  ; d0
    s_lshl_b32 s3, s16, 1
    s_load_dwordx2 s[98:99], s[28:29], s3   ; ssm_D[d0..d0+3]
    s_add_u32 s100, s16, s17
    s_lshl_b32 s100, s100, 12               ; (d0+w)*4096
    """)
    srd(a, 56, 26, 4 * MB)
    HR = 228
    a(f"""
    s_cmp_lg_u32 s17, 0
    s_cselect_b32 s3, {OOB}, s101
    buffer_store_dword v{Z0}, v8, s[48:51], s3 offen sc1
    s_cselect_b32 s3, {OOB}, 0
    buffer_load_dword v179, v178, s[48:51], s3 offen sc1
    """)
    for i in range(4):
        a(f"buffer_load_dwordx4 {vr(HR + 4 * i, 4)}, v15, s[56:59], s100 offen offset:{1024 * i}")
    QL = opt("ql", 1)
    if not QL:
        srd(a, 36, 4, 4 * MB)
        for it in range(4):
            a(f"buffer_load_dwordx4 {vr(QR + 4 * it, 4)}, v{T6}, s[36:39], 0 offen offset:{128 * it}")
    srd(a, 56, 6, 4 * MB, off=WS_KV)
    stamp(a, 3, 3)
    stamp(a, 4, 3)
    a(f"s_waitcnt vmcnt({18 - 4 * QL})")
    a(f"""
    s_lshl_b32 s3, s17, 2
    s_cmp_lg_u32 s2, 0
    s_cselect_b32 s3, {OOB}, s3
    v_mov_b32 v1, 1
    s_mov_b64 exec, 1
    buffer_store_dword v1, v{Z0}, s[8:11], s3 offen sc1
    s_mov_b64 exec, -1
    """)
    stamp(a, 5, 3)
    KF, VF, WT, KS = 80, 124, 156, 32
    for j in range(4):
        for c in range(4):
            src = TR + 2 * c + (j >> 1)
            if j & 1:
                a(f"v_and_b32 v{WT + 4 * j + c}, 0xffff0000, v{src}")
            else:
                a(f"v_lshlrev_b32 v{WT + 4 * j + c}, 16, v{src}")
    for r in range(11):
        for p in range(2):
            a(f"v_lshlrev_b32 v{KF + 4 * r + 2 * p}, 16, v{KR + 2 * r + p}")
            a(f"v_and_b32 v{KF + 4 * r + 2 * p + 1}, 0xffff0000, v{KR + 2 * r + p}")
    for j in range(4):
        for r in range(8):
            for p in range(2):
                kreg = vr(KF + 4 * (3 + r - j) + 2 * p, 2)
                w = vr(WT + 4 * j + 2 * p, 2)
                d = vr(VF + 4 * r + 2 * p, 2)
                a(f"v_pk_mul_f32 {d}, {kreg}, {w}" if j == 0 else f"v_pk_fma_f32 {d}, {kreg}, {w}, {d}")
    stamp(a, 6, 3)
    a(f"s_waitcnt vmcnt({11 - 4 * QL})")
    stamp(a, 2, 2)
    stamp(a, 7, 3)
    for r in range(8):
        for p in range(2):
            a(f"v_lshlrev_b32 v{KF + 4 * r + 2 * p}, 16, v{VR + 2 * r + p}")
            a(f"v_and_b32 v{KF + 4 * r + 2 * p + 1}, 0xffff0000, v{VR + 2 * r + p}")
    for r in range(8):
        for p in range(2):
            v_ = vr(VF + 4 * r + 2 * p, 2)
            a(f"v_pk_mul_f32 {v_}, {v_}, {vr(KF + 4 * r + 2 * p, 2)}")
    for c in range(4):
        for i in range(4):
            a(f"v_cvt_pk_bf16_f32 v{32 + 4 * c + i}, v{VF + 4 * (7 - 2 * i) + c}, v{VF + 4 * (6 - 2 * i) + c}")
        a(f"ds_write_b128 v176, {vr(32 + 4 * c, 4)} offset:{128 * c}")
    a("s_waitcnt lgkmcnt(0)")
    a("s_barrier")
    for it in range(4):
        a(f"ds_read_b128 {vr(48 + 4 * it, 4)}, v177 offset:{4096 * it}")
    for it in range(4):
        a(f"s_waitcnt lgkmcnt({3 - it})")
        a(f"buffer_store_dwordx4 {vr(48 + 4 * it, 4)}, v184, s[56:59], s78 offen sc1")
        a(f"s_add_u32 s78, s78, {32 * 4096}")
    stamp(a, 3, 2)
    stamp(a, 8, 3)
    a(f"""
    s_cmp_ge_u32 s17, 2
    s_cselect_b32 s3, s99, s98
    s_lshl_b32 s78, s3, 16
    s_and_b32 s3, s3, 0xffff0000
    s_bitcmp1_b32 s17, 0
    s_cselect_b32 s3, s3, s78               ; D (f32)
    s_waitcnt vmcnt({9 - 4 * QL})
    v_readfirstlane_b32 s98, v{HR}
    v_readfirstlane_b32 s99, v{HR + 4}
    v_readfirstlane_b32 s78, v{HR + 8}
    v_readfirstlane_b32 s39, v{HR + 12}
    v_cmp_eq_u32 vcc, 1, v186
    s_lshl_b32 s98, s98, 16
    v_mov_b32 v184, s98
    v_mov_b32 v{HR + 16}, s99
    v_mov_b32 v{HR + 17}, s78
    v_mov_b32 v{HR + 18}, s39
    v_cndmask_b32 v{Z0 + 3}, 0, v184, vcc
    ds_write_b128 v185, {vr(Z0, 4)} offset:{H_COPY}
    """)
    for i in range(4):
        b = HR + 4 * i
        a(f"ds_write_b128 v190, {vr(b, 4)} offset:{32 + 1024 * i}")
        a(f"v_mov_b32_dpp v{HR + 16 + i}, v{b} wave_shl:1 row_mask:0xf bank_mask:0xf")
    for i in range(4):
        b = HR + 4 * i
        t = 96 + 4 * i
        for d in range(4):
            hi = b + d + 1 if d < 3 else HR + 16 + i
            a(f"v_alignbit_b32 v{t + d}, v{hi}, v{b + d}, 16")
        a(f"ds_write_b128 v190, {vr(t, 4)} offset:{H_COPY + 32 + 1024 * i}")
    a("s_add_u32 s99, s101, 640")
    a("s_waitcnt lgkmcnt(0)")
    HV = ["v24", "v187", "v188", "v189"]
    jorder = [jp + 8 * m for jp in range(8) for m in range(8)]

    real_a = a
    a = Asm()
    a(f"""
    v_lshlrev_b32 v25, 4, v23
    v_lshlrev_b32 v26, 5, v22
    v_sub_u32 v25, v25, v26
    v_add_u32 v25, 480, v25
    v_add_u32 v25, s76, v25
    v_lshlrev_b32 v27, 3, v23
    v_add_u32 v27, v27, v26
    v_sub_u32 v26, {4088 - 3584}, v27
    v_add_u32 v26, s76, v26
    v_lshrrev_b32 v27, 1, v23
    v_lshlrev_b32 v27, 2, v27
    v_add_u32 v27, s17, v27
    v_and_b32 v28, 7, v22
    v_xor_b32 v27, v27, v28
    v_lshlrev_b32 v27, 4, v27
    v_lshl_add_u32 v27, v22, 7, v27
    v_and_b32 v28, 1, v23
    v_lshl_add_u32 v27, v28, 3, v27
    v_add_u32 v27, {Z_BASE}, v27
    v_lshrrev_b32 v29, 1, v2
    v_lshlrev_b32 v29, 3, v29
    v_add_u32 v29, v29, v186
    s_lshl_b32 s39, s17, 1
    v_add_u32 v29, s39, v29
    v_lshlrev_b32 v29, 10, v29
    v_add_u32 v29, 652, v29
    v_lshrrev_b32 v192, 2, v2
    v_lshlrev_b32 v192, 7, v192
    v_and_b32 v191, 3, v2
    v_lshl_add_u32 v192, v191, 4, v192
    v_add_u32 v193, {2048 - 1024}, v192
    v_add_u32 v194, {2048 - 1024}, v193
    v_add_u32 v195, {2048 - 1024}, v194
    v_lshlrev_b32 v{RD}, 5, v{R_}
    v_add_u32 v{RD}, {LNB + 16384}, v{RD}
    s_lshl_b32 s16, s17, 3
    v_add_u32 v{WR}, s16, v{RD}
    v_lshlrev_b32 v{T7}, 8, v23
    v_bfe_u32 v{T8}, v2, 1, 1
    v_lshl_add_u32 v{T7}, v{T8}, 7, v{T7}
    v_bfe_u32 v{T8}, v2, 2, 2
    v_lshl_add_u32 v{T7}, v{T8}, 4, v{T7}
    v_lshl_add_u32 v{T7}, v186, 3, v{T7}
    s_lshl_b32 s39, s17, 12
    s_add_u32 s37, s39, {LNB}
    v_add_u32 v{T7}, s37, v{T7}
    s_lshr_b32 s38, s2, 1
    s_lshl_b32 s38, s38, 15
    s_and_b32 s39, s2, 1
    s_lshl_b32 s39, s39, 6
    s_add_u32 s38, s38, s39
    s_lshl_b32 s39, s17, 13
    s_add_u32 s38, s38, s39
    v_lshlrev_b32 v196, 9, v{O_}
    v_lshl_add_u32 v196, v{R_}, 4, v196
    v_lshrrev_b32 v197, 1, v{O_}
    v_lshlrev_b32 v197, 11, v197
    v_and_b32 v198, 1, v{O_}
    v_lshl_add_u32 v197, v198, 9, v197
    v_lshl_add_u32 v197, v{R_}, 4, v197
    """)
    srd(a, 12, 6, 4 * MB)
    a(f"""
    s_lshr_b32 s18, s2, 5                   ; mt
    s_and_b32 s19, s2, 7
    s_lshl_b32 s19, s19, 2
    s_bfe_u32 s20, s2, 0x20003
    s_add_u32 s19, s19, s20                 ; nt
    s_cmp_ge_u32 s17, 2
    s_cselect_b32 s24, s62, s60
    s_cselect_b32 s25, s63, s61
    s_mov_b32 s26, {1024 * 3584 * 2}
    s_mov_b32 s27, 0x20000
    v_and_b32 v18, 7, v2
    v_lshlrev_b32 v19, 7, v18
    v_lshl_add_u32 v19, v{O_}, 11, v19      ; P2 pattern: (l>>3)*2048 + (l&7)*128
    v_min_u32 v18, 6, v18
    v_lshlrev_b32 v18, 7, v18
    v_mul_u32_u24 v3, 7168, v{O_}
    v_add_u32 v18, v18, v3                  ; P1 pattern
    s_lshr_b32 s21, s2, 3
    s_lshl_b32 s21, s21, 4
    s_and_b32 s22, s17, 1
    s_lshl_b32 s23, s22, 3
    s_add_u32 s21, s21, s23
    s_mul_i32 s21, s21, 7168
    s_and_b32 s23, s2, 7
    s_mul_i32 s23, s23, 896
    s_add_u32 s68, s21, s23
    """)
    srd(a, 20, 6, 4 * MB, off=WS_H)
    srd(a, 44, 6, 4 * MB, off=WS_LN)
    srd(a, 52, 64, 3584 * 1024 * 2)
    srd(a, 40, 6, 2048 * 3584 * 2, off=WS_HH)
    a(f"""
    s_lshl_b32 s16, s18, 2
    s_add_u32 s16, s16, s17                 ; m64 block
    s_lshl_b32 s32, s16, 17
    s_add_u32 s32, s32, {WS_LN}
    s_add_u32 s28, s6, s32
    s_addc_u32 s29, s7, 0
    s_mov_b32 s30, 131072
    s_mov_b32 s31, 0x20000
    s_mul_i32 s32, s19, 224
    s_and_b32 s33, s17, 1
    s_mul_i32 s34, s33, {32 * 7168}
    s_add_u32 s32, s32, s34
    s_mov_b32 s34, {(1 << 20) // 14 + 1}
    s_movk_i32 s35, 7168
    """)
    for i in range(7):
        a(f"""
        v_add_u32 v3, {64 * i}, v2
        v_mul_lo_u32 v4, v3, s34
        v_lshrrev_b32 v4, 20, v4
        v_mul_u32_u24 v5, 14, v4
        v_sub_u32 v5, v3, v5
        v_mul_lo_u32 v4, v4, s35
        v_lshl_add_u32 v4, v5, 4, v4
        v_add_u32 v4, s32, v4
        v_subrev_u32 v{8 + i}, {1024 * (i % 4)}, v4
        """)
    a(f"""
    s_mul_i32 s34, s33, 7168
    s_lshr_b32 s33, s17, 1
    s_mul_i32 s33, s33, {G1_UPOFF}
    s_add_u32 s33, s33, s34
    v_bfe_u32 v3, v2, 4, 1
    v_mul_u32_u24 v16, {G1_UPOFF}, v3
    v_lshrrev_b32 v3, 5, v2
    v_lshlrev_b32 v3, 3, v3
    v_bfe_u32 v4, v2, 2, 2
    v_add_u32 v3, v3, v4
    v_mul_u32_u24 v3, 224, v3
    v_add_u32 v16, v16, v3
    v_and_b32 v3, 1, v2
    v_lshl_add_u32 v16, v3, 4, v16
    v_bfe_u32 v3, v2, 1, 1
    v_lshl_add_u32 v16, v3, 3, v16
    s_mov_b32 s34, 0
    s_mov_b32 s35, s33
    s_mov_b32 s36, 0
    """)
    a(f"""
    s_bfe_u32 s70, s2, 0x10002              ; kh
    s_bfe_u32 s71, s2, 0x10001
    s_lshl_b32 s71, s71, 3
    s_lshr_b32 s72, s2, 5
    s_add_u32 s71, s71, s72                 ; mt2
    s_and_b32 s72, s2, 1
    s_lshl_b32 s73, s72, 10
    s_lshl_b32 s72, s72, 2
    s_bfe_u32 s74, s2, 0x20003
    s_add_u32 s72, s72, s74                 ; nt2
    s_mul_i32 s74, s70, 1792
    s_lshl_b32 s75, s17, 8
    s_add_u32 s74, s74, s75
    s_lshr_b32 s75, s2, 3
    s_lshl_b32 s75, s75, 3
    s_add_u32 s74, s74, s75
    s_lshl_b32 s74, s74, 11
    s_add_u32 s74, s74, s73
    s_add_u32 s75, s74, {1024 * 2048}       ; round 1
    s_cmp_eq_u32 s17, 3
    s_cselect_b32 s75, {OOB}, s75
    """)


    a(f"""
    s_lshl_b32 s39, s16, 3
    v_add_u32 v199, s39, v{R_}
    v_lshlrev_b32 v199, 10, v199
    """)
    late_setup = [x.strip() for x in a.lines if x.strip()]
    a = real_a

    def hankel(js, fill=None):
        for n, j in enumerate(js):
            o = (j % 16) * 16
            for h in range(2):
                a(f"ds_read2_b32 {ar(4 * j + 2 * h, 2)}, {HV[j // 16]} offset0:{o + 2 * h} offset1:{o + 2 * h + 1}")
                if fill:
                    left = 2 * (len(js) - n) - h
                    for _ in range(-(-len(fill) // left)):
                        a(fill.pop(0))

    stamp(a, 9, 3)
    NH, NH2 = opt("nh", 16), opt("nh2", 44)
    hankel(jorder[:NH])
    a("s_waitcnt vmcnt(0)")
    stamp(a, 10, 3)
    a(f"""
    s_barrier
    s_cmp_lg_u32 s17, 0
    s_cbranch_scc1 L_nosig0
    v_readlane_b32 s98, v179, s19
    v_mov_b32 v0, 0
    s_add_u32 s98, s98, 1
    v_mov_b32 v1, s98
    s_mov_b64 exec, 1
    buffer_store_dword v1, v0, s[48:51], s99 offen sc1
    s_mov_b64 exec, -1
    """)
    a.label("L_nosig0")
    stamp(a, 2)
    stamp(a, 4, 2)
    stamp(a, 11, 3)
    hankel(jorder[NH:NH2], late_setup)
    assert not late_setup
    stamp(a, 5, 2)
    a("""
    s_cmp_lg_u32 s17, 0
    s_cbranch_scc1 L_p1_done
    s_movk_i32 s39, 64
    """)
    a.label("L_p1_poll")
    a("""
    buffer_load_dword v20, v178, s[48:51], 0 offen sc1
    s_waitcnt vmcnt(0)
    v_cmp_eq_u32 vcc, v20, v179
    s_nop 1
    s_cmp_eq_u64 vcc, 0
    s_cbranch_scc1 L_p1_done
    s_sleep 1
    s_sub_u32 s39, s39, 1
    s_cmp_lg_u32 s39, 0
    s_cbranch_scc1 L_p1_poll
    s_branch L_p1_slow
    """)
    a.label("L_p1_done")
    a("s_barrier")
    stamp(a, 6, 2)
    a("s_mov_b32 m0, s76")
    a("s_nop 0")
    for i in (3, 2, 1, 0):
        a(f"buffer_load_dwordx4 v15, s[56:59], s100 offen offset:{1024 * i} sc1 lds")
    hankel(jorder[NH2:])
    CA = 32
    BFB = 64
    flat = [(e, jp) for e in range(8) for jp in range(8)]
    DB = 7

    def rdB(i):
        e, jp = flat[i]
        return f"ds_read_b128 {vr(BFB + 4 * (i & 7), 4)}, v25 offset:{3584 - 512 * e + 64 * jp}"

    def zcalc(n, c):
        t = 96 + 8 * n
        o = [f"v_and_b32 v{t + 2}, 0xffff0000, v{t + 1}", f"v_lshlrev_b32 v{t + 3}, 16, v{t + 1}",
             f"v_and_b32 v{t + 4}, 0xffff0000, v{t}", f"v_lshlrev_b32 v{t + 5}, 16, v{t}"]
        o += [f"v_fma_f32 v{t + 2 + r}, v{t + 2 + r}, s3, v{CA + 4 * c + r}" for r in range(4)]
        o += [f"v_cvt_pk_bf16_f32 v{t}, v{t + 2}, v{t + 3}", f"v_cvt_pk_bf16_f32 v{t + 1}, v{t + 4}, v{t + 5}",
              f"ds_write_b64 v27, {vr(t, 2)} offset:{2048 * c}"]
        return o

    a("s_waitcnt vmcnt(3)")
    stamp(a, 7, 2)
    ds = []

    def dsop(x, tag=None):
        a(x)
        ds.append(tag)

    def dswait(tag):
        n = len(ds) - 1 - max(i for i, t in enumerate(ds) if t == tag)
        a(f"s_waitcnt lgkmcnt({min(n, 15)})")

    for i in range(DB):
        dsop(rdB(i), ("B", i))
    pend = []
    for i, (e, jp) in enumerate(flat):
        if i + DB < 64:
            ne = flat[i + DB]
            if ne in ((2, 0), (4, 0), (6, 0)) and ne == (2, 0):
                a("s_waitcnt vmcnt(0)")
            dsop(rdB(i + DB), ("B", i + DB))
        if jp == 0 and e >= 1:
            c = e - 1
            dsop(f"ds_read_b64 {vr(96 + 8 * (c & 3), 2)}, v26 offset:{3584 - 512 * c}", ("K", c))
        if jp == 2 and e >= 1:
            assert not pend
            dswait(("K", e - 1))
            pend = zcalc((e - 1) & 3, e - 1)
        dswait(("B", i))
        for m in range(8 - e):
            acc = vr(CA + 4 * (e + m), 4)
            c0 = "0" if i == 0 else acc
            a(f"v_mfma_f32_16x16x32_bf16 {acc}, {ar(4 * (jp + 8 * m), 4)}, {vr(BFB + 4 * (i & 7), 4)}, {c0}")
            for _ in range(1 if e < 6 else 2):
                if pend:
                    x = pend.pop(0)
                    dsop(x, ("Z", e - 1)) if x.startswith("ds_") else a(x)
        if i == 9:
            a("buffer_load_dword v31, v21, s[8:11], 0 offen sc1")
        if i == 9 and QL:
            srd(a, 56, 4, 4 * MB)
            for it in range(4):
                a(f"buffer_load_dwordx4 {vr(QR + 4 * it, 4)}, v{T6}, s[56:59], 0 offen offset:{128 * it}")
        if i in (opt("pa", 14), opt("pb", 99)):
            a("buffer_load_dword v20, v18, s[24:27], s68 offen")
            a(f"s_add_u32 s68, s68, {512 * 7168}")
        if i == 20:
            a("""
            s_waitcnt vmcnt(1)
            v_cmp_eq_u32 vcc, 0, v31
            s_nop 1
            s_cmp_lg_u64 vcc, 0
            s_cbranch_scc1 L_gate_slow
            """)
            a.label("L_gate_back")
            a("s_add_u32 s99, s99, 8")
            a("s_cmp_lg_u32 s17, 0")
            a(f"s_cselect_b32 s98, {OOB}, s99")
            signal(a, "s98")
        if i == 40:
            dswait(("Z", 3))
            a("s_barrier")
            for k in range(2):
                dsop(f"ds_read_b128 {vr(168 + 4 * k, 4)}, v177 offset:{4096 * k}", ("R", k))
        if i == 43:
            dswait(("R", 1))
            for k in range(2):
                a(f"buffer_store_dwordx4 {vr(168 + 4 * k, 4)}, v30, s[12:15], s79 offen sc1")
                a(f"s_add_u32 s79, s79, {32 * 32768}")
        if i == 60:
            dsop(f"ds_read_b64 {vr(96 + 24, 2)}, v26 offset:0", ("K", 7))
    assert not pend
    stamp(a, 8, 2)
    z7 = zcalc(3, 7)
    a("s_waitcnt lgkmcnt(0)")
    for x in z7[:4]:
        a(x)
    a("s_nop 3")
    for x in z7[4:]:
        a(x)
    a("s_waitcnt lgkmcnt(0)")
    a("s_barrier")
    for k in range(2):
        a(f"ds_read_b128 {vr(168 + 4 * k, 4)}, v177 offset:{4096 * (2 + k)}")
    for k in range(2):
        a(f"s_waitcnt lgkmcnt({1 - k})")
        a(f"buffer_store_dwordx4 {vr(168 + 4 * k, 4)}, v30, s[12:15], s79 offen sc1")
        a(f"s_add_u32 s79, s79, {32 * 32768}")
    for i in range(16):
        a(f"v_lshlrev_b32 v{XF + 2 * i}, 16, v{QR + i}")
        a(f"v_and_b32 v{XF + 2 * i + 1}, 0xffff0000, v{QR + i}")
    a(f"""
    s_add_u32 s99, s99, 4
    s_waitcnt vmcnt(0)
    s_barrier
    s_cmp_lg_u32 s17, 0
    s_cbranch_scc1 L_nosigz
    """)
    signal(a, "s99")
    a.label("L_nosigz")
    stamp(a, 9, 2)
    WZ = opt("wz", 7)
    issue_w1(WZ)
    stats(XF, 0)
    L1 = 32
    for i in range(16):
        a(f"v_pk_fma_f32 {vr(L1 + 2 * i, 2)}, {vr(XF + 2 * i, 2)}, {vr(M_, 2)}, {vr(M_ + 2, 2)}")
    a(f"""
    s_lshr_b32 s76, s2, 2
    s_lshl_b32 s76, s76, 16
    s_and_b32 s77, s2, 3
    s_lshl_b32 s77, s77, 7
    s_add_u32 s76, s76, s77
    s_lshl_b32 s78, s17, 14
    s_add_u32 s76, s76, s78
    s_lshr_b32 s78, s2, 3
    s_lshl_b32 s78, s78, 17
    s_add_u32 s78, s78, s77
    s_bfe_u32 s77, s2, 0x10002
    s_lshl_b32 s77, s77, 10
    s_add_u32 s78, s78, s77
    s_lshl_b32 s77, s17, 15
    s_add_u32 s78, s78, s77
    s_mov_b32 m0, s37
    """)
    poll(a, "pz", "v29", "v20")
    stamp(a, 10, 2)
    for i in range(4):
        a(f"buffer_load_dwordx4 v{192 + i}, s[12:15], s38 offen offset:{1024 * i} sc1 lds")
    for it in range(4):
        a(f"s_waitcnt vmcnt({3 - it})")
        for half in range(2):
            a(f"ds_read_b64_tr_b16 {vr(ZR + 4 * it + 2 * half, 2)}, v{T7} offset:{it * 1024 + half * 64}")
    stamp(a, 11, 2)
    for it in range(4):
        a(f"s_waitcnt lgkmcnt({6 - 2 * it})")
        for i in range(4 * it, 4 * it + 4):
            a(f"v_lshlrev_b32 v{ZF + 2 * i}, 16, v{ZR + i}")
            a(f"v_and_b32 v{ZF + 2 * i + 1}, 0xffff0000, v{ZR + i}")
        for i in range(4 * it, 4 * it + 4):
            a(f"v_pk_fma_f32 {vr(XF + 2 * i, 2)}, {vr(L1 + 2 * i, 2)}, {vr(ZF + 2 * i, 2)}, {vr(XF + 2 * i, 2)}")
    if opt("hround", 0):
        for i in range(16):
            a(f"v_cvt_pk_bf16_f32 v{QR + i}, v{XF + 2 * i}, v{XF + 2 * i + 1}")
            a(f"v_lshlrev_b32 v{XF + 2 * i}, 16, v{QR + i}")
            a(f"v_and_b32 v{XF + 2 * i + 1}, 0xffff0000, v{QR + i}")
    stats(XF, 1)
    for it in range(4):
        for i in range(4 * it, 4 * it + 4):
            a(f"v_pk_fma_f32 {vr(ZF + 2 * i, 2)}, {vr(XF + 2 * i, 2)}, {vr(M_, 2)}, {vr(M_ + 2, 2)}")
        for i in range(4 * it, 4 * it + 4):
            a(f"v_cvt_pk_bf16_f32 v{ZR + i}, v{ZF + 2 * i}, v{ZF + 2 * i + 1}")
        a(f"buffer_store_dwordx4 {vr(ZR + 4 * it, 4)}, v197, s[44:47], s78 offen sc1")
        a("s_add_u32 s78, s78, 8192")
    for it in range(4):
        for i in range(4 * it, 4 * it + 4):
            a(f"v_cvt_pk_bf16_f32 v{QR + i}, v{XF + 2 * i}, v{XF + 2 * i + 1}")
        a(f"buffer_store_dwordx4 {vr(QR + 4 * it, 4)}, v196, s[20:23], s76 offen sc1")
        a("s_add_u32 s76, s76, 4096")
    a(f"""
    s_waitcnt vmcnt(4)
    s_barrier
    s_cmp_lg_u32 s17, 0
    s_cbranch_scc1 L_nosig1
    """)
    signal(a, "s101")
    a.label("L_nosig1")
    stamp(a, 3)
    issue_w1(opt('w1pro', 16) - WZ)
    poll(a, "f1", "v199", "v22")
    stamp(a, 4)
    c = 0.7978845608028654
    k0 = -2.0 * c * 1.4426950408889634
    k1 = k0 * 0.044715
    T = 22
    PK = opt("gpk", 0)

    def gelu(t, mb):
        o = []
        C = ACC + 16 * (2 * t + mb)
        if PK:
            g = [vr(C + 2 * p, 2) for p in range(4)]
            u = [vr(C + 8 + 2 * p, 2) for p in range(4)]
            tt = [vr(T + 2 * p, 2) for p in range(4)]
            o += [f"v_pk_mul_f32 {tt[p]}, {g[p]}, {g[p]}" for p in range(4)]
            o += [f"v_pk_fma_f32 {tt[p]}, {tt[p]}, s[44:45], v[30:31]" for p in range(4)]
            o += [f"v_pk_mul_f32 {tt[p]}, {tt[p]}, {g[p]}" for p in range(4)]
            o += [f"v_exp_f32 v{T + i}, v{T + i}" for i in range(8)]
            o += [f"v_pk_mul_f32 {u[p]}, {u[p]}, {g[p]}" for p in range(4)]
            o += [f"v_pk_add_f32 {tt[p]}, {tt[p]}, 1.0 op_sel_hi:[1,0]" for p in range(4)]
            o += [f"v_rcp_f32 v{T + i}, v{T + i}" for i in range(8)]
            o += [f"v_pk_mul_f32 {u[p]}, {u[p]}, {tt[p]}" for p in range(4)]
        else:
            o += [f"v_mul_f32 v{T + i}, v{C + i}, v{C + i}" for i in range(8)]
            o += [f"v_fma_f32 v{T + i}, v{T + i}, s44, v30" for i in range(8)]
            o += [f"v_mul_f32 v{T + i}, v{T + i}, v{C + i}" for i in range(8)]
            for i in range(8):
                o += [f"v_exp_f32 v{T + i}, v{T + i}", f"v_mul_f32 v{C + 8 + i}, v{C + 8 + i}, v{C + i}"]
            o += [f"v_add_f32 v{T + i}, 1.0, v{T + i}" for i in range(8)]
            o += [f"v_rcp_f32 v{T + i}, v{T + i}" for i in range(8)]
            o += [f"v_mul_f32 v{C + 8 + i}, v{C + 8 + i}, v{T + i}" for i in range(8)]
        o += [f"v_cvt_pk_bf16_f32 v{C + p}, v{C + 8 + 2 * p}, v{C + 9 + 2 * p}" for p in range(4)]
        so = "s46" if mb == 0 else "s47"
        o.append(f"buffer_store_dwordx4 {vr(C, 4)}, v15, s[40:43], {so} offen sc1")
        o.append(f"s_add_u32 {so}, {so}, 16384")
        return o

    a(f"""
    s_mov_b32 s44, {hex(f32bits(k1))}
    s_mov_b32 s45, {hex(f32bits(k1))}
    v_mov_b32 v30, {hex(f32bits(k0))}
    v_mov_b32 v31, {hex(f32bits(k0))}
    s_lshl_b32 s46, s16, 1
    s_mul_i32 s46, s46, {224 * 1024}
    s_lshr_b32 s47, s19, 4
    s_mul_i32 s47, s47, {112 * 1024}
    s_add_u32 s46, s46, s47
    s_and_b32 s47, s19, 15
    s_lshl_b32 s47, s47, 10
    s_add_u32 s46, s46, s47
    s_add_u32 s47, s46, {224 * 1024}
    """)
    for _ in range(opt("a1", 6)):
        issue(a_item(*Aq.pop(0)))
    a("s_barrier")
    a(f"v_add_u32 v17, {slot1(0)}, v16")
    emit(wread1(0, 0))
    a("s_lshr_b32 s69, s2, 6")
    G0 = 4 * (16 - TT)
    for g in range(G0):
        st, j = divmod(g, 4)
        buf = g & 1
        wv = cnt(("A", g))
        if j == 3:
            assert order.count(("W", st + 1)) == 7
            wv = min(wv, cnt(("W", st + 1)))
        a(f"s_waitcnt vmcnt({wv}) lgkmcnt(0)")
        fill = []
        if j == 3:
            a("s_barrier")
            if g < G0 - 1:
                fill.append(f"v_add_u32 v17, {slot1(st + 1)}, v16")
                fill += wread1(buf ^ 1, 0)
        else:
            fill += wread1(buf ^ 1, j + 1)
        left = G0 - g
        budget = -(-(len(Wq) + len(Aq) - 2) // left)
        vm = []
        while len(vm) < budget:
            okA = Aq and Aq[0][0] - D1 + 1 <= g
            okW = Wq and 4 * (Wq[0][0] - R1) + 3 <= g
            if not okA and not okW:
                break
            needA = Aq[0][0] + 0.5 * Aq[0][1] if okA else 1e9
            needW = 4 * (Wq[0][0] - 1) + 3 - (7 - Wq[0][1]) * 4 / 7 if okW else 1e9
            vm.append(a_item(*Aq.pop(0)) if needA <= needW else w_item(*Wq.pop(0)))
        if j == 1 and st < 4 and opt('pb', 99) == 99:
            vm.append((("P", g), [f"s_cmp_eq_u32 s69, {st}", f"s_cselect_b32 s39, s68, {OOB}",
                                  "buffer_load_dword v20, v18, s[24:27], s39 offen"]))
        if j == 1 and 4 <= st < 12 and opt("p2t", 10) > 9:
            vm.append((("P", g), [f"s_cmp_eq_u32 s69, {st % 4}", f"s_cselect_b32 s39, {'s74' if st < 8 else 's75'}, {OOB}",
                                  "buffer_load_dword v20, v19, s[52:55], s39 offen"]))
        slots = [[] for _ in range(14)]
        for i, x in enumerate(fill):
            slots[min(i // 2, 13)].append([x])
        for i, it in enumerate(vm):
            slots[min(13, ((2 * i + 1) * 14) // (2 * len(vm)))].append(it[1])
            order.append(it[0])
        for t in range(7):
            for mb in range(2):
                acc = vr(ACC + 16 * (2 * t + mb), 16)
                a(f"v_mfma_f32_32x32x16_bf16 {acc}, {ar(WF[buf] + 4 * t, 4)}, {ar(AF + 8 * (g % D1) + 4 * mb, 4)}, {'0' if g == 0 else acc}")
                for op in slots[2 * t + mb]:
                    emit(op)
        if g == 7:
            stamp(a, 5)
    assert not Wq and len(Aq) == 2, (len(Wq), len(Aq))
    stamp(a, 6)
    dv = [8, 9, 10, 11, 12, 13, 14, 3]
    dma2 = [[f"buffer_load_dwordx4 v{dv[i]}, s[52:55], s34 offen offset:{1024 * (i & 3)} lds"] for i in range(8)]
    dma2[0].insert(0, "s_mov_b32 m0, s35")
    dma2[4].insert(0, "s_add_u32 m0, s35, 4096")
    WF2 = [0, 32]
    AF2 = 184

    def wread2(buf, sub):
        return [[f"ds_read_b64_tr_b16 {ar(WF2[buf] + 16 * kk + 4 * t + 2 * rd, 2)}, v{4 + t} offset:{(32 * sub + 16 * kk + 4 * rd) * 256}"]
                for kk in range(2) for t in range(4) for rd in range(2)]

    def mfmas2(buf, af, first):
        out = []
        for kk in range(2):
            for t in range(4):
                acc = vr(ACC + 16 * t, 16)
                c = "0" if (first and kk == 0) else acc
                out.append(f"v_mfma_f32_32x32x16_bf16 {acc}, {ar(WF2[buf] + 16 * kk + 4 * t, 4)}, {ar(af + 4 * kk, 4)}, {c}")
        return out

    def addr2():
        return [["v_add_u32 v4, s37, v16", "v_xor_b32 v5, 64, v4"], ["v_xor_b32 v6, 128, v4", "v_xor_b32 v7, 192, v4"]]

    def kadv2(st):
        if st % 2 == 0:
            return [f"s_add_u32 s34, s34, {896 * 2048}"]
        return [f"s_sub_u32 s34, s34, {880 * 2048}", "s_cmp_eq_u32 s34, s32", f"s_cselect_b32 s34, {OOB}, s34"]

    class P2(Pipe):
        def w_item(s, st, i):
            t, ins = Pipe.w_item(s, st, i)
            return (("W", st), ins)

    setup2 = f"""
    v_lshrrev_b32 v3, 4, v2
    v_lshlrev_b32 v17, 2, v3
    v_and_b32 v8, 15, v2
    v_xor_b32 v17, v17, v8
    v_lshlrev_b32 v17, 4, v17
    v_lshl_add_u32 v17, v3, 11, v17
    s_lshl_b32 s76, s72, 8
    s_mul_i32 s77, s17, {224 * 2048}
    s_add_u32 s76, s76, s77
    v_add_u32 v8, s76, v17
    v_add_u32 v9, {8192 - 1024}, v8
    v_add_u32 v10, {8192 - 1024}, v9
    v_add_u32 v11, {8192 - 1024}, v10
    v_add_u32 v12, {112 * 2048}, v8
    v_add_u32 v13, {112 * 2048}, v9
    v_add_u32 v14, {112 * 2048}, v10
    v_add_u32 v3, {112 * 2048}, v11
    s_lshl_b32 s33, s17, 13
    s_mul_i32 s34, s70, {1792 * 2048}
    s_add_u32 s32, s34, {112 * 2048}
    s_add_u32 s35, s33, {4 * G2_STAGE}
    s_mov_b32 s36, 0
    s_lshl_b32 s16, s71, 2
    s_add_u32 s16, s16, s17
    s_mul_i32 s76, s16, {224 * 1024}
    s_mul_i32 s77, s70, {112 * 1024}
    s_add_u32 s76, s76, s77
    s_add_u32 s76, s76, {WS_HH}
    s_add_u32 s28, s6, s76 | s_addc_u32 s29, s7, 0
    s_mov_b32 s30, {112 * 1024}
    s_lshr_b32 s76, s71, 1
    s_lshl_b32 s76, s76, 5
    s_lshl_b32 s77, s70, 2
    s_add_u32 s76, s76, s77
    s_lshl_b32 s76, s76, 10
    s_bfe_u32 s77, s16, 0x20001
    s_add_u32 s77, s77, 1
    s_lshl_b32 s77, s77, 6
    s_add_u32 s76, s76, s77
    v_bfe_u32 v18, v2, 2, 2
    v_lshlrev_b32 v21, 3, v18
    v_and_b32 v17, 3, v2
    v_add_u32 v21, v21, v17
    v_lshlrev_b32 v21, 10, v21
    v_add_u32 v21, s76, v21
    s_lshl_b32 s76, s16, 12
    s_lshr_b32 s77, s72, 1
    s_add_u32 s77, s77, 1
    s_lshl_b32 s77, s77, 6
    s_add_u32 s76, s76, s77
    v_lshlrev_b32 v17, 10, v17
    v_add_u32 v17, s76, v17
    v_and_b32 v1, 16, v2
    v_cmp_ne_u32 vcc, 0, v1 | s_nop 1 | v_cndmask_b32 v21, v21, v17, vcc
    s_lshl_b32 s77, s2, 10
    s_lshl_b32 s76, s17, 6
    s_add_u32 s77, s77, s76
    s_add_u32 s77, s77, 64
    v_lshrrev_b32 v17, 5, v2
    v_lshlrev_b32 v17, 3, v17
    v_add_u32 v17, v17, v18
    v_lshlrev_b32 v16, 8, v17
    v_lshl_add_u32 v16, v18, 6, v16
    v_bfe_u32 v17, v2, 4, 1
    v_lshl_add_u32 v16, v17, 5, v16
    v_and_b32 v17, 1, v2
    v_lshl_add_u32 v16, v17, 4, v16
    v_bfe_u32 v17, v2, 1, 1
    v_lshl_add_u32 v16, v17, 3, v16
    s_lshl_b32 s76, s70, 7
    v_xor_b32 v16, s76, v16
    s_lshl_b32 s79, s16, 16
    s_lshl_b32 s78, s72, 13
    s_add_u32 s79, s79, s78
    s_lshl_b32 s78, s70, 12
    s_add_u32 s79, s79, s78
    """
    setup2 = [[y.strip() for y in x.split("|")] for x in setup2.strip().split("\n")]
    order2 = []
    p2 = Pipe(a, "g2", 14, D2, G2_RING, G2_STAGE, kadv2, dma2, wread2, mfmas2, addr2, AF2, LA=opt("la2", 3), slot0=4, order=order2)
    fl = ["buffer_load_dword v20, v21, s[48:51], 0 offen sc1"]
    st0 = 16 - TT
    while Aq:
        issue(a_item(*Aq.pop(0)))
    for i in range(TT):
        a(f"v_add_u32 v{4 + i}, {slot1(st0 + i)}, v16")
    steps = [(t, g) for t in range(7) for g in range(G0, 64)]
    NR, DD = 14, opt("tdist", 6)

    def rd(i):
        t, g = steps[i]
        sti, sub = divmod(g - G0, 4)
        if t == 0 and sub == 0 and sti > 0:
            a(f"s_waitcnt vmcnt({cnt(('W', st0 + sti))})")
            a("s_barrier")
        return [f"ds_read_b64_tr_b16 {ar(4 * (i % NR) + 2 * r, 2)}, v{4 + sti} offset:{(16 * sub + 4 * r) * 224 + 32 * t}"
                for r in range(2)]

    def track(tag):
        order.append(tag)
        order2.append(tag)

    def put(op):
        if op[0] == "WAIT":
            a(f"s_waitcnt vmcnt({cnt(op[1])})")
        elif op[0] == "VM":
            emit(op[2])
            track(op[1])
        else:
            emit(op)

    def gelu_ops(t):
        ops = []
        for mb in range(2):
            ins = gelu(t, mb)
            ops += [[x] for x in ins[:-2]]
            ops.append(("VM", ("S", 2 * t + mb), ins[-2:]))
        return ops

    def merge(base, extra):
        out = list(base)
        for i, e in reversed(list(enumerate(extra))):
            out.insert(((2 * i + 1) * len(base)) // (2 * len(extra)), e)
        return out

    def w2(n):
        r = [("VM", ("W2",) + t[1:], ins) for t, ins in p2.pro_w[:n]]
        del p2.pro_w[:n]
        return r

    for i in range(DD):
        emit(rd(i))
    per_tile = 4 * TT
    pend = []
    for i, (t, g) in enumerate(steps):
        k = i % per_tile
        if k == 0:
            assert not pend
            stamp(a, 2 + t, 1)
            if t == 0:
                pend = list(setup2)
            else:
                pend = gelu_ops(t - 1)
            if t == opt("p2t", 10):
                pend = merge(pend, [("VM", ("P", 1), ["buffer_load_dword v20, v19, s[52:55], s74 offen"])])
            if t == opt("p2t", 10) + 1:
                pend = merge(pend, [("VM", ("P", 2), ["buffer_load_dword v20, v19, s[52:55], s75 offen"])])
            if t == 4:
                pend = [("WAIT", ("S", 3)), ("VM", ("F", 1), signal_ins("s77", 2))] + pend
            if t == 5:
                pend = [("WAIT", ("S", 5)), ("VM", ("F", 1), signal_ins("s77", 3))] + merge(pend, w2(8))
            if t == 6:
                acts = [("VM", ("A2",) + tg[1:], ins) for tg, ins in p2.pro_a]
                p2.pro_a = []
                h = len(pend) // 2
                pend = ([("VM", ("F", 9), fl)] + pend[:h] +
                        [("WAIT", ("F", 9)), ["v_cmp_gt_u32 vcc, 2, v20", "s_nop 0", "s_cmp_lg_u64 vcc, 0",
                                              "s_cbranch_scc1 L_g2_slow0", "L_g2_back0:"],
                         ("VM", ("F", 2), signal_ins("s77", 5))] + merge(pend[h:], acts))
            wts = [2 if ("v_exp" in str(x) or "v_rcp" in str(x)) else 1 for x in pend]
            tot, done = sum(wts), 0
        nxt = rd(i + DD) if i + DD < len(steps) else []
        left = min(DD, len(steps) - 1 - i)
        w = f"lgkmcnt({2 * (left - 1) if nxt else 2 * left})"
        if t == 0:
            w = f"vmcnt({cnt(('A', g))}) " + w
        a("s_waitcnt " + w)
        for mb in range(2):
            acc = vr(ACC + 16 * (2 * t + mb), 16)
            a(f"v_mfma_f32_32x32x16_bf16 {acc}, {ar(4 * (i % NR), 4)}, {ar(AF + 8 * (g % D1) + 4 * mb, 4)}, {acc}")
            if nxt:
                a(nxt[mb])
            gap = 2 * k + mb
            if pend and gap >= 4:
                target = tot * (gap - 3) / (2 * per_tile - 4)
                while pend and done < target:
                    put(pend.pop(0))
                    done += wts.pop(0)
    assert not pend
    stamp(a, 7)
    stamp(a, 9, 1)
    order2[:] = [(("W",) + t[1:]) if t[0] == "W2" else (("A",) + t[1:]) if t[0] == "A2" else t for t in order2]
    a(f"s_waitcnt vmcnt({p2.cnt_after(('W', 0))})")
    a("s_barrier")
    p2.issue_w(len(p2.pro_w))
    stamp(a, 8)
    HR = 96
    g6 = [gelu(6, mb) for mb in range(2)]
    p2.valu_peel = g6[0][:-2] + g6[1][:-2]
    p2.valu_n = 3
    res = [f"buffer_load_dwordx4 {vr(HR + 4 * i, 4)}, v15, s[20:23], s79 offen offset:{1024 * i} sc1" for i in range(4)]
    p2.extra_peel = {0: [fl], 3: [g6[0][-2:], g6[1][-2:]], 4: [[res[0]], [res[1]]], 5: [[res[2]], [res[3]]], 7: [signal_ins("s77", 7)]}
    p2.force = {7: ("P", 3)}
    p2.extra_loop = {0: [fl]}
    p2.pre_fill = {0: [["s_sub_u32 s76, 9, s38", "s_min_u32 s76, s76, 7", "v_cmp_gt_u32 vcc, s76, v20"], ["s_nop 0"],
                       ["s_cmp_lg_u64 vcc, 0", "s_cbranch_scc1 L_g2_slow", "L_g2_back:"]]}
    p2.run(0, [9, 10, 15, 15][PM], start_sync=False)
    stamp(a, 11, 1)
    stamp(a, 10)
    srd(a, 56, 6, 8 * MB, off=WS_X)
    srd(a, 40, 66, 4 * MB)
    a(f"""
    s_lshl_b32 s76, s2, 2
    s_add_u32 s76, s76, s17
    s_lshl_b32 s76, s76, 13
    s_xor_b32 s78, s76, {4 << 15}           ; partner's
    s_add_u32 s79, s76, 4096
    s_add_u32 s77, s77, 256
    s_xor_b32 s39, s77, {4 << 10}
    v_mov_b32 v21, s39
    s_nop 7
    """)
    XB = opt("xbf16", 1)
    if XB:
        for i in range(4):
            for p in range(4):
                a(f"v_cvt_pk_bf16_f32 v{160 + 4 * i + p}, v{ACC + 32 + 8 * i + 2 * p}, v{ACC + 33 + 8 * i + 2 * p}")
            a(f"buffer_store_dwordx4 {vr(160 + 4 * i, 4)}, v15, s[56:59], s76 offen offset:{1024 * i} sc1")
    else:
        for i in range(8):
            a(f"buffer_store_dwordx4 {vr(ACC + 32 + 4 * i, 4)}, v15, s[56:59], {'s76' if i < 4 else 's79'} offen offset:{1024 * (i & 3)} sc1")
    a(f"""
    v_and_b32 v3, 31, v2
    v_lshlrev_b32 v3, 11, v3
    v_lshrrev_b32 v4, 5, v2
    v_lshl_add_u32 v3, v4, 4, v3
    s_lshl_b32 s76, s16, 16
    s_lshl_b32 s79, s72, 8
    s_add_u32 s76, s76, s79
    s_lshl_b32 s79, s70, 7
    s_add_u32 s76, s76, s79
    s_add_u32 s79, s78, 4096
    s_waitcnt vmcnt(0)
    """)
    signal(a, "s77")
    poll(a, "f3", "v21", "v22")
    stamp(a, 11)
    XR = 128
    if XB:
        for i in range(4):
            a(f"buffer_load_dwordx4 {vr(XR + 4 * i, 4)}, v15, s[56:59], s78 offen offset:{1024 * i} sc1")
        for g in range(4):
            C = ACC + 8 * g
            for p in range(4):
                a(f"v_lshlrev_b32 v22, 16, v{HR + 4 * g + p}")
                a(f"v_and_b32 v23, 0xffff0000, v{HR + 4 * g + p}")
                a(f"v_pk_add_f32 {vr(C + 2 * p, 2)}, {vr(C + 2 * p, 2)}, v[22:23]")
        for g in range(4):
            C = ACC + 8 * g
            a(f"s_waitcnt vmcnt(3)")
            for p in range(4):
                a(f"v_lshlrev_b32 v22, 16, v{XR + 4 * g + p}")
                a(f"v_and_b32 v23, 0xffff0000, v{XR + 4 * g + p}")
                a(f"v_pk_add_f32 v[20:21], {vr(C + 2 * p, 2)}, v[22:23]")
                a(f"v_cvt_pk_bf16_f32 v{HR + 4 * g + p}, v20, v21")
            a(f"buffer_store_dwordx4 {vr(HR + 4 * g, 4)}, v3, s[40:43], s76 offen offset:{32 * g} {opt('sto', '').replace('+', ' ')}")
    else:
        for i in range(8):
            a(f"buffer_load_dwordx4 {vr(XR + 4 * i, 4)}, v15, s[56:59], {'s78' if i < 4 else 's79'} offen offset:{1024 * (i & 3)} sc1")
        for g in range(4):
            C = ACC + 8 * g
            a(f"s_waitcnt vmcnt({6 - 2 * g + g})")
            for p in range(4):
                a(f"v_pk_add_f32 {vr(C + 2 * p, 2)}, {vr(C + 2 * p, 2)}, {vr(XR + 8 * g + 2 * p, 2)}")
            for p in range(4):
                a(f"v_cvt_pk_bf16_f32 v20, v{C + 2 * p}, v{C + 2 * p + 1}")
                a(f"v_lshlrev_b32 v22, 16, v{HR + 4 * g + p}")
                a(f"v_and_b32 v23, 0xffff0000, v{HR + 4 * g + p}")
                a(f"v_and_b32 v21, 0xffff0000, v20")
                a(f"v_lshlrev_b32 v20, 16, v20")
                a(f"v_pk_add_f32 v[20:21], v[20:21], v[22:23]")
                a(f"v_cvt_pk_bf16_f32 v{HR + 4 * g + p}, v20, v21")
            a(f"buffer_store_dwordx4 {vr(HR + 4 * g, 4)}, v3, s[40:43], s76 offen offset:{32 * g} {opt('sto', '').replace('+', ' ')}")
    stamp_flush(a, 0, 14)
    a("s_endpgm")
    a.label("L_g2_slow")
    poll(a, "f2s", "v21", "v20", need="s76")
    a("s_branch L_g2_back")
    a.label("L_gate_slow")
    poll(a, "gate", "v21", "v31", need="1", srdr="s[8:11]")
    a("s_branch L_gate_back")
    a.label("L_p1_slow")
    poll(a, "gate2", "v21", "v20", need="1", srdr="s[8:11]")
    a("s_add_u32 s98, s99, 8")
    signal(a, "s98")
    a("v_add_u32 v178, 8, v178")
    poll(a, "p1r", "v178", "v20")
    a("s_branch L_p1_done")
    a.label("L_g2_slow0")
    poll(a, "f2s0", "v21", "v20", need="2")
    a("s_branch L_g2_back0")
    kernel_end(a, name)
    a.label("L_code_end")
    nag = 256
    return name, descriptor(name, 256, nag, 102), (256, 256, FUSED_LDS)


def main():
    out = sys.argv[1] if len(sys.argv) > 1 else f"cdna_kernels/{NAME}.s"
    gen.PROF = "--prof" in sys.argv
    a = Asm()
    ks = [gen_fused(a)]
    if opt("enc", ""):
        ks.append(gen_enc(a))
    s = HEADER
    for name, _, (g, b, lds) in ks:
        if len(ks) > 1:
            s += f"; @launch kernel={name} grid=({g},1,1) block=({b},1,1) lds={lds}\n"
        else:
            s += f"; @launch grid=({g},1,1) block=({b},1,1) lds={lds}\n"
    s += '.amdgcn_target "amdgcn-amd-amdhsa--gfx950"\n.text\n'
    s += a.text()
    s += '.section .rodata,"a"\n'
    for name, d, _ in ks:
        s += ".p2align 6\n" + d
    open(out, "w").write(s)


if __name__ == "__main__":
    main()
```
